```python
import torch

def _softmax(x, axis=-1):
    return torch.softmax(x, dim=axis)
def _gelu(x):
    return torch.nn.functional.gelu(x, approximate="tanh")
def _silu(x):
    return torch.nn.functional.silu(x)
def _sigmoid(x):
    return torch.sigmoid(x)
def _layernorm(x, axis=-1, eps=1e-5):
    m = x.mean(dim=axis, keepdim=True)
    v = x.var(dim=axis, keepdim=True, unbiased=False)
    return (x - m) / torch.sqrt(v + eps)
def _scatter_add(tgt, idx, src, axis=0):
    return tgt.clone().index_add_(axis, idx, src)
def _segment_sum(src, seg, n):
    out = torch.zeros((n,) + src.shape[1:], dtype=src.dtype)
    return out.index_add_(0, seg, src)
def _pad(x, pw):
    flat = tuple(v for pair in reversed(pw) for v in pair)
    return torch.nn.functional.pad(x, flat)

kernel_name = 'parallel_sum__sliding_block__glu_gated_reglu__prompt'

def setup_inputs():

    _w = (lambda a: (lambda t: t.to(torch.bfloat16) if t.is_floating_point() else t)(torch.as_tensor(a)))
    def _A_setup():
        B, S, D = 1, 2048, 512
        return {
            "x": _w((lambda *s: torch.randn(*s, dtype=torch.bfloat16) * 0.05)(B, S, D)),
            "wqkv": _w((lambda *s: torch.randn(*s, dtype=torch.bfloat16) * 0.05)(D, 3 * D)),
            "wo": _w((lambda *s: torch.randn(*s, dtype=torch.bfloat16) * 0.05)(D, D)),
        }
    _A_in = _A_setup()

    def _B_setup():
        B, S, D, F = 1, 2048, 512, 1376
        return {
            "x": _w((lambda *s: torch.randn(*s, dtype=torch.bfloat16) * 0.05)(B, S, D)),
            "W_gate": _w((lambda *s: torch.randn(*s, dtype=torch.bfloat16) * 0.8)(D, F) * (2.0 / D) ** 0.5),
            "W_up": _w((lambda *s: torch.randn(*s, dtype=torch.bfloat16) * 0.8)(D, F) * (2.0 / D) ** 0.5),
            "W_down": _w((lambda *s: torch.randn(*s, dtype=torch.bfloat16) * 0.8)(F, D) * (1.0 / F) ** 0.5),
        }
    _B_in = _B_setup()

    return {
        "A_x": _A_in["x"],
        "A_wqkv": _A_in["wqkv"],
        "A_wo": _A_in["wo"],
        "B_x": _B_in["x"],
        "B_W_gate": _B_in["W_gate"],
        "B_W_up": _B_in["W_up"],
        "B_W_down": _B_in["W_down"],
    }

def reference(A_x, A_wqkv, A_wo, B_x, B_W_gate, B_W_up, B_W_down):
    def _A_ref(x, wqkv, wo):
        B, S, D = x.shape
        H = 32; Dh = D // H; W = 256
        qkv = (lambda x, *d: x.permute(*d))((x @ wqkv).reshape(B, S, 3, H, Dh), 2, 0, 3, 1, 4)
        q, k, v = qkv[0], qkv[1], qkv[2]
        scores = torch.einsum("bhqd,bhkd->bhqk", q, k) * (Dh ** -0.5)
        idx = torch.arange(S)
        mask = (idx[:, None] - idx[None, :] >= 0) & (idx[:, None] - idx[None, :] < W)
        scores = torch.where(mask[None, None], scores, -1e9)
        p = _softmax(scores, axis=-1)
        o = torch.einsum("bhqk,bhkd->bhqd", p, v)
        return (lambda x, *d: x.permute(*d))(o, 0, 2, 1, 3).reshape(B, S, D) @ wo

    def _B_ref(x, W_gate, W_up, W_down):
        gate = torch.einsum("bsd,df->bsf", x, W_gate)
        up = torch.einsum("bsd,df->bsf", x, W_up)
        gate = gate * (lambda x, dt: x.to(dt))(gate > 0, gate.dtype)
        h = gate * up
        return torch.einsum("bsf,fd->bsd", h, W_down)

    x = A_x
    xn = _layernorm(x, axis=-1)
    return x + _A_ref(xn, A_wqkv, A_wo) + _B_ref(xn, B_W_gate, B_W_up, B_W_down)
```

```python
class Asm:
    def __init__(self):
        self.lines = []
    def __call__(self, s):
        for l in s.strip("\n").split("\n"):
            self.lines.append("    " + l.strip())
    def label(self, l):
        self.lines.append(l + ":")
    def raw(self, l):
        self.lines.append(l)
    def text(self):
        return "\n".join(self.lines) + "\n"

def v(i, n=1):
    return f"v{i}" if n == 1 else f"v[{i}:{i+n-1}]"
def s(i, n=1):
    return f"s{i}" if n == 1 else f"s[{i}:{i+n-1}]"

def srd(a, d, base, nbytes, off=0):
    if off:
        a(f"s_add_u32 {s(d)}, {s(base)}, {hex(off)}")
        a(f"s_addc_u32 {s(d+1)}, {s(base+1)}, 0")
    else:
        a(f"s_mov_b32 {s(d)}, {s(base)}")
        a(f"s_mov_b32 {s(d+1)}, {s(base+1)}")
    a(f"s_mov_b32 {s(d+2)}, {hex(nbytes)}")
    a(f"s_mov_b32 {s(d+3)}, 0x00020000")

def kernel_begin(a, name):
    a.raw(f".globl {name}")
    a.raw(".p2align 8")
    a.raw(f".type {name},@function")
    a.label(name)

def descriptor(a, name, vgpr, sgpr, accum=None):
    accum = accum or min(256, (vgpr + 3) // 4 * 4)
    a.raw(".p2align 6")
    a.raw(f".amdhsa_kernel {name}")
    a.raw(f"  .amdhsa_next_free_vgpr {vgpr}")
    a.raw(f"  .amdhsa_next_free_sgpr {sgpr}")
    a.raw(f"  .amdhsa_accum_offset {accum}")
    a.raw("  .amdhsa_group_segment_fixed_size 0")
    a.raw("  .amdhsa_kernarg_size 80")
    a.raw("  .amdhsa_user_sgpr_count 2")
    a.raw("  .amdhsa_user_sgpr_kernarg_segment_ptr 1")
    a.raw("  .amdhsa_system_sgpr_workgroup_id_x 1")
    a.raw(".end_amdhsa_kernel")

class Counter:
    def __init__(self, a, name, maxv):
        self.a, self.name, self.maxv = a, name, maxv
        self.n = 0
        self.done = 0
        self.tag = {}
    def issue(self, line, tag=None):
        self.a(line)
        self.n += 1
        if tag is not None:
            self.tag[tag] = self.n
    def wait(self, *tags):
        need = max(self.tag[t] for t in tags)
        if need <= self.done:
            return
        N = min(self.n - need, self.maxv)
        self.a(f"s_waitcnt {self.name}({N})")
        self.done = self.n - N
    def wait_all(self, force=True):
        if self.done < self.n or force:
            self.a(f"s_waitcnt {self.name}(0)")
        self.done = self.n
```

```python
from asmlib import *

WS_QK = 0
WS_VT = 4 << 20
WS_H = 6 << 20
NSLAB_H = 43
WS_O = WS_H + NSLAB_H * 131072

STG = 53248
XB = 16384
IMG = 12288
STAT = 0
SB = 4096
ST_M = STAT
ST_RS = STAT + 512
ST_CS = STAT + 1024
K1_LDS = SB + 3 * STG

ACC = 112
WF = 76
XF = 44

def bf16_round(a, r, tmp=None):
    a(f"v_cvt_pk_bf16_f32 {v(r)}, {v(r)}, {v(r)}")
    a(f"v_lshlrev_b32 {v(r)}, 16, {v(r)}")

def k1_body(a, name, st="", timing=False, opt=()):
    L = lambda x: f"{name}_{x}"
    a("s_cmp_ge_u32 s2, 256")
    a(f"s_cbranch_scc1 {L('end')}")
    a("s_load_dwordx4 s[4:7], s[0:1], 0")
    a("s_load_dwordx4 s[8:11], s[0:1], 32")
    a("s_load_dwordx2 s[12:13], s[0:1], 72")
    if timing:
        a("s_memtime s[60:61]")
    a("s_and_b32 s3, s2, 7")
    a("s_lshr_b32 s17, s2, 3")
    a("s_and_b32 s14, s3, 1")
    a("s_lshl_b32 s14, s14, 3")
    a("s_and_b32 s18, s17, 7")
    a("s_add_u32 s14, s14, s18")
    a("s_lshr_b32 s15, s3, 1")
    a("s_lshl_b32 s15, s15, 2")
    a("s_lshr_b32 s18, s17, 3")
    a("s_add_u32 s15, s15, s18")
    a("v_lshrrev_b32 v1, 6, v0")
    a("v_and_b32 v0, 63, v0")
    a("s_nop 0")
    a("v_readfirstlane_b32 s16, v1")
    a("s_waitcnt lgkmcnt(0)")
    srd(a, 20, 4, 2048 * 1024)
    srd(a, 24, 6, 512 * 3072)
    srd(a, 28, 8, 512 * 2752)
    srd(a, 32, 10, 512 * 2752)
    srd(a, 36, 12, 4 << 20, WS_QK)
    srd(a, 40, 12, 2 << 20, WS_VT)
    srd(a, 44, 12, NSLAB_H * 131072, WS_H)
    a("s_cmp_ge_u32 s16, 4")
    a(f"s_cbranch_scc1 {L('loader')}")

    a("s_and_b32 s17, s16, 1")
    a("s_lshr_b32 s18, s16, 1")
    a("v_and_b32 v1, 15, v0")
    a("v_lshrrev_b32 v2, 4, v0")
    a("v_lshrrev_b32 v3, 1, v1")
    a("v_xor_b32 v3, v3, v2")
    a("v_lshlrev_b32 v3, 4, v3")
    a("s_lshl_b32 s19, s17, 13")
    a("v_lshl_add_u32 v3, v1, 7, v3")
    a(f"s_add_u32 s19, s19, {SB}")
    a("v_add_u32 v10, s19, v3")
    a("v_xor_b32 v11, 64, v10")
    a("v_bfe_u32 v4, v0, 2, 2")
    a("v_lshl_add_u32 v4, v2, 3, v4")
    a("v_mul_u32_u24 v4, 192, v4")
    a("v_and_b32 v5, 3, v0")
    a("v_lshl_add_u32 v4, v5, 3, v4")
    a(f"v_add_u32 v4, {SB+XB}, v4")
    a("v_and_b32 v5, 1, v2")
    a("v_lshlrev_b32 v5, 5, v5")
    a("s_lshl_b32 s19, s18, 7")
    a("v_add3_u32 v12, v4, v5, s19")
    a("v_xor_b32 v6, 32, v5")
    a("v_add3_u32 v13, v4, v6, s19")
    a("s_lshl_b32 s19, s18, 5")
    a("v_xor_b32 v6, s19, v5")
    a("v_add_u32 v6, 64, v6")
    a("v_add_u32 v14, v4, v6")
    for b in (1, 2):
        for i in range(5):
            a(f"v_add_u32 {v(10+5*b+i)}, {STG*b}, {v(10+i)}")
    for i in range(144):
        a(f"v_mov_b32 {v(ACC+i)}, 0")

    def rd_x(buf, ks, xb):
        out = []
        for i in range(4):
            out.append(f"ds_read_b128 {v(XF+16*xb+4*i,4)}, {v(10+5*buf+ks)} offset:{i*2048}")
        return out
    def rd_w(buf, ks, j):
        img, p = j // 3, j % 3
        addr = 10 + 5 * buf + 2 + p
        return [f"ds_read_b64_tr_b16 {v(WF+4*j+2*hf,2)}, {v(addr)} offset:{img*IMG + ks*6144 + hf*768}" for hf in range(2)]
    def mfma(j, i, xb):
        acc = v(ACC + 4 * (4 * j + i), 4)
        w = v(WF + 4 * j, 4); x = v(XF + 16 * xb + 4 * i, 4)
        if j == 2:
            return f"v_mfma_f32_16x16x32_bf16 {acc}, {x}, {w}, {acc}"
        return f"v_mfma_f32_16x16x32_bf16 {acc}, {w}, {x}, {acc}"

    lg = Counter(a, "lgkmcnt", 12)
    def issue_x(step, lo, hi):
        buf, ks = (step // 2) % 3, step % 2
        for i, l in enumerate(rd_x(buf, ks, step % 2)):
            if "nords" in opt and step > 0: l = "s_nop 0"
            if lo <= i < hi: lg.issue(l, ("x", step, i))
    def issue_w(step, j):
        buf, ks = (step // 2) % 3, step % 2
        for l in rd_w(buf, ks, j):
            if "nords" in opt and step > 0: l = "s_nop 0"
            lg.issue(l, ("w", step, j))
    TS = [0]
    def ts():
        if timing:
            a(f"s_memtime s[{70+2*TS[0]}:{71+2*TS[0]}]")
            a("s_waitcnt lgkmcnt(0)")
            lg.done = lg.n
            TS[0] += 1
    ts()
    a("s_barrier")
    ts()
    issue_x(0, 0, 4)
    for j in range(9):
        if j == 5: lg.wait(("w", 0, 0))
        issue_w(0, j)
    for step in range(16):
        sidx, ks = step // 2, step % 2
        xb = step % 2
        nstep = step + 1
        has_next = nstep < 16
        for j in range(9):
            lg.wait(("w", step, j), ("x", step, 3))
            for i in range(4):
                if "nomfma" not in opt: a(mfma(j, i, xb))
            if ks == 1 and j == 0:
                continue
            if ks == 1 and j == 1:
                lg.wait_all()
                a("s_barrier")
                ts()
                if has_next:
                    issue_w(nstep, 0)
            if has_next:
                if j in (2, 3):
                    issue_x(nstep, 2*(j-2), 2*(j-2)+2)
                issue_w(nstep, j)
    a("s_barrier")
    if timing:
        a("s_memtime s[62:63]")
    a("s_lshl_b32 s19, s17, 8")
    a("v_lshl_add_u32 v3, v1, 2, s19")
    for i in range(4):
        a(f"ds_read_b32 {v(44+i)}, v3 offset:{ST_M + 64*i}")
        a(f"ds_read_b32 {v(48+i)}, v3 offset:{ST_RS + 64*i}")
    a("s_lshl_b32 s19, s18, 8")
    a("v_lshl_add_u32 v4, v2, 4, s19")
    a("s_lshl_b32 s19, s18, 6")
    a("v_lshl_add_u32 v5, v2, 4, s19")
    a("v_lshl_add_u32 v6, v1, 2, s19")
    for j in range(9):
        img, p = j // 3, j % 3
        if j == 2:
            a(f"ds_read_b32 {v(WF+4*j)}, v6 offset:{ST_CS + 128}")
        elif p < 2:
            a(f"ds_read_b128 {v(WF+4*j,4)}, v4 offset:{ST_CS + img*384 + p*64}")
        else:
            a(f"ds_read_b128 {v(WF+4*j,4)}, v5 offset:{ST_CS + img*384 + 128}")
    a("s_lshl_b32 s19, s17, 8")
    a("v_lshl_add_u32 v7, v2, 4, s19")
    a("s_cmp_lt_u32 s15, 8")
    a("s_cselect_b32 s50, 0x3eb8aa3b, 1.0")
    a("s_lshl_b32 s51, s15, 2")
    a("s_lshl_b32 s19, s18, 1")
    a("s_add_u32 s51, s51, s19")
    a("s_lshl_b32 s51, s51, 16")
    a("s_lshl_b32 s19, s14, 12")
    a("s_add_u32 s51, s51, s19")
    a("s_lshl_b32 s52, s17, 11")
    a("s_add_u32 s51, s51, s52")
    a("s_add_u32 s52, s52, s19")
    a("s_lshl_b32 s19, s15, 1")
    a("s_add_u32 s19, s19, s18")
    a("s_lshl_b32 s19, s19, 16")
    a("s_add_u32 s52, s52, s19")
    a("v_lshlrev_b32 v8, 5, v1")
    a("v_lshl_add_u32 v8, v2, 3, v8")
    a("s_add_u32 s53, s51, 0x10000")
    a("s_mul_i32 s54, s15, 3")
    a("s_lshl_b32 s19, s18, 1")
    a("s_add_u32 s55, s54, s19")
    a("s_add_u32 s54, s54, 1")
    a("s_lshl_b32 s55, s55, 17")
    a("s_lshl_b32 s54, s54, 17")
    a("s_lshl_b32 s19, s14, 13")
    a("s_add_u32 s55, s55, s19")
    a("s_add_u32 s54, s54, s19")
    a("s_lshl_b32 s19, s17, 12")
    a("s_add_u32 s55, s55, s19")
    a("s_add_u32 s54, s54, s19")
    a("s_lshl_b32 s19, s18, 3")
    a("s_add_u32 s54, s54, s19")
    a("v_lshlrev_b32 v9, 4, v0")
    a("s_waitcnt lgkmcnt(0)")
    for i in range(4):
        a(f"ds_read_b128 {v(10+8*i,4)}, v7 offset:{ST_M + 64*i}")
        a(f"ds_read_b128 {v(14+8*i,4)}, v7 offset:{ST_RS + 64*i}")
    for i in range(4):
        a(f"v_mul_f32 {v(52+i)}, s50, {v(48+i)}")
        a(f"v_mul_f32 {v(56+i)}, {v(48+i)}, {v(48+i)}")
    A = lambda j, i, r: ACC + 4 * (4 * j + i) + r
    T = 60
    for j in (0, 1):
        for i in range(4):
            for r in range(4):
                a(f"v_fma_f32 {v(A(j,i,r))}, {v(44+i)}, {v(WF+4*j+r)}, {v(A(j,i,r))}")
            for r in range(4):
                a(f"v_mul_f32 {v(A(j,i,r))}, {v(52+i)}, {v(A(j,i,r))}")
            a(f"v_cvt_pk_bf16_f32 {v(A(j,i,0))}, {v(A(j,i,0))}, {v(A(j,i,1))}")
            a(f"v_cvt_pk_bf16_f32 {v(A(j,i,1))}, {v(A(j,i,2))}, {v(A(j,i,3))}")
            a(f"buffer_store_dwordx2 {v(A(j,i,0),2)}, v8, s[36:39], {s(51 if j==0 else 53)} offen offset:{512*i} {st}")
    for i in range(4):
        for p in range(3):
            for r in range(4):
                a(f"v_fma_f32 {v(A(3+p,i,r))}, {v(44+i)}, {v(WF+4*(3+p)+r)}, {v(A(3+p,i,r))}")
                a(f"v_fma_f32 {v(A(6+p,i,r))}, {v(44+i)}, {v(WF+4*(6+p)+r)}, {v(A(6+p,i,r))}")
            for r in range(4):
                a(f"v_max_f32 {v(A(3+p,i,r))}, 0, {v(A(3+p,i,r))}")
                a(f"v_mul_f32 {v(A(6+p,i,r))}, {v(56+i)}, {v(A(6+p,i,r))}")
            for r in range(4):
                a(f"v_mul_f32 {v(A(3+p,i,r))}, {v(A(3+p,i,r))}, {v(A(6+p,i,r))}")
        d = A(6, i, 0)
        a(f"v_cvt_pk_bf16_f32 {v(d+0)}, {v(A(3,i,0))}, {v(A(3,i,1))}")
        a(f"v_cvt_pk_bf16_f32 {v(d+1)}, {v(A(3,i,2))}, {v(A(3,i,3))}")
        a(f"v_cvt_pk_bf16_f32 {v(d+2)}, {v(A(4,i,0))}, {v(A(4,i,1))}")
        a(f"v_cvt_pk_bf16_f32 {v(d+3)}, {v(A(4,i,2))}, {v(A(4,i,3))}")
        a(f"buffer_store_dwordx4 {v(d,4)}, v9, s[44:47], s55 offen offset:{1024*i} {st}")
        d = A(7, i, 0)
        a(f"v_cvt_pk_bf16_f32 {v(d+0)}, {v(A(5,i,0))}, {v(A(5,i,1))}")
        a(f"v_cvt_pk_bf16_f32 {v(d+1)}, {v(A(5,i,2))}, {v(A(5,i,3))}")
        a(f"buffer_store_dwordx2 {v(d,2)}, v9, s[44:47], s54 offen offset:{1024*i} {st}")
    a("s_waitcnt lgkmcnt(0)")
    for i in range(4):
        for r in range(4):
            a(f"v_fma_f32 {v(A(2,i,r))}, {v(10+8*i+r)}, {v(WF+8)}, {v(A(2,i,r))}")
        for r in range(4):
            a(f"v_mul_f32 {v(A(2,i,r))}, {v(14+8*i+r)}, {v(A(2,i,r))}")
        a(f"v_cvt_pk_bf16_f32 {v(A(2,i,0))}, {v(A(2,i,0))}, {v(A(2,i,1))}")
        a(f"v_cvt_pk_bf16_f32 {v(A(2,i,1))}, {v(A(2,i,2))}, {v(A(2,i,3))}")
        a(f"buffer_store_dwordx2 {v(A(2,i,0),2)}, v8, s[40:43], s52 offen offset:{512*i} {st}")
    if timing:
        a("s_waitcnt vmcnt(0)")
        a("s_memtime s[64:65]")
        a("s_waitcnt lgkmcnt(0)")
        a("s_sub_u32 s62, s62, s60")
        a("s_sub_u32 s64, s64, s60")
        a("v_mov_b32 v4, s62")
        a("v_mov_b32 v5, s64")
        a("s_lshl_b32 s19, s2, 5")
        a("s_lshl_b32 s3, s16, 3")
        a("s_add_u32 s19, s19, s3")
        a("s_add_u32 s19, s19, 0x1000000")
        a("v_mov_b32 v3, s19")
        srd(a, 36, 12, 32 << 20, 0)
        a("buffer_store_dwordx2 v[4:5], v3, s[36:39], 0 offen")
        a("s_lshl_b32 s19, s2, 8")
        a("s_lshl_b32 s3, s16, 6")
        a("s_add_u32 s19, s19, s3")
        a("s_add_u32 s19, s19, 0x1100000")
        a("v_mov_b32 v3, s19")
        for q in range(TS[0]):
            a(f"s_sub_u32 s62, s{70+2*q}, s60")
            a("v_mov_b32 v4, s62")
            a(f"buffer_store_dword v4, v3, s[36:39], 0 offen offset:{4*q}")
            a("s_nop 1")
    a(f"s_branch {L('end')}")

    a.label(L("loader"))
    a("s_sub_u32 s16, s16, 4")
    a("v_lshrrev_b32 v1, 3, v0")
    a("v_and_b32 v2, 7, v0")
    a("s_lshl_b32 s17, s14, 7")
    a("s_lshl_b32 s18, s16, 5")
    a("s_add_u32 s17, s17, s18")
    for i in range(4):
        a(f"v_add_u32 v3, {8*i}, v1")
        a("v_lshrrev_b32 v4, 1, v3")
        a("v_and_b32 v4, 7, v4")
        a("v_xor_b32 v4, v4, v2")
        a("v_add_u32 v3, s17, v3")
        a("v_lshlrev_b32 v3, 10, v3")
        a(f"v_lshl_add_u32 {v(10+i)}, v4, 4, v3")
    a("s_lshl_b32 s17, s16, 4")
    a("s_mul_i32 s18, s15, 192")
    a("s_lshl_b32 s19, s15, 7")
    a("s_lshl_b32 s48, s15, 6")
    a("s_add_u32 s48, s48, 2048")
    a("s_movk_i32 s49, 2752")
    a("s_movk_i32 s50, 3072")
    for b in range(3):
        a(f"v_add_u32 v3, {64*b}, v0")
        a("v_mul_u32_u24 v4, 171, v3")
        a("v_lshrrev_b32 v4, 11, v4")
        a("v_mul_u32_u24 v5, 12, v4")
        a("v_sub_u32 v5, v3, v5")
        a("v_lshrrev_b32 v6, 3, v4")
        a("v_lshlrev_b32 v6, 1, v6")
        a("v_xor_b32 v5, v5, v6")
        a("v_add_u32 v4, s17, v4")
        a("v_mul_lo_u32 v6, v4, s49")
        a("v_lshl_add_u32 v6, v5, 4, v6")
        a(f"v_add_u32 {v(17+b)}, s18, v6")
        a("v_mul_lo_u32 v6, v4, s50")
        a("v_subrev_u32 v7, 4, v5")
        a("v_cmp_gt_u32 vcc, 4, v5")
        a("s_nop 1")
        a("v_cndmask_b32 v7, v7, v5, vcc")
        a("v_lshl_add_u32 v6, v7, 4, v6")
        a("v_lshrrev_b32 v7, 2, v5")
        a("v_cmp_eq_u32 vcc, 1, v7")
        a("v_mov_b32 v8, s19")
        a("v_mov_b32 v9, s48")
        a("v_cndmask_b32 v8, v8, v9, vcc")
        a(f"v_add_u32 {v(14+b)}, v6, v8")
    a("s_lshl_b32 s51, s16, 12")
    a(f"s_add_u32 s51, s51, {SB}")
    a("s_mul_i32 s52, s16, 3072")
    a(f"s_add_u32 s52, s52, {SB+XB}")

    def dma(stage):
        buf = stage % 3
        a(f"s_movk_i32 s53, {stage*128}")
        a(f"s_mov_b32 s54, {stage*64*3072}")
        a(f"s_mov_b32 s55, {stage*64*2752}")
        for i in range(4):
            a(f"s_add_u32 m0, s51, {buf*STG + i*1024}")
            a("s_nop 0")
            a(f"buffer_load_dwordx4 {v(10+i)}, s[20:23], s53 offen lds")
        for img in range(3):
            for b in range(3):
                a(f"s_add_u32 m0, s52, {buf*STG + img*IMG + b*1024}")
                a("s_nop 0")
                if img == 0:
                    a(f"buffer_load_dwordx4 {v(14+b)}, s[24:27], s54 offen lds")
                else:
                    a(f"buffer_load_dwordx4 {v(17+b)}, {s(24+4*img,4)}, s55 offen lds")
    for stg in range(2):
        dma(stg)
    a("v_lshl_add_u32 v20, v0, 4, s51")
    a("v_lshrrev_b32 v2, 4, v0")
    a("v_bfe_u32 v4, v0, 2, 2")
    a("v_lshl_add_u32 v4, v2, 3, v4")
    a("v_mul_u32_u24 v4, 192, v4")
    a("v_and_b32 v5, 3, v0")
    a("v_lshl_add_u32 v4, v5, 3, v4")
    a(f"v_add_u32 v4, {SB+XB}, v4")
    a("v_and_b32 v5, 1, v2")
    a("v_lshlrev_b32 v5, 5, v5")
    for i in range(5):
        if i < 4:
            a(f"s_add_u32 s56, s16, {4*i}")
        else:
            a("s_and_b32 s56, s16, 1")
            a("s_add_u32 s56, s56, 16")
        a(f"s_mov_b32 {s(64+i)}, s56")
        a("s_mul_i32 s57, s56, 43")
        a("s_lshr_b32 s57, s57, 8")
        a("s_mul_i32 s58, s57, 6")
        a("s_sub_u32 s58, s56, s58")
        a("s_lshl_b32 s58, s58, 5")
        a(f"s_mul_i32 s57, s57, {IMG}")
        a("v_xor_b32 v6, s58, v5")
        a(f"v_add3_u32 {v(21+i)}, v4, v6, s57")
    for r in range(30, 43):
        a(f"v_mov_b32 {v(r)}, 0")
    a("s_mov_b32 s59, 0x3f803f80")
    XD = 48
    WD = 64
    def stats(stage):
        buf = stage % 3
        base = buf * STG
        a(f"v_add_u32 v26, {base}, v20")
        for i in range(4):
            a(f"ds_read_b128 {v(XD+4*i,4)}, v26 offset:{i*1024}")
        for i in range(5):
            a(f"v_add_u32 v27, {base}, {v(21+i)}")
            for q in range(4):
                a(f"ds_read_b64_tr_b16 {v(WD+8*i+2*q,2)}, v27 offset:{(q>>1)*6144 + (q&1)*768}")
            if i == 1 and "noxs" not in opt:
                a("s_waitcnt lgkmcnt(8)")
                for k in range(4):
                    for r in range(4):
                        d = XD+4*k+r
                        if "dot" in opt:
                            a(f"v_dot2c_f32_bf16 {v(30+k)}, s59, {v(d)}")
                            a(f"v_dot2c_f32_bf16 {v(34+k)}, {v(d)}, {v(d)}")
                        else:
                            a(f"v_lshlrev_b32 v28, 16, {v(d)}")
                            a(f"v_and_b32 v29, 0xffff0000, {v(d)}")
                            a(f"v_add_f32 {v(30+k)}, {v(30+k)}, v28")
                            a(f"v_fmac_f32 {v(34+k)}, v28, v28")
                            a(f"v_add_f32 {v(30+k)}, {v(30+k)}, v29")
                            a(f"v_fmac_f32 {v(34+k)}, v29, v29")
        for i in range(5):
            a(f"s_waitcnt lgkmcnt({min(12,4*(4-i))})")
            if "nocs" in opt: continue
            for r in range(8):
                d = WD+8*i+r
                if "dot" in opt:
                    a(f"v_dot2c_f32_bf16 {v(38+i)}, s59, {v(d)}")
                else:
                    a(f"v_lshlrev_b32 v28, 16, {v(d)}")
                    a(f"v_and_b32 v29, 0xffff0000, {v(d)}")
                    a(f"v_add_f32 {v(38+i)}, {v(38+i)}, v28")
                    a(f"v_add_f32 {v(38+i)}, {v(38+i)}, v29")
    a("s_waitcnt vmcnt(13)")
    a("s_barrier")
    for sidx in range(8):
        if sidx + 2 < 8 and ("nodma" not in opt or sidx == 0):
            dma(sidx + 2)
        if "nostats" not in opt: stats(sidx)
        if sidx + 1 < 8:
            a(f"s_waitcnt vmcnt({13 if sidx + 2 < 8 else 0})")
        a("s_barrier")
    a("s_nop 4")
    for k in range(8):
        r = 30 + k
        a(f"v_add_f32_dpp {v(r)}, {v(r)}, {v(r)} quad_perm:[1,0,3,2] row_mask:0xf bank_mask:0xf")
    a("s_nop 1")
    for k in range(8):
        r = 30 + k
        a(f"v_add_f32_dpp {v(r)}, {v(r)}, {v(r)} quad_perm:[2,3,0,1] row_mask:0xf bank_mask:0xf")
    a("s_nop 1")
    for k in range(8):
        r = 30 + k
        a(f"v_add_f32_dpp {v(r)}, {v(r)}, {v(r)} row_half_mirror row_mask:0xf bank_mask:0xf")
    a("s_mov_b32 s56, 0x3b000000")
    a("s_mov_b32 s57, 0x3727c5ac")
    a("v_lshrrev_b32 v1, 3, v0")
    a("s_lshl_b32 s58, s16, 7")
    a("v_lshl_add_u32 v1, v1, 2, s58")
    for k in range(4):
        m, q = 30 + k, 34 + k
        a(f"v_mul_f32 {v(m)}, s56, {v(m)}")
        a(f"v_mul_f32 {v(q)}, s56, {v(q)}")
        a(f"v_fma_f32 {v(q)}, -{v(m)}, {v(m)}, {v(q)}")
        a(f"v_max_f32 {v(q)}, 0, {v(q)}")
        bf16_round(a, q)
        a(f"v_add_f32 {v(q)}, s57, {v(q)}")
        bf16_round(a, q)
        a(f"v_sqrt_f32 {v(q)}, {v(q)}")
        a("s_nop 0")
        bf16_round(a, q)
        a(f"v_rcp_f32 {v(q)}, {v(q)}")
        bf16_round(a, m)
        a(f"v_xor_b32 {v(m)}, 0x80000000, {v(m)}")
        a(f"ds_write_b32 v1, {v(m)} offset:{ST_M + 32*k}")
        a(f"ds_write_b32 v1, {v(q)} offset:{ST_RS + 32*k}")
    a("v_and_b32 v2, 15, v0")
    a("v_lshlrev_b32 v2, 2, v2")
    for i in range(5):
        r = 38 + i
        a(f"v_mov_b32 v3, {v(r)}")
        a("s_nop 1")
        a(f"v_permlane32_swap_b32 {v(r)}, v3")
        a("s_nop 1")
        a(f"v_add_f32 {v(r)}, {v(r)}, v3")
        a(f"v_mov_b32 v3, {v(r)}")
        a("s_nop 1")
        a(f"v_permlane16_swap_b32 {v(r)}, v3")
        a("s_nop 1")
        a(f"v_add_f32 {v(r)}, {v(r)}, v3")
        a(f"s_lshl_b32 s58, {s(64+i)}, 6")
        a("v_add_u32 v4, s58, v2")
        a(f"ds_write_b32 v4, {v(r)} offset:{ST_CS}")
    a("s_waitcnt lgkmcnt(0)")
    a("s_barrier")
    a.label(L("end"))
    a("s_endpgm")
```

```python
from asmlib import *
from k1 import WS_QK, WS_VT, WS_H, WS_O, NSLAB_H

D = 4
RING = (D + 1) * 4096
LB = 256
K2_LDS = LB + 4 * RING

def k2_body(a, name, ld="", timing=False, opt=()):
    L = lambda x: f"{name}_{x}"
    a("s_cmp_ge_u32 s2, 256")
    a(f"s_cbranch_scc1 {L('end')}")
    a("s_load_dwordx2 s[4:5], s[0:1], 0")
    a("s_load_dwordx2 s[6:7], s[0:1], 16")
    a("s_load_dwordx4 s[8:11], s[0:1], 48")
    a("s_load_dwordx4 s[12:15], s[0:1], 64")
    if timing:
        a("s_memtime s[60:61]")
    a("s_and_b32 s3, s2, 7")
    a("s_lshr_b32 s19, s2, 3")
    a("s_lshl_b32 s17, s3, 2")
    a("s_and_b32 s18, s19, 3")
    a("s_add_u32 s17, s17, s18")
    a("s_lshr_b32 s18, s19, 2")
    a("v_lshrrev_b32 v1, 6, v0")
    a("v_and_b32 v0, 63, v0")
    a("v_mov_b32 v2, 0")
    a("v_readfirstlane_b32 s16, v1")
    a("ds_write_b32 v2, v2")
    a("s_waitcnt lgkmcnt(0)")
    srd(a, 20, 12, 256)
    srd(a, 24, 14, 16 * 131072, WS_O)
    a("s_barrier")
    a("s_cmp_ge_u32 s16, 4")
    a(f"s_cbranch_scc1 {L('attn')}")

    srd(a, 28, 14, NSLAB_H * 131072, WS_H)
    srd(a, 32, 8, 1376 * 1024)
    srd(a, 36, 6, 512 * 1024)
    srd(a, 40, 4, 2048 * 1024)
    srd(a, 44, 10, 2048 * 1024)
    ACC = 192
    BF = 128
    WF = 96
    XR = 88
    a("s_lshl_b32 s19, s17, 12")
    a("v_lshl_add_u32 v1, v0, 4, s19")
    a("v_lshrrev_b32 v3, 3, v0")
    a("v_and_b32 v4, 7, v0")
    a("v_and_b32 v5, 6, v3")
    a("v_xor_b32 v4, v4, v5")
    a("v_lshlrev_b32 v4, 4, v4")
    a("v_lshl_add_u32 v4, v3, 10, v4")
    a("s_lshl_b32 s19, s18, 7")
    a("v_add_u32 v2, s19, v4")
    a(f"s_mul_i32 s48, s16, {RING}")
    a(f"s_add_u32 s48, s48, {LB}")
    a("s_lshl_b32 s49, s16, 15")
    a("s_lshl_b32 s50, s16, 17")
    vm = Counter(a, "vmcnt", 60)
    lg = Counter(a, "lgkmcnt", 12)
    NH = 11; NO = 4; NT = NH + NO
    def dma_w(k):
        slot = k % (D + 1)
        for q in range(4):
            a(f"s_add_u32 m0, s48, {slot*4096 + q*1024}")
            if k < NH:
                a(f"s_add_u32 s51, s49, {k*4*32768 + q*8192}")
                vm.issue(f"buffer_load_dwordx4 v2, s[32:35], s51 offen lds", ("w", k))
            else:
                a(f"s_add_u32 s51, s49, {(k-NH)*4*32768 + (16*(q&1) + 8*(q>>1))*1024}")
                vm.issue(f"buffer_load_dwordx4 v2, s[36:39], s51 offen lds", ("w", k))
    def load_b(k):
        if k < NH:
            a(f"s_add_u32 s52, s50, {k*4*131072}")
            for i in range(4):
                vm.issue(f"buffer_load_dwordx4 {v(BF+16*(k%D)+4*i,4)}, v1, s[28:31], s52 offen offset:{1024*i} {ld}", ("b", k))
        else:
            a(f"s_add_u32 s52, s50, {(k-NH)*4*131072}")
            for i in range(4):
                vm.issue(f"buffer_load_dwordx4 {v(BF+16*(k%D)+4*i,4)}, v1, s[24:27], s52 offen offset:{1024*i} sc1", ("b", k))
    for k in range(D):
        dma_w(k); load_b(k)
    a("v_lshrrev_b32 v3, 4, v0")
    a("v_bfe_u32 v4, v0, 2, 2")
    a("v_lshl_add_u32 v5, v3, 2, v4")
    a("v_bfe_u32 v6, v5, 1, 2")
    a("v_and_b32 v7, 3, v0")
    a("v_lshlrev_b32 v7, 3, v7")
    a("v_lshl_add_u32 v7, v5, 7, v7")
    a("v_add_u32 v7, s48, v7")
    for u in range(4):
        a(f"v_xor_b32 v8, {u}, v6")
        a(f"v_lshl_add_u32 {v(10+u)}, v8, 5, v7")
    for i in range(64):
        a(f"v_mov_b32 {v(ACC+i)}, 0")
    a("v_and_b32 v8, 15, v0")
    a("v_lshlrev_b32 v9, 10, v8")
    a("v_lshl_add_u32 v9, v3, 4, v9")
    a("s_lshl_b32 s19, s17, 16")
    a("s_lshl_b32 s53, s16, 14")
    a("s_add_u32 s19, s19, s53")
    a("s_lshl_b32 s53, s18, 7")
    a("s_add_u32 s19, s19, s53")
    a("v_add_u32 v9, s19, v9")
    def rd_w(k):
        slot = k % (D + 1)
        for u in range(4):
            for hf in range(2):
                lg.issue(f"ds_read_b64_tr_b16 {v(WF+16*(k%2)+4*u+2*hf,2)}, {v(10+u)} offset:{slot*4096 + hf*2048}", ("w", k, u))
    def mm(k):
        for u in range(4):
            lg.wait(("w", k, u))
            for i in range(4):
                acc = v(ACC + 4 * (4 * u + i), 4)
                a(f"v_mfma_f32_16x16x32_bf16 {acc}, {v(WF+16*(k%2)+4*u,4)}, {v(BF+16*(k%D)+4*i,4)}, {acc}")
    for k in range(NH):
        vm.wait(("w", k), ("b", k))
        rd_w(k)
        mm(k)
        nk = k + D
        if nk < NT:
            dma_w(nk)
        if nk < NH:
            load_b(nk)
    vm.issue(f"buffer_load_dwordx4 {v(XR,4)}, v9, s[40:43], 0 offen", "x")
    vm.issue(f"buffer_load_dwordx4 {v(XR+4,4)}, v9, s[40:43], 0 offen offset:64", "x")
    if timing:
        a("s_memtime s[62:63]")
    a("s_lshl_b32 s19, s17, 3")
    a("v_mov_b32 v14, s19")
    a.label(L("poll"))
    a("buffer_load_dwordx2 v[16:17], v14, s[20:23], 0 offen sc1")
    a("s_waitcnt vmcnt(0)")
    a("v_and_b32 v16, v16, v17")
    a("s_nop 0")
    a("v_readfirstlane_b32 s19, v16")
    a("s_nop 3")
    a("s_cmp_eq_u32 s19, 0x01010101")
    a(f"s_cbranch_scc1 {L('go')}")
    a("s_sleep 2")
    a(f"s_branch {L('poll')}")
    a.label(L("go"))
    vm.done = vm.n
    if timing:
        a("s_memtime s[64:65]")
        a("s_waitcnt lgkmcnt(0)")
    for k in range(NH, NT):
        load_b(k)
    for k in range(NH, NT):
        rd_w(k)
        vm.wait(("b", k))
        mm(k)
    a("v_lshl_add_u32 v14, v0, 4, s48")
    a("s_nop 7")
    for t in range(16):
        a(f"ds_write_b128 v14, {v(ACC+4*t,4)} offset:{t*1024}")
    a("s_waitcnt lgkmcnt(0)")
    a("s_barrier")
    a("v_lshrrev_b32 v4, 1, v3")
    a("v_lshlrev_b32 v4, 12, v4")
    a("v_and_b32 v5, 1, v3")
    a("v_lshl_add_u32 v4, v5, 9, v4")
    a("v_lshl_add_u32 v4, v8, 4, v4")
    a("s_lshl_b32 s19, s16, 10")
    a(f"s_add_u32 s19, s19, {LB}")
    a("v_add_u32 v4, s19, v4")
    a(f"v_add_u32 v5, {2*RING}, v4")
    for pw in range(4):
        base = v(4) if pw < 2 else v(5)
        off = (pw % 2) * RING
        for h2 in range(2):
            for e in range(2):
                a(f"ds_read_b128 {v(128+16*pw+8*h2+4*e,4)}, {base} offset:{off + h2*8192 + e*256}")
    for d in range(8):
        a(f"v_lshlrev_b32 {v(96+2*d)}, 16, {v(XR+d)}")
        a(f"v_and_b32 {v(97+2*d)}, 0xffff0000, {v(XR+d)}")
    for pw in range(4):
        a(f"s_waitcnt lgkmcnt({12-4*pw})")
        for e in range(16):
            a(f"v_add_f32 {v(96+e)}, {v(96+e)}, {v(128+16*pw+e)}")
    for d in range(8):
        a(f"v_cvt_pk_bf16_f32 {v(112+d)}, {v(96+2*d)}, {v(97+2*d)}")
    a(f"buffer_store_dwordx4 v[112:115], v9, s[44:47], 0 offen")
    a(f"buffer_store_dwordx4 v[116:119], v9, s[44:47], 0 offen offset:64")
    if timing:
        a("s_waitcnt vmcnt(0)")
        a("s_memtime s[66:67]")
        a("s_waitcnt lgkmcnt(0)")
        srd(a, 36, 14, 64 << 20, 0)
        a("s_lshl_b32 s19, s2, 8")
        a("s_lshl_b32 s3, s16, 5")
        a("s_add_u32 s19, s19, s3")
        a("s_add_u32 s19, s19, 0x1200000")
        a("v_mov_b32 v3, s19")
        for q in range(3):
            a(f"s_sub_u32 s62, s{62+2*q}, s60")
            a("v_mov_b32 v4, s62")
            a(f"buffer_store_dword v4, v3, s[36:39], 0 offen offset:{4*q}")
            a("s_nop 1")
    a(f"s_branch {L('end')}")

    a.label(L("attn"))
    srd(a, 28, 14, 4 << 20, WS_QK)
    srd(a, 32, 14, 2 << 20, WS_VT)
    KF, VF, QF = 16, 56, 136
    S = [144, 160, 176]
    NM, O, P, MK = 192, 208, 224, 240
    a("s_sub_u32 s16, s16, 4")
    a("s_lshl_b32 s19, s18, 2")
    a("s_add_u32 s19, s19, s16")
    a("s_lshl_b32 s48, s19, 16")
    a("s_add_u32 s49, s48, 0x200000")
    a("s_lshl_b32 s50, s17, 6")
    a("v_and_b32 v1, 31, v0")
    a("v_lshrrev_b32 v2, 5, v0")
    a("v_lshlrev_b32 v3, 4, v2")
    vm = Counter(a, "vmcnt", 60)
    a("v_add_u32 v4, s50, v1")
    a("v_lshl_add_u32 v4, v4, 5, v3")
    for t in range(2):
        vm.issue(f"buffer_load_dwordx4 {v(QF+4*t,4)}, v4, s[28:31], s48 offen offset:{1024*t} {ld}", ("q", t))
    a("v_and_b32 v5, 0x13, v1")
    a("v_bfe_u32 v6, v1, 2, 1")
    a("v_lshl_or_b32 v5, v6, 3, v5")
    a("v_bfe_u32 v6, v1, 3, 1")
    a("v_lshl_or_b32 v5, v6, 2, v5")
    a("s_sub_u32 s51, s50, 256")
    a("v_add_u32 v5, s51, v5")
    for kt in range(10):
        a(f"v_add_u32 v6, {32*kt}, v5")
        a("v_max_i32 v6, 0, v6")
        a("v_lshl_add_u32 v6, v6, 5, v3")
        vm.issue(f"buffer_load_dwordx4 {v(KF+4*kt,4)}, v6, s[28:31], s49 offen {ld}", ("k", kt))
    a("v_lshl_add_u32 v7, v1, 5, v3")
    a("s_mov_b32 exec_lo, 0xffff")
    a("s_mov_b32 exec_hi, 0xffff")
    a("s_lshl_b32 s52, s51, 5")
    a("s_add_u32 s52, s52, s48")
    for kt in range(10):
        a(f"s_add_u32 s53, s52, {1024*kt}")
        a(f"s_cmp_ge_i32 s51, {-32*kt}")
        a("s_cselect_b32 s53, s53, 0x7fff0000")
        for hh in range(2):
            vm.issue(f"buffer_load_dwordx4 {v(VF+8*kt+4*hh,4)}, v7, s[32:35], s53 offen offset:{512*hh} {ld}", ("v", kt))
    a("s_mov_b32 exec_lo, 0xffff0000")
    a("s_mov_b32 exec_hi, 0xffff0000")
    for kt in range(10):
        a(f"s_cmp_ge_i32 s51, {-32*kt}")
        a("s_cselect_b32 s53, 0x3f803f80, 0")
        for r in range(8):
            a(f"v_mov_b32 {v(VF+8*kt+r)}, s53")
    a("s_mov_b64 exec, -1")
    a("v_lshlrev_b32 v8, 3, v2")
    a("v_sub_u32 v8, v1, v8")
    MS = 68
    for r in range(16):
        a(f"v_cmp_le_i32 {s(MS+2*r,2)}, {(r&7)+16*(r>>3)}, v8")
    a("v_mov_b32 v9, 0xffff")
    a("v_mov_b32 v10, 0xffff0000")
    for p in range(8):
        a(f"v_cndmask_b32 {v(MK+p)}, 0, v9, {s(MS+4*p,2)}")
        a(f"v_cndmask_b32 v11, 0, v10, {s(MS+4*p+2,2)}")
        a(f"v_or_b32 {v(MK+p)}, {v(MK+p)}, v11")
    a("v_and_b32 v12, 15, v1")
    a("v_lshl_add_u32 v12, v2, 4, v12")
    a("v_lshlrev_b32 v12, 4, v12")
    a("v_lshrrev_b32 v13, 4, v1")
    a("v_lshl_add_u32 v12, v13, 10, v12")
    a("s_and_b32 s53, s19, 1")
    a("s_lshl_b32 s53, s53, 9")
    a("v_add_u32 v12, s53, v12")
    a("s_lshr_b32 s54, s19, 1")
    a("s_lshl_b32 s54, s54, 17")
    a("s_lshl_b32 s53, s17, 12")
    a("s_add_u32 s54, s54, s53")

    def M(dst, kt, t, c):
        vm.wait(("k", kt), ("q", t))
        a(f"v_mfma_f32_32x32x16_bf16 {v(dst,16)}, {v(KF+4*kt,4)}, {v(QF+4*t,4)}, {c}")
    for t in range(2):
        far, diag = t, t + 8
        full = list(range(t + 1, t + 8))
        MX = 14
        M(O, far, t, "0")
        M(S[0], full[0], t, "0")
        M(S[1], full[1], t, "0")
        a("s_nop 7")
        def mx(src, first=False):
            for q in range(0, 16, 4):
                if first and q == 0:
                    a(f"v_max_f32 {v(MX)}, {v(src)}, {v(src+1)}")
                    a(f"v_max_f32 {v(MX+1)}, {v(src+2)}, {v(src+3)}")
                else:
                    a(f"v_max3_f32 {v(MX)}, {v(src+q)}, {v(src+q+1)}, {v(MX)}")
                    a(f"v_max3_f32 {v(MX+1)}, {v(src+q+2)}, {v(src+q+3)}, {v(MX+1)}")
        for n in range(7):
            if n + 2 < 7:
                M(S[(n + 2) % 3], full[n + 2], t, "0")
            elif n + 2 == 7:
                M(NM, diag, t, "0")
            if n == 0:
                a("s_nop 1")
            mx(S[n % 3], first=(n == 0))
        for r in range(16):
            a(f"v_cndmask_b32 {v(O+r)}, {v(O+r)}, {v(NM+r)}, {s(MS+2*r,2)}")
        mx(O)
        a(f"v_max_f32 {v(MX)}, {v(MX)}, {v(MX+1)}")
        a(f"v_mov_b32 {v(MX+1)}, {v(MX)}")
        a("s_nop 1")
        a(f"v_permlane32_swap_b32 {v(MX)}, {v(MX+1)}")
        a("s_nop 1")
        a(f"v_max_f32 {v(MX)}, {v(MX)}, {v(MX+1)}")
        for r in range(16):
            a(f"v_sub_f32 {v(NM+r)}, 0, {v(MX)}")
        a("s_nop 1")
        M(S[0], full[0], t, v(NM, 16))
        M(S[2], far, t, v(NM, 16))
        a("s_nop 9")
        first_pv = [True]
        def PV(kt, hh, preg):
            vm.wait(("v", kt))
            c = "0" if first_pv[0] else v(O, 16)
            first_pv[0] = False
            a(f"v_mfma_f32_32x32x16_bf16 {v(O,16)}, {v(VF+8*kt+4*hh,4)}, {v(preg+4*hh,4)}, {c}")
        for n in range(8):
            cur = S[n % 2]
            nxt = S[(n + 1) % 2]
            if n + 1 < 7:
                M(nxt, full[n + 1], t, v(NM, 16))
            elif n + 1 == 7:
                M(nxt, diag, t, v(NM, 16))
            if n == 7:
                for r in range(16):
                    a(f"v_cndmask_b32 {v(cur+r)}, {v(S[2]+r)}, {v(cur+r)}, {s(MS+2*r,2)}")
            for r in range(16):
                a(f"v_exp_f32 {v(cur+r)}, {v(cur+r)}")
                if n > 0 and r == 5: PV(full[n - 1], 0, P)
                if n > 0 and r == 11: PV(full[n - 1], 1, P)
            for p in range(8):
                a(f"v_cvt_pk_bf16_f32 {v(P+p)}, {v(cur+2*p)}, {v(cur+2*p+1)}")
        for p in range(8):
            a(f"v_bfi_b32 {v(P+8+p)}, {v(MK+p)}, 0, {v(P+p)}")
            a(f"v_and_b32 {v(P+p)}, {v(MK+p)}, {v(P+p)}")
        a("s_nop 1")
        PV(diag, 0, P); PV(diag, 1, P); PV(far, 0, P + 8); PV(far, 1, P + 8)
        a("s_nop 11")
        a(f"v_rcp_f32 v14, {v(O+8)}")
        a("s_nop 0")
        for r in range(8):
            a(f"v_mul_f32 {v(O+r)}, v14, {v(O+r)}")
        for p in range(4):
            a(f"v_cvt_pk_bf16_f32 {v(248+4*t+p)}, {v(O+2*p)}, {v(O+2*p+1)}")
        vm.issue(f"buffer_store_dwordx4 {v(248+4*t,4)}, v12, s[24:27], s54 offen offset:{2048*t} sc1")
    a("s_waitcnt vmcnt(0)")
    if timing:
        a("s_memtime s[62:63]")
    a("v_mov_b32 v1, 0")
    a("v_mov_b32 v2, 1")
    a("s_mov_b64 exec, 1")
    a("ds_add_rtn_u32 v3, v1, v2")
    a("s_waitcnt lgkmcnt(0)")
    a("v_readfirstlane_b32 s19, v3")
    a("s_nop 3")
    a("s_cmp_eq_u32 s19, 3")
    a(f"s_cbranch_scc0 {L('aend')}")
    a("s_lshl_b32 s19, s17, 3")
    a("s_add_u32 s19, s19, s18")
    a("v_mov_b32 v1, s19")
    a("buffer_store_byte v2, v1, s[20:23], 0 offen sc1")
    a.label(L("aend"))
    if timing:
        srd(a, 36, 14, 64 << 20, 0)
        a("s_lshl_b32 s19, s2, 8")
        a("s_lshl_b32 s3, s16, 5")
        a("s_add_u32 s19, s19, s3")
        a("s_add_u32 s19, s19, 0x1200080")
        a("v_mov_b32 v3, s19")
        a(f"s_sub_u32 s62, s62, s60")
        a("v_mov_b32 v4, s62")
        a(f"buffer_store_dword v4, v3, s[36:39], 0 offen")
    a.label(L("end"))
    a("s_endpgm")
```

```python
import sys
from asmlib import *
import k1, k2
HEADER = open("parallel_sum__sliding_block__glu_gated_reglu__prompt.s.ref").read().split("; Override launch")[0]
def build(kernels, path):
    a = Asm()
    a.raw(HEADER.rstrip("\n"))
    for (name, body, grid, block, lds, vg, sg) in kernels:
        a.raw(f"; @launch kernel={name} grid=({grid},1,1) block=({block},1,1) lds={lds}")
    a.raw('.amdgcn_target "amdgcn-amd-amdhsa--gfx950"')
    a.raw(".text")
    for (name, body, grid, block, lds, vg, sg) in kernels:
        kernel_begin(a, name)
        body(a, name)
    a.raw('.section .rodata,"a"')
    for (name, body, grid, block, lds, vg, sg) in kernels:
        descriptor(a, name, vg, sg)
    open(path, "w").write(a.text())
if __name__ == "__main__":
    for timing, fn in ((True, "full_t.s"), (False, "full.s")):
        build([("k1_kernel", lambda a, n: k1.k1_body(a, n, timing=timing, opt=("dot",)), 256, 512, k1.K1_LDS, 256, 100),
               ("k2_kernel", lambda a, n: k2.k2_body(a, n, timing=timing), 256, 512, k2.K2_LDS, 256, 102)], fn)
```

```python
from asmlib import *

WS_QK = 0
WS_VT = 4 << 20
WS_H = 6 << 20
NSLAB_H = 43
WS_O = WS_H + NSLAB_H * 131072
WS_FLAG = 14 << 20

STG = 53248
XB = 16384
IMG = 12288
STAT = 0
SB = 4096
ST_M = STAT
ST_RS = STAT + 512
ST_CS = STAT + 1024
K1_LDS = SB + 3 * STG

ACC = 112
WF = 76
XF = 44

def bf16_round(a, r, tmp=None):
    a(f"v_cvt_pk_bf16_f32 {v(r)}, {v(r)}, {v(r)}")
    a(f"v_lshlrev_b32 {v(r)}, 16, {v(r)}")

def k1_body(a, name, st="", timing=False, opt=()):
    L = lambda x: f"{name}_{x}"
    a("s_cmp_ge_u32 s2, 256")
    a(f"s_cbranch_scc1 {L('end')}")
    a("s_load_dwordx4 s[4:7], s[0:1], 0")
    a("s_load_dwordx4 s[8:11], s[0:1], 32")
    a("s_load_dwordx2 s[12:13], s[0:1], 72")
    if timing:
        a("s_memtime s[60:61]")
    a("s_and_b32 s3, s2, 7")
    a("s_lshr_b32 s17, s2, 3")
    a("s_and_b32 s14, s3, 1")
    a("s_lshl_b32 s14, s14, 3")
    a("s_and_b32 s18, s17, 7")
    a("s_add_u32 s14, s14, s18")
    a("s_lshr_b32 s15, s3, 1")
    a("s_lshl_b32 s15, s15, 2")
    a("s_lshr_b32 s18, s17, 3")
    a("s_add_u32 s15, s15, s18")
    a("v_lshrrev_b32 v1, 6, v0")
    a("v_and_b32 v0, 63, v0")
    a("s_nop 0")
    a("v_readfirstlane_b32 s16, v1")
    a("s_waitcnt lgkmcnt(0)")
    srd(a, 20, 4, 2048 * 1024)
    srd(a, 24, 6, 512 * 3072)
    srd(a, 28, 8, 512 * 2752)
    srd(a, 32, 10, 512 * 2752)
    srd(a, 36, 12, 4 << 20, WS_QK)
    srd(a, 40, 12, 2 << 20, WS_VT)
    srd(a, 44, 12, NSLAB_H * 131072, WS_H)
    a("s_cmp_ge_u32 s16, 4")
    a(f"s_cbranch_scc1 {L('loader')}")

    a("s_and_b32 s17, s16, 1")
    a("s_lshr_b32 s18, s16, 1")
    a("v_and_b32 v1, 15, v0")
    a("v_lshrrev_b32 v2, 4, v0")
    a("v_lshrrev_b32 v3, 1, v1")
    a("v_xor_b32 v3, v3, v2")
    a("v_lshlrev_b32 v3, 4, v3")
    a("s_lshl_b32 s19, s17, 13")
    a("v_lshl_add_u32 v3, v1, 7, v3")
    a(f"s_add_u32 s19, s19, {SB}")
    a("v_add_u32 v10, s19, v3")
    a("v_xor_b32 v11, 64, v10")
    a("v_bfe_u32 v4, v0, 2, 2")
    a("v_lshl_add_u32 v4, v2, 3, v4")
    a("v_mul_u32_u24 v4, 192, v4")
    a("v_and_b32 v5, 3, v0")
    a("v_lshl_add_u32 v4, v5, 3, v4")
    a(f"v_add_u32 v4, {SB+XB}, v4")
    a("v_and_b32 v5, 1, v2")
    a("v_lshlrev_b32 v5, 5, v5")
    a("s_lshl_b32 s19, s18, 7")
    a("v_add3_u32 v12, v4, v5, s19")
    a("v_xor_b32 v6, 32, v5")
    a("v_add3_u32 v13, v4, v6, s19")
    a("s_lshl_b32 s19, s18, 5")
    a("v_xor_b32 v6, s19, v5")
    a("v_add_u32 v6, 64, v6")
    a("v_add_u32 v14, v4, v6")
    for b in (1, 2):
        for i in range(5):
            a(f"v_add_u32 {v(10+5*b+i)}, {STG*b}, {v(10+i)}")
    for i in range(144):
        a(f"v_mov_b32 {v(ACC+i)}, 0")

    def rd_x(buf, ks, xb):
        out = []
        for i in range(4):
            out.append(f"ds_read_b128 {v(XF+16*xb+4*i,4)}, {v(10+5*buf+ks)} offset:{i*2048}")
        return out
    def rd_w(buf, ks, j):
        img, p = j // 3, j % 3
        addr = 10 + 5 * buf + 2 + p
        return [f"ds_read_b64_tr_b16 {v(WF+4*j+2*hf,2)}, {v(addr)} offset:{img*IMG + ks*6144 + hf*768}" for hf in range(2)]
    def mfma(j, i, xb):
        acc = v(ACC + 4 * (4 * j + i), 4)
        w = v(WF + 4 * j, 4); x = v(XF + 16 * xb + 4 * i, 4)
        if j == 2:
            return f"v_mfma_f32_16x16x32_bf16 {acc}, {x}, {w}, {acc}"
        return f"v_mfma_f32_16x16x32_bf16 {acc}, {w}, {x}, {acc}"

    lg = Counter(a, "lgkmcnt", 12)
    def issue_x(step, lo, hi):
        buf, ks = (step // 2) % 3, step % 2
        for i, l in enumerate(rd_x(buf, ks, step % 2)):
            if "nords" in opt and step > 0: l = "s_nop 0"
            if lo <= i < hi: lg.issue(l, ("x", step, i))
    def issue_w(step, j):
        buf, ks = (step // 2) % 3, step % 2
        for l in rd_w(buf, ks, j):
            if "nords" in opt and step > 0: l = "s_nop 0"
            lg.issue(l, ("w", step, j))
    TS = [0]
    def ts():
        if timing:
            a(f"s_memtime s[{70+2*TS[0]}:{71+2*TS[0]}]")
            a("s_waitcnt lgkmcnt(0)")
            lg.done = lg.n
            TS[0] += 1
    ts()
    a("s_barrier")
    ts()
    issue_x(0, 0, 4)
    for j in range(9):
        if j == 5: lg.wait(("w", 0, 0))
        issue_w(0, j)
    for step in range(16):
        sidx, ks = step // 2, step % 2
        xb = step % 2
        nstep = step + 1
        has_next = nstep < 16
        for j in range(9):
            lg.wait(("w", step, j), ("x", step, 3))
            for i in range(4):
                if "nomfma" not in opt: a(mfma(j, i, xb))
            if ks == 1 and j == 0:
                continue
            if ks == 1 and j == 1:
                lg.wait_all()
                a("s_barrier")
                ts()
                if has_next:
                    issue_w(nstep, 0)
            if has_next:
                if j in (2, 3):
                    issue_x(nstep, 2*(j-2), 2*(j-2)+2)
                issue_w(nstep, j)
    a("s_barrier")
    if timing:
        a("s_memtime s[62:63]")
    a("s_lshl_b32 s19, s17, 8")
    a("v_lshl_add_u32 v3, v1, 2, s19")
    for i in range(4):
        a(f"ds_read_b32 {v(44+i)}, v3 offset:{ST_M + 64*i}")
        a(f"ds_read_b32 {v(48+i)}, v3 offset:{ST_RS + 64*i}")
    a("s_lshl_b32 s19, s18, 8")
    a("v_lshl_add_u32 v4, v2, 4, s19")
    a("s_lshl_b32 s19, s18, 6")
    a("v_lshl_add_u32 v5, v2, 4, s19")
    a("v_lshl_add_u32 v6, v1, 2, s19")
    for j in range(9):
        img, p = j // 3, j % 3
        if j == 2:
            a(f"ds_read_b32 {v(WF+4*j)}, v6 offset:{ST_CS + 128}")
        elif p < 2:
            a(f"ds_read_b128 {v(WF+4*j,4)}, v4 offset:{ST_CS + img*384 + p*64}")
        else:
            a(f"ds_read_b128 {v(WF+4*j,4)}, v5 offset:{ST_CS + img*384 + 128}")
    a("s_lshl_b32 s19, s17, 8")
    a("v_lshl_add_u32 v7, v2, 4, s19")
    a("s_cmp_lt_u32 s15, 8")
    a("s_cselect_b32 s50, 0x3eb8aa3b, 1.0")
    a("s_lshl_b32 s51, s15, 2")
    a("s_lshl_b32 s19, s18, 1")
    a("s_add_u32 s51, s51, s19")
    a("s_lshl_b32 s51, s51, 16")
    a("s_lshl_b32 s19, s14, 12")
    a("s_add_u32 s51, s51, s19")
    a("s_lshl_b32 s52, s17, 11")
    a("s_add_u32 s51, s51, s52")
    a("s_add_u32 s52, s52, s19")
    a("s_lshl_b32 s19, s15, 1")
    a("s_add_u32 s19, s19, s18")
    a("s_lshl_b32 s19, s19, 16")
    a("s_add_u32 s52, s52, s19")
    a("v_lshlrev_b32 v8, 5, v1")
    a("v_lshl_add_u32 v8, v2, 3, v8")
    a("s_add_u32 s53, s51, 0x10000")
    a("s_mul_i32 s54, s15, 3")
    a("s_lshl_b32 s19, s18, 1")
    a("s_add_u32 s55, s54, s19")
    a("s_add_u32 s54, s54, 1")
    a("s_lshl_b32 s55, s55, 17")
    a("s_lshl_b32 s54, s54, 17")
    a("s_lshl_b32 s19, s14, 13")
    a("s_add_u32 s55, s55, s19")
    a("s_add_u32 s54, s54, s19")
    a("s_lshl_b32 s19, s17, 12")
    a("s_add_u32 s55, s55, s19")
    a("s_add_u32 s54, s54, s19")
    a("s_lshl_b32 s19, s18, 3")
    a("s_add_u32 s54, s54, s19")
    a("v_lshlrev_b32 v9, 4, v0")
    a("s_waitcnt lgkmcnt(0)")
    for i in range(4):
        a(f"ds_read_b128 {v(10+8*i,4)}, v7 offset:{ST_M + 64*i}")
        a(f"ds_read_b128 {v(14+8*i,4)}, v7 offset:{ST_RS + 64*i}")
    for i in range(4):
        a(f"v_mul_f32 {v(52+i)}, s50, {v(48+i)}")
        a(f"v_mul_f32 {v(56+i)}, {v(48+i)}, {v(48+i)}")
    A = lambda j, i, r: ACC + 4 * (4 * j + i) + r
    T = 60
    for j in (0, 1):
        for i in range(4):
            for r in range(4):
                a(f"v_fma_f32 {v(A(j,i,r))}, {v(44+i)}, {v(WF+4*j+r)}, {v(A(j,i,r))}")
            for r in range(4):
                a(f"v_mul_f32 {v(A(j,i,r))}, {v(52+i)}, {v(A(j,i,r))}")
            a(f"v_cvt_pk_bf16_f32 {v(A(j,i,0))}, {v(A(j,i,0))}, {v(A(j,i,1))}")
            a(f"v_cvt_pk_bf16_f32 {v(A(j,i,1))}, {v(A(j,i,2))}, {v(A(j,i,3))}")
            a(f"buffer_store_dwordx2 {v(A(j,i,0),2)}, v8, s[36:39], {s(51 if j==0 else 53)} offen offset:{512*i} {st}")
    for i in range(4):
        for p in range(3):
            for r in range(4):
                a(f"v_fma_f32 {v(A(3+p,i,r))}, {v(44+i)}, {v(WF+4*(3+p)+r)}, {v(A(3+p,i,r))}")
                a(f"v_fma_f32 {v(A(6+p,i,r))}, {v(44+i)}, {v(WF+4*(6+p)+r)}, {v(A(6+p,i,r))}")
            for r in range(4):
                a(f"v_max_f32 {v(A(3+p,i,r))}, 0, {v(A(3+p,i,r))}")
                a(f"v_mul_f32 {v(A(6+p,i,r))}, {v(56+i)}, {v(A(6+p,i,r))}")
            for r in range(4):
                a(f"v_mul_f32 {v(A(3+p,i,r))}, {v(A(3+p,i,r))}, {v(A(6+p,i,r))}")
        d = A(6, i, 0)
        a(f"v_cvt_pk_bf16_f32 {v(d+0)}, {v(A(3,i,0))}, {v(A(3,i,1))}")
        a(f"v_cvt_pk_bf16_f32 {v(d+1)}, {v(A(3,i,2))}, {v(A(3,i,3))}")
        a(f"v_cvt_pk_bf16_f32 {v(d+2)}, {v(A(4,i,0))}, {v(A(4,i,1))}")
        a(f"v_cvt_pk_bf16_f32 {v(d+3)}, {v(A(4,i,2))}, {v(A(4,i,3))}")
        a(f"buffer_store_dwordx4 {v(d,4)}, v9, s[44:47], s55 offen offset:{1024*i} {st}")
        d = A(7, i, 0)
        a(f"v_cvt_pk_bf16_f32 {v(d+0)}, {v(A(5,i,0))}, {v(A(5,i,1))}")
        a(f"v_cvt_pk_bf16_f32 {v(d+1)}, {v(A(5,i,2))}, {v(A(5,i,3))}")
        a(f"buffer_store_dwordx2 {v(d,2)}, v9, s[44:47], s54 offen offset:{1024*i} {st}")
    a("s_waitcnt lgkmcnt(0)")
    for i in range(4):
        for r in range(4):
            a(f"v_fma_f32 {v(A(2,i,r))}, {v(10+8*i+r)}, {v(WF+8)}, {v(A(2,i,r))}")
        for r in range(4):
            a(f"v_mul_f32 {v(A(2,i,r))}, {v(14+8*i+r)}, {v(A(2,i,r))}")
        a(f"v_cvt_pk_bf16_f32 {v(A(2,i,0))}, {v(A(2,i,0))}, {v(A(2,i,1))}")
        a(f"v_cvt_pk_bf16_f32 {v(A(2,i,1))}, {v(A(2,i,2))}, {v(A(2,i,3))}")
        a(f"buffer_store_dwordx2 {v(A(2,i,0),2)}, v8, s[40:43], s52 offen offset:{512*i} {st}")
    if timing:
        a("s_waitcnt vmcnt(0)")
        a("s_memtime s[64:65]")
        a("s_waitcnt lgkmcnt(0)")
        a("s_sub_u32 s62, s62, s60")
        a("s_sub_u32 s64, s64, s60")
        a("v_mov_b32 v4, s62")
        a("v_mov_b32 v5, s64")
        a("s_lshl_b32 s19, s2, 5")
        a("s_lshl_b32 s3, s16, 3")
        a("s_add_u32 s19, s19, s3")
        a("s_add_u32 s19, s19, 0x1000000")
        a("v_mov_b32 v3, s19")
        srd(a, 36, 12, 32 << 20, 0)
        a("buffer_store_dwordx2 v[4:5], v3, s[36:39], 0 offen")
        a("s_lshl_b32 s19, s2, 8")
        a("s_lshl_b32 s3, s16, 6")
        a("s_add_u32 s19, s19, s3")
        a("s_add_u32 s19, s19, 0x1100000")
        a("v_mov_b32 v3, s19")
        for q in range(TS[0]):
            a(f"s_sub_u32 s62, s{70+2*q}, s60")
            a("v_mov_b32 v4, s62")
            a(f"buffer_store_dword v4, v3, s[36:39], 0 offen offset:{4*q}")
            a("s_nop 1")
    a(f"s_branch {L('end')}")

    a.label(L("loader"))
    a("s_sub_u32 s16, s16, 4")
    srd(a, 36, 12, 32768, WS_FLAG)
    a("s_lshl_b32 s17, s2, 7")
    a("v_mov_b32 v1, s17")
    a("v_mov_b32 v2, 0")
    a("buffer_store_dword v2, v1, s[36:39], 0 offen")
    a("v_lshrrev_b32 v1, 3, v0")
    a("v_and_b32 v2, 7, v0")
    a("s_lshl_b32 s17, s14, 7")
    a("s_lshl_b32 s18, s16, 5")
    a("s_add_u32 s17, s17, s18")
    for i in range(4):
        a(f"v_add_u32 v3, {8*i}, v1")
        a("v_lshrrev_b32 v4, 1, v3")
        a("v_and_b32 v4, 7, v4")
        a("v_xor_b32 v4, v4, v2")
        a("v_add_u32 v3, s17, v3")
        a("v_lshlrev_b32 v3, 10, v3")
        a(f"v_lshl_add_u32 {v(10+i)}, v4, 4, v3")
    a("s_lshl_b32 s17, s16, 4")
    a("s_mul_i32 s18, s15, 192")
    a("s_lshl_b32 s19, s15, 7")
    a("s_lshl_b32 s48, s15, 6")
    a("s_add_u32 s48, s48, 2048")
    a("s_movk_i32 s49, 2752")
    a("s_movk_i32 s50, 3072")
    for b in range(3):
        a(f"v_add_u32 v3, {64*b}, v0")
        a("v_mul_u32_u24 v4, 171, v3")
        a("v_lshrrev_b32 v4, 11, v4")
        a("v_mul_u32_u24 v5, 12, v4")
        a("v_sub_u32 v5, v3, v5")
        a("v_lshrrev_b32 v6, 3, v4")
        a("v_lshlrev_b32 v6, 1, v6")
        a("v_xor_b32 v5, v5, v6")
        a("v_add_u32 v4, s17, v4")
        a("v_mul_lo_u32 v6, v4, s49")
        a("v_lshl_add_u32 v6, v5, 4, v6")
        a(f"v_add_u32 {v(17+b)}, s18, v6")
        a("v_mul_lo_u32 v6, v4, s50")
        a("v_subrev_u32 v7, 4, v5")
        a("v_cmp_gt_u32 vcc, 4, v5")
        a("s_nop 1")
        a("v_cndmask_b32 v7, v7, v5, vcc")
        a("v_lshl_add_u32 v6, v7, 4, v6")
        a("v_lshrrev_b32 v7, 2, v5")
        a("v_cmp_eq_u32 vcc, 1, v7")
        a("v_mov_b32 v8, s19")
        a("v_mov_b32 v9, s48")
        a("v_cndmask_b32 v8, v8, v9, vcc")
        a(f"v_add_u32 {v(14+b)}, v6, v8")
    a("s_lshl_b32 s51, s16, 12")
    a(f"s_add_u32 s51, s51, {SB}")
    a("s_mul_i32 s52, s16, 3072")
    a(f"s_add_u32 s52, s52, {SB+XB}")

    def dma(stage):
        buf = stage % 3
        a(f"s_movk_i32 s53, {stage*128}")
        a(f"s_mov_b32 s54, {stage*64*3072}")
        a(f"s_mov_b32 s55, {stage*64*2752}")
        for i in range(4):
            a(f"s_add_u32 m0, s51, {buf*STG + i*1024}")
            a("s_nop 0")
            a(f"buffer_load_dwordx4 {v(10+i)}, s[20:23], s53 offen lds")
        for img in range(3):
            for b in range(3):
                a(f"s_add_u32 m0, s52, {buf*STG + img*IMG + b*1024}")
                a("s_nop 0")
                if img == 0:
                    a(f"buffer_load_dwordx4 {v(14+b)}, s[24:27], s54 offen lds")
                else:
                    a(f"buffer_load_dwordx4 {v(17+b)}, {s(24+4*img,4)}, s55 offen lds")
    for stg in range(2):
        dma(stg)
    a("v_lshl_add_u32 v20, v0, 4, s51")
    a("v_lshrrev_b32 v2, 4, v0")
    a("v_bfe_u32 v4, v0, 2, 2")
    a("v_lshl_add_u32 v4, v2, 3, v4")
    a("v_mul_u32_u24 v4, 192, v4")
    a("v_and_b32 v5, 3, v0")
    a("v_lshl_add_u32 v4, v5, 3, v4")
    a(f"v_add_u32 v4, {SB+XB}, v4")
    a("v_and_b32 v5, 1, v2")
    a("v_lshlrev_b32 v5, 5, v5")
    for i in range(5):
        if i < 4:
            a(f"s_add_u32 s56, s16, {4*i}")
        else:
            a("s_and_b32 s56, s16, 1")
            a("s_add_u32 s56, s56, 16")
        a(f"s_mov_b32 {s(64+i)}, s56")
        a("s_mul_i32 s57, s56, 43")
        a("s_lshr_b32 s57, s57, 8")
        a("s_mul_i32 s58, s57, 6")
        a("s_sub_u32 s58, s56, s58")
        a("s_lshl_b32 s58, s58, 5")
        a(f"s_mul_i32 s57, s57, {IMG}")
        a("v_xor_b32 v6, s58, v5")
        a(f"v_add3_u32 {v(21+i)}, v4, v6, s57")
    for r in range(30, 43):
        a(f"v_mov_b32 {v(r)}, 0")
    a("s_mov_b32 s59, 0x3f803f80")
    XD = 48
    WD = 64
    def stats(stage):
        buf = stage % 3
        base = buf * STG
        a(f"v_add_u32 v26, {base}, v20")
        for i in range(4):
            a(f"ds_read_b128 {v(XD+4*i,4)}, v26 offset:{i*1024}")
        for i in range(5):
            a(f"v_add_u32 v27, {base}, {v(21+i)}")
            for q in range(4):
                a(f"ds_read_b64_tr_b16 {v(WD+8*i+2*q,2)}, v27 offset:{(q>>1)*6144 + (q&1)*768}")
            if i == 1 and "noxs" not in opt:
                a("s_waitcnt lgkmcnt(8)")
                for k in range(4):
                    for r in range(4):
                        d = XD+4*k+r
                        if "dot" in opt:
                            a(f"v_dot2c_f32_bf16 {v(30+k)}, s59, {v(d)}")
                            a(f"v_dot2c_f32_bf16 {v(34+k)}, {v(d)}, {v(d)}")
                        else:
                            a(f"v_lshlrev_b32 v28, 16, {v(d)}")
                            a(f"v_and_b32 v29, 0xffff0000, {v(d)}")
                            a(f"v_add_f32 {v(30+k)}, {v(30+k)}, v28")
                            a(f"v_fmac_f32 {v(34+k)}, v28, v28")
                            a(f"v_add_f32 {v(30+k)}, {v(30+k)}, v29")
                            a(f"v_fmac_f32 {v(34+k)}, v29, v29")
        for i in range(5):
            a(f"s_waitcnt lgkmcnt({min(12,4*(4-i))})")
            if "nocs" in opt: continue
            for r in range(8):
                d = WD+8*i+r
                if "dot" in opt:
                    a(f"v_dot2c_f32_bf16 {v(38+i)}, s59, {v(d)}")
                else:
                    a(f"v_lshlrev_b32 v28, 16, {v(d)}")
                    a(f"v_and_b32 v29, 0xffff0000, {v(d)}")
                    a(f"v_add_f32 {v(38+i)}, {v(38+i)}, v28")
                    a(f"v_add_f32 {v(38+i)}, {v(38+i)}, v29")
    a("s_waitcnt vmcnt(13)")
    a("s_barrier")
    for sidx in range(8):
        if sidx + 2 < 8 and ("nodma" not in opt or sidx == 0):
            dma(sidx + 2)
        if "nostats" not in opt: stats(sidx)
        if sidx + 1 < 8:
            a(f"s_waitcnt vmcnt({13 if sidx + 2 < 8 else 0})")
        a("s_barrier")
    a("s_nop 4")
    for k in range(8):
        r = 30 + k
        a(f"v_add_f32_dpp {v(r)}, {v(r)}, {v(r)} quad_perm:[1,0,3,2] row_mask:0xf bank_mask:0xf")
    a("s_nop 1")
    for k in range(8):
        r = 30 + k
        a(f"v_add_f32_dpp {v(r)}, {v(r)}, {v(r)} quad_perm:[2,3,0,1] row_mask:0xf bank_mask:0xf")
    a("s_nop 1")
    for k in range(8):
        r = 30 + k
        a(f"v_add_f32_dpp {v(r)}, {v(r)}, {v(r)} row_half_mirror row_mask:0xf bank_mask:0xf")
    a("s_mov_b32 s56, 0x3b000000")
    a("s_mov_b32 s57, 0x3727c5ac")
    a("v_lshrrev_b32 v1, 3, v0")
    a("s_lshl_b32 s58, s16, 7")
    a("v_lshl_add_u32 v1, v1, 2, s58")
    for k in range(4):
        m, q = 30 + k, 34 + k
        a(f"v_mul_f32 {v(m)}, s56, {v(m)}")
        a(f"v_mul_f32 {v(q)}, s56, {v(q)}")
        a(f"v_fma_f32 {v(q)}, -{v(m)}, {v(m)}, {v(q)}")
        a(f"v_max_f32 {v(q)}, 0, {v(q)}")
        bf16_round(a, q)
        a(f"v_add_f32 {v(q)}, s57, {v(q)}")
        bf16_round(a, q)
        a(f"v_sqrt_f32 {v(q)}, {v(q)}")
        a("s_nop 0")
        bf16_round(a, q)
        a(f"v_rcp_f32 {v(q)}, {v(q)}")
        bf16_round(a, m)
        a(f"v_xor_b32 {v(m)}, 0x80000000, {v(m)}")
        a(f"ds_write_b32 v1, {v(m)} offset:{ST_M + 32*k}")
        a(f"ds_write_b32 v1, {v(q)} offset:{ST_RS + 32*k}")
    a("v_and_b32 v2, 15, v0")
    a("v_lshlrev_b32 v2, 2, v2")
    for i in range(5):
        r = 38 + i
        a(f"v_mov_b32 v3, {v(r)}")
        a("s_nop 1")
        a(f"v_permlane32_swap_b32 {v(r)}, v3")
        a("s_nop 1")
        a(f"v_add_f32 {v(r)}, {v(r)}, v3")
        a(f"v_mov_b32 v3, {v(r)}")
        a("s_nop 1")
        a(f"v_permlane16_swap_b32 {v(r)}, v3")
        a("s_nop 1")
        a(f"v_add_f32 {v(r)}, {v(r)}, v3")
        a(f"s_lshl_b32 s58, {s(64+i)}, 6")
        a("v_add_u32 v4, s58, v2")
        a(f"ds_write_b32 v4, {v(r)} offset:{ST_CS}")
    a("s_waitcnt lgkmcnt(0)")
    a("s_barrier")
    a.label(L("end"))
    a("s_endpgm")
```

```python
from asmlib import *
from k1 import WS_QK, WS_VT, WS_H, WS_O, NSLAB_H, WS_FLAG

D = 4
RING = (D + 1) * 4096
SLEEP = 4
LB = 256
K2_LDS = LB + 4 * RING

def k2_body(a, name, ld="", timing=False, opt=()):
    L = lambda x: f"{name}_{x}"
    a("s_cmp_ge_u32 s2, 256")
    a(f"s_cbranch_scc1 {L('end')}")
    a("s_load_dwordx2 s[4:5], s[0:1], 0")
    a("s_load_dwordx2 s[6:7], s[0:1], 16")
    a("s_load_dwordx4 s[8:11], s[0:1], 48")
    a("s_load_dwordx4 s[12:15], s[0:1], 64")
    if timing:
        a("s_memtime s[60:61]")
    a("s_and_b32 s3, s2, 7")
    a("s_lshr_b32 s19, s2, 3")
    a("s_lshl_b32 s17, s3, 2")
    a("s_and_b32 s18, s19, 3")
    a("s_add_u32 s17, s17, s18")
    a("s_lshr_b32 s18, s19, 2")
    a("v_lshrrev_b32 v1, 6, v0")
    a("v_and_b32 v0, 63, v0")
    a("v_mov_b32 v2, 0")
    a("v_readfirstlane_b32 s16, v1")
    a("ds_write_b32 v2, v2")
    a("s_waitcnt lgkmcnt(0)")
    srd(a, 20, 14, 32768, WS_FLAG)
    srd(a, 24, 14, 16 * 131072, WS_O)
    a("s_cmp_ge_u32 s16, 4")
    a(f"s_cbranch_scc1 {L('attn')}")

    srd(a, 28, 14, NSLAB_H * 131072, WS_H)
    srd(a, 32, 8, 1376 * 1024)
    srd(a, 36, 6, 512 * 1024)
    srd(a, 40, 4, 2048 * 1024)
    srd(a, 44, 10, 2048 * 1024)
    ACC = 192
    BF = 128
    WF = 96
    XR = 88
    a("s_lshl_b32 s19, s17, 12")
    a("v_lshl_add_u32 v1, v0, 4, s19")
    a("v_lshrrev_b32 v3, 3, v0")
    a("v_and_b32 v4, 7, v0")
    a("v_and_b32 v5, 6, v3")
    a("v_xor_b32 v4, v4, v5")
    a("v_lshlrev_b32 v4, 4, v4")
    a("v_lshl_add_u32 v4, v3, 10, v4")
    a("s_lshl_b32 s19, s18, 7")
    a("v_add_u32 v2, s19, v4")
    a(f"s_mul_i32 s48, s16, {RING}")
    a(f"s_add_u32 s48, s48, {LB}")
    a("s_lshl_b32 s49, s16, 15")
    a("s_lshl_b32 s50, s16, 17")
    vm = Counter(a, "vmcnt", 60)
    lg = Counter(a, "lgkmcnt", 12)
    NH = 11; NO = 4; NT = NH + NO
    def dma_w(k):
        slot = k % (D + 1)
        for q in range(4):
            a(f"s_add_u32 m0, s48, {slot*4096 + q*1024}")
            if k < NH:
                a(f"s_add_u32 s51, s49, {k*4*32768 + q*8192}")
                vm.issue(f"buffer_load_dwordx4 v2, s[32:35], s51 offen lds", ("w", k))
            else:
                a(f"s_add_u32 s51, s49, {(k-NH)*4*32768 + (16*(q&1) + 8*(q>>1))*1024}")
                vm.issue(f"buffer_load_dwordx4 v2, s[36:39], s51 offen lds", ("w", k))
    def load_b(k):
        if k < NH:
            a(f"s_add_u32 s52, s50, {k*4*131072}")
            for i in range(4):
                vm.issue(f"buffer_load_dwordx4 {v(BF+16*(k%D)+4*i,4)}, v1, s[28:31], s52 offen offset:{1024*i} {ld}", ("b", k))
        else:
            a(f"s_add_u32 s52, s50, {(k-NH)*4*131072}")
            for i in range(4):
                vm.issue(f"buffer_load_dwordx4 {v(BF+16*(k%D)+4*i,4)}, v1, s[24:27], s52 offen offset:{1024*i} sc1", ("b", k))
    a("s_barrier")
    for k in range(D):
        dma_w(k); load_b(k)
    a("v_lshrrev_b32 v3, 4, v0")
    a("v_bfe_u32 v4, v0, 2, 2")
    a("v_lshl_add_u32 v5, v3, 2, v4")
    a("v_bfe_u32 v6, v5, 1, 2")
    a("v_and_b32 v7, 3, v0")
    a("v_lshlrev_b32 v7, 3, v7")
    a("v_lshl_add_u32 v7, v5, 7, v7")
    a("v_add_u32 v7, s48, v7")
    for u in range(4):
        a(f"v_xor_b32 v8, {u}, v6")
        a(f"v_lshl_add_u32 {v(10+u)}, v8, 5, v7")
    for i in range(64):
        a(f"v_mov_b32 {v(ACC+i)}, 0")
    a("v_and_b32 v8, 15, v0")
    a("v_lshlrev_b32 v9, 10, v8")
    a("v_lshl_add_u32 v9, v3, 4, v9")
    a("s_lshl_b32 s19, s17, 16")
    a("s_lshl_b32 s53, s16, 14")
    a("s_add_u32 s19, s19, s53")
    a("s_lshl_b32 s53, s18, 7")
    a("s_add_u32 s19, s19, s53")
    a("v_add_u32 v9, s19, v9")
    def rd_w(k):
        slot = k % (D + 1)
        for u in range(4):
            for hf in range(2):
                lg.issue(f"ds_read_b64_tr_b16 {v(WF+16*(k%2)+4*u+2*hf,2)}, {v(10+u)} offset:{slot*4096 + hf*2048}", ("w", k, u))
    def mm(k):
        for u in range(4):
            lg.wait(("w", k, u))
            for i in range(4):
                acc = v(ACC + 4 * (4 * u + i), 4)
                a(f"v_mfma_f32_16x16x32_bf16 {acc}, {v(WF+16*(k%2)+4*u,4)}, {v(BF+16*(k%D)+4*i,4)}, {acc}")
    for k in range(NH):
        vm.wait(("w", k), ("b", k))
        rd_w(k)
        mm(k)
        nk = k + D
        if nk < NT:
            dma_w(nk)
        if nk < NH:
            load_b(nk)
    vm.issue(f"buffer_load_dwordx4 {v(XR,4)}, v9, s[40:43], 0 offen", "x")
    vm.issue(f"buffer_load_dwordx4 {v(XR+4,4)}, v9, s[40:43], 0 offen offset:64", "x")
    if timing:
        a("s_memtime s[62:63]")
    a("s_cmp_lg_u32 s16, 0")
    a(f"s_cbranch_scc1 {L('go')}")
    a("s_lshl_b32 s19, s17, 10")
    a("v_and_b32 v14, 7, v0")
    a("v_lshl_add_u32 v14, v14, 7, s19")
    a.label(L("poll"))
    a("buffer_load_dword v16, v14, s[20:23], 0 offen sc1")
    a("s_waitcnt vmcnt(0)")
    a("v_cmp_eq_u32 vcc, 1, v16")
    a("s_nop 3")
    a("s_cmp_eq_u64 vcc, -1")
    a(f"s_cbranch_scc1 {L('go')}")
    a(f"s_sleep {SLEEP}")
    a(f"s_branch {L('poll')}")
    a.label(L("go"))
    a("s_waitcnt vmcnt(0)")
    a("s_barrier")
    vm.done = vm.n
    if timing:
        a("s_memtime s[64:65]")
        a("s_waitcnt lgkmcnt(0)")
    for k in range(NH, NT):
        load_b(k)
    for k in range(NH, NT):
        rd_w(k)
        vm.wait(("b", k))
        mm(k)
    a("v_lshl_add_u32 v14, v0, 4, s48")
    a("s_nop 7")
    for t in range(16):
        a(f"ds_write_b128 v14, {v(ACC+4*t,4)} offset:{t*1024}")
    a("s_waitcnt lgkmcnt(0)")
    a("s_barrier")
    a("v_lshrrev_b32 v4, 1, v3")
    a("v_lshlrev_b32 v4, 12, v4")
    a("v_and_b32 v5, 1, v3")
    a("v_lshl_add_u32 v4, v5, 9, v4")
    a("v_lshl_add_u32 v4, v8, 4, v4")
    a("s_lshl_b32 s19, s16, 10")
    a(f"s_add_u32 s19, s19, {LB}")
    a("v_add_u32 v4, s19, v4")
    a(f"v_add_u32 v5, {2*RING}, v4")
    for pw in range(4):
        base = v(4) if pw < 2 else v(5)
        off = (pw % 2) * RING
        for h2 in range(2):
            for e in range(2):
                a(f"ds_read_b128 {v(128+16*pw+8*h2+4*e,4)}, {base} offset:{off + h2*8192 + e*256}")
    for d in range(8):
        a(f"v_lshlrev_b32 {v(96+2*d)}, 16, {v(XR+d)}")
        a(f"v_and_b32 {v(97+2*d)}, 0xffff0000, {v(XR+d)}")
    for pw in range(4):
        a(f"s_waitcnt lgkmcnt({12-4*pw})")
        for e in range(16):
            a(f"v_add_f32 {v(96+e)}, {v(96+e)}, {v(128+16*pw+e)}")
    for d in range(8):
        a(f"v_cvt_pk_bf16_f32 {v(112+d)}, {v(96+2*d)}, {v(97+2*d)}")
    a(f"buffer_store_dwordx4 v[112:115], v9, s[44:47], 0 offen")
    a(f"buffer_store_dwordx4 v[116:119], v9, s[44:47], 0 offen offset:64")
    if timing:
        a("s_waitcnt vmcnt(0)")
        a("s_memtime s[66:67]")
        a("s_waitcnt lgkmcnt(0)")
        srd(a, 36, 14, 64 << 20, 0)
        a("s_lshl_b32 s19, s2, 8")
        a("s_lshl_b32 s3, s16, 5")
        a("s_add_u32 s19, s19, s3")
        a("s_add_u32 s19, s19, 0x1200000")
        a("v_mov_b32 v3, s19")
        for q in range(3):
            a(f"s_sub_u32 s62, s{62+2*q}, s60")
            a("v_mov_b32 v4, s62")
            a(f"buffer_store_dword v4, v3, s[36:39], 0 offen offset:{4*q}")
            a("s_nop 1")
    a(f"s_branch {L('end')}")

    a.label(L("attn"))
    srd(a, 28, 14, 4 << 20, WS_QK)
    srd(a, 32, 14, 2 << 20, WS_VT)
    KF, VF, QF = 16, 56, 136
    S = [144, 160, 176]
    NM, O, P, MK = 192, 208, 224, 240
    a("s_sub_u32 s16, s16, 4")
    a("s_lshl_b32 s19, s18, 2")
    a("s_add_u32 s19, s19, s16")
    a("s_lshl_b32 s48, s19, 16")
    a("s_add_u32 s49, s48, 0x200000")
    a("s_lshl_b32 s50, s17, 6")
    a("v_and_b32 v1, 31, v0")
    a("v_lshrrev_b32 v2, 5, v0")
    a("v_lshlrev_b32 v3, 4, v2")
    vm = Counter(a, "vmcnt", 60)
    a("v_add_u32 v4, s50, v1")
    a("v_lshl_add_u32 v4, v4, 5, v3")
    for t in range(2):
        vm.issue(f"buffer_load_dwordx4 {v(QF+4*t,4)}, v4, s[28:31], s48 offen offset:{1024*t} {ld}", ("q", t))
    a("v_and_b32 v5, 0x13, v1")
    a("v_bfe_u32 v6, v1, 2, 1")
    a("v_lshl_or_b32 v5, v6, 3, v5")
    a("v_bfe_u32 v6, v1, 3, 1")
    a("v_lshl_or_b32 v5, v6, 2, v5")
    a("s_sub_u32 s51, s50, 256")
    a("v_add_u32 v5, s51, v5")
    for kt in range(10):
        a(f"v_add_u32 v6, {32*kt}, v5")
        a("v_max_i32 v6, 0, v6")
        a("v_lshl_add_u32 v6, v6, 5, v3")
        vm.issue(f"buffer_load_dwordx4 {v(KF+4*kt,4)}, v6, s[28:31], s49 offen {ld}", ("k", kt))
    a("v_lshl_add_u32 v7, v1, 5, v3")
    a("s_mov_b32 exec_lo, 0xffff")
    a("s_mov_b32 exec_hi, 0xffff")
    a("s_lshl_b32 s52, s51, 5")
    a("s_add_u32 s52, s52, s48")
    for kt in range(10):
        a(f"s_add_u32 s53, s52, {1024*kt}")
        a(f"s_cmp_ge_i32 s51, {-32*kt}")
        a("s_cselect_b32 s53, s53, 0x7fff0000")
        for hh in range(2):
            vm.issue(f"buffer_load_dwordx4 {v(VF+8*kt+4*hh,4)}, v7, s[32:35], s53 offen offset:{512*hh} {ld}", ("v", kt))
    a("s_barrier")
    a("s_mov_b32 exec_lo, 0xffff0000")
    a("s_mov_b32 exec_hi, 0xffff0000")
    for kt in range(10):
        a(f"s_cmp_ge_i32 s51, {-32*kt}")
        a("s_cselect_b32 s53, 0x3f803f80, 0")
        for r in range(8):
            a(f"v_mov_b32 {v(VF+8*kt+r)}, s53")
    a("s_mov_b64 exec, -1")
    a("v_lshlrev_b32 v8, 3, v2")
    a("v_sub_u32 v8, v1, v8")
    MS = 68
    for r in range(16):
        a(f"v_cmp_le_i32 {s(MS+2*r,2)}, {(r&7)+16*(r>>3)}, v8")
    a("v_mov_b32 v9, 0xffff")
    a("v_mov_b32 v10, 0xffff0000")
    for p in range(8):
        a(f"v_cndmask_b32 {v(MK+p)}, 0, v9, {s(MS+4*p,2)}")
        a(f"v_cndmask_b32 v11, 0, v10, {s(MS+4*p+2,2)}")
        a(f"v_or_b32 {v(MK+p)}, {v(MK+p)}, v11")
    a("v_and_b32 v12, 15, v1")
    a("v_lshl_add_u32 v12, v2, 4, v12")
    a("v_lshlrev_b32 v12, 4, v12")
    a("v_lshrrev_b32 v13, 4, v1")
    a("v_lshl_add_u32 v12, v13, 10, v12")
    a("s_and_b32 s53, s19, 1")
    a("s_lshl_b32 s53, s53, 9")
    a("v_add_u32 v12, s53, v12")
    a("s_lshr_b32 s54, s19, 1")
    a("s_lshl_b32 s54, s54, 17")
    a("s_lshl_b32 s53, s17, 12")
    a("s_add_u32 s54, s54, s53")

    def M(dst, kt, t, c):
        vm.wait(("k", kt), ("q", t))
        a(f"v_mfma_f32_32x32x16_bf16 {v(dst,16)}, {v(KF+4*kt,4)}, {v(QF+4*t,4)}, {c}")
    for t in range(2):
        far, diag = t, t + 8
        full = list(range(t + 1, t + 8))
        MX = 14
        M(O, far, t, "0")
        if timing:
            a(f"s_memtime s[{40+2*t}:{41+2*t}]")
        M(S[0], full[0], t, "0")
        M(S[1], full[1], t, "0")
        a("s_nop 7")
        def mx(src, first=False):
            for q in range(0, 16, 4):
                if first and q == 0:
                    a(f"v_max_f32 {v(MX)}, {v(src)}, {v(src+1)}")
                    a(f"v_max_f32 {v(MX+1)}, {v(src+2)}, {v(src+3)}")
                else:
                    a(f"v_max3_f32 {v(MX)}, {v(src+q)}, {v(src+q+1)}, {v(MX)}")
                    a(f"v_max3_f32 {v(MX+1)}, {v(src+q+2)}, {v(src+q+3)}, {v(MX+1)}")
        for n in range(7):
            if n + 2 < 7:
                M(S[(n + 2) % 3], full[n + 2], t, "0")
            elif n + 2 == 7:
                M(NM, diag, t, "0")
            if n == 0:
                a("s_nop 1")
            mx(S[n % 3], first=(n == 0))
        for r in range(16):
            a(f"v_cndmask_b32 {v(O+r)}, {v(O+r)}, {v(NM+r)}, {s(MS+2*r,2)}")
        mx(O)
        a(f"v_max_f32 {v(MX)}, {v(MX)}, {v(MX+1)}")
        a(f"v_mov_b32 {v(MX+1)}, {v(MX)}")
        a("s_nop 1")
        a(f"v_permlane32_swap_b32 {v(MX)}, {v(MX+1)}")
        a("s_nop 1")
        a(f"v_max_f32 {v(MX)}, {v(MX)}, {v(MX+1)}")
        for r in range(16):
            a(f"v_sub_f32 {v(NM+r)}, 0, {v(MX)}")
        a("s_nop 1")
        M(S[0], full[0], t, v(NM, 16))
        M(S[2], far, t, v(NM, 16))
        a("s_nop 9")
        first_pv = [True]
        def PV(kt, hh, preg):
            vm.wait(("v", kt))
            c = "0" if first_pv[0] else v(O, 16)
            first_pv[0] = False
            a(f"v_mfma_f32_32x32x16_bf16 {v(O,16)}, {v(VF+8*kt+4*hh,4)}, {v(preg+4*hh,4)}, {c}")
        for n in range(8):
            cur = S[n % 2]
            nxt = S[(n + 1) % 2]
            if n + 1 < 7:
                M(nxt, full[n + 1], t, v(NM, 16))
            elif n + 1 == 7:
                M(nxt, diag, t, v(NM, 16))
            if n == 7:
                for r in range(16):
                    a(f"v_cndmask_b32 {v(cur+r)}, {v(S[2]+r)}, {v(cur+r)}, {s(MS+2*r,2)}")
            for r in range(16):
                a(f"v_exp_f32 {v(cur+r)}, {v(cur+r)}")
                if n > 0 and r == 5: PV(full[n - 1], 0, P)
                if n > 0 and r == 11: PV(full[n - 1], 1, P)
            for p in range(8):
                a(f"v_cvt_pk_bf16_f32 {v(P+p)}, {v(cur+2*p)}, {v(cur+2*p+1)}")
        for p in range(8):
            a(f"v_bfi_b32 {v(P+8+p)}, {v(MK+p)}, 0, {v(P+p)}")
            a(f"v_and_b32 {v(P+p)}, {v(MK+p)}, {v(P+p)}")
        a("s_nop 1")
        PV(diag, 0, P); PV(diag, 1, P); PV(far, 0, P + 8); PV(far, 1, P + 8)
        a("s_nop 11")
        a(f"v_rcp_f32 v14, {v(O+8)}")
        a("s_nop 0")
        for r in range(8):
            a(f"v_mul_f32 {v(O+r)}, v14, {v(O+r)}")
        for p in range(4):
            a(f"v_cvt_pk_bf16_f32 {v(248+4*t+p)}, {v(O+2*p)}, {v(O+2*p+1)}")
        vm.issue(f"buffer_store_dwordx4 {v(248+4*t,4)}, v12, s[24:27], s54 offen offset:{2048*t} sc1")
    if timing:
        a("s_memtime s[44:45]")
    a("s_waitcnt vmcnt(0)")
    if timing:
        a("s_memtime s[62:63]")
    a("v_mov_b32 v1, 0")
    a("v_mov_b32 v2, 1")
    a("s_mov_b64 exec, 1")
    a("ds_add_rtn_u32 v3, v1, v2")
    a("s_waitcnt lgkmcnt(0)")
    a("v_readfirstlane_b32 s19, v3")
    a("s_nop 3")
    a("s_cmp_eq_u32 s19, 3")
    a(f"s_cbranch_scc0 {L('aend')}")
    a("s_lshl_b32 s19, s17, 3")
    a("s_add_u32 s19, s19, s18")
    a("s_lshl_b32 s19, s19, 7")
    a("v_mov_b32 v1, s19")
    a("buffer_store_dword v2, v1, s[20:23], 0 offen sc1")
    a.label(L("aend"))
    if timing:
        srd(a, 36, 14, 64 << 20, 0)
        a("s_lshl_b32 s19, s2, 8")
        a("s_lshl_b32 s3, s16, 5")
        a("s_add_u32 s19, s19, s3")
        a("s_add_u32 s19, s19, 0x1200080")
        a("v_mov_b32 v3, s19")
        a(f"s_sub_u32 s62, s62, s60")
        a("v_mov_b32 v4, s62")
        a(f"buffer_store_dword v4, v3, s[36:39], 0 offen")
        for q in range(3):
            a("s_nop 1")
            a(f"s_sub_u32 s62, s{40+2*q}, s60")
            a("v_mov_b32 v4, s62")
            a(f"buffer_store_dword v4, v3, s[36:39], 0 offen offset:{4+4*q}")
    a.label(L("end"))
    a("s_endpgm")
```

```python
from asmlib import *

WS_QK = 0
WS_VT = 4 << 20
WS_H = 6 << 20
NSLAB_H = 43
WS_O = WS_H + NSLAB_H * 131072
WS_SY = 14 << 20
SY_EPOCH = 0
SY_ROW = 0x20000
SY_QF = 0x40000
SY_HF = 0x60000
SY_OF = 0x80000
SY_CS = 0xA0000
SY_SIZE = 0xA0000 + 16 * 18 * 2048
WS_TIM = 16 << 20

STG = 53248
XB = 16384
IMG = 12288
ST_M = 0
ST_RS = 512
ST_CS = 1024
SB = 4096
LDS_BYTES = SB + 3 * STG

ACC = 112
WF = 76
XF = 44
SPIN = 20000

S_X, S_WQKV, S_WO, S_WG, S_WU, S_WD, S_OUT, S_DBG, S_WS = 4, 6, 8, 12, 14, 16, 18, 20, 22
S_RB, S_C, S_W, S_TB, S_J, S_TAG, S_EP = 24, 25, 26, 27, 28, 29, 30
SY = 32

def bf16_round(a, r):
    a(f"v_cvt_pk_bf16_f32 {v(r)}, {v(r)}, {v(r)}")
    a(f"v_lshlrev_b32 {v(r)}, 16, {v(r)}")

def allreduce64(a, r, t, op="v_add_f32"):
    for c in ("quad_perm:[1,0,3,2]", "quad_perm:[2,3,0,1]", "row_half_mirror", "row_mirror"):
        a("s_nop 1")
        a(f"{op}_dpp {v(r)}, {v(r)}, {v(r)} {c} row_mask:0xf bank_mask:0xf")
    for sw in ("v_permlane16_swap_b32", "v_permlane32_swap_b32"):
        a(f"v_mov_b32 {v(t)}, {v(r)}")
        a("s_nop 1")
        a(f"{sw} {v(r)}, {v(t)}")
        a("s_nop 1")
        a(f"{op} {v(r)}, {v(r)}, {v(t)}")

def body(a, name, timing=False, opt=()):
    L = lambda x: f"{name}_{x}"
    TS = {}
    def ts(role, lg=None):
        if timing:
            i = TS.get(role, 0)
            assert i < 14
            a(f"s_memtime s[{68+2*i}:{69+2*i}]")
            a("s_waitcnt lgkmcnt(0)")
            if lg is not None: lg.done = lg.n
            TS[role] = i + 1
    def ts_dump(role):
        if timing:
            a("s_mov_b64 exec, -1")
            a("s_waitcnt vmcnt(0)")
            ts(role)
            a("s_memrealtime s[98:99]")
            a("s_waitcnt lgkmcnt(0)")
            srd(a, 36, S_WS, 1 << 20, WS_TIM)
            a("s_lshl_b32 s3, s2, 9")
            a(f"s_lshl_b32 s40, s{S_W}, 6")
            a("s_add_u32 s3, s3, s40")
            a("v_mov_b32 v3, s3")
            a("v_mov_b32 v4, s96")
            a("v_mov_b32 v5, s98")
            a("buffer_store_dwordx2 v[4:5], v3, s[36:39], 0 offen offset:56")
            for q in range(TS[role]):
                a("s_nop 1")
                a(f"s_sub_u32 s40, s{68+2*q}, s100")
                a("v_mov_b32 v4, s40")
                a(f"buffer_store_dword v4, v3, s[36:39], 0 offen offset:{4*q}")
    def poll(lbl, vaddr, vdst, width=1, tagreg=0, sleep=2):
        a(f"s_mov_b32 s3, {SPIN}")
        a.label(L(lbl))
        w = {1: "dword", 4: "dwordx4"}[width]
        a(f"buffer_load_{w} {v(vdst,width)}, {v(vaddr)}, {s(SY,4)}, 0 offen sc1")
        a("s_waitcnt vmcnt(0)")
        a(f"v_cmp_eq_u32 vcc, s{S_TAG}, {v(vdst+tagreg)}")
        a("s_sub_u32 s3, s3, 1")
        a("s_cmp_eq_u32 s3, 0")
        a(f"s_cbranch_scc1 {L(lbl+'_ok')}")
        a("s_cmp_eq_u64 vcc, -1")
        a(f"s_cbranch_scc1 {L(lbl+'_ok')}")
        a(f"s_sleep {sleep}")
        a(f"s_branch {L(lbl)}")
        a.label(L(lbl + "_ok"))

    a("s_cmp_ge_u32 s2, 256")
    a(f"s_cbranch_scc1 {L('end')}")
    a("s_load_dwordx4 s[20:23], s[0:1], 64")
    a("s_load_dwordx4 s[4:7], s[0:1], 0")
    a("s_load_dwordx4 s[12:15], s[0:1], 32")
    a("s_load_dwordx2 s[8:9], s[0:1], 16")
    a("s_load_dwordx4 s[16:19], s[0:1], 48")
    if timing:
        a("s_memtime s[100:101]")
        a("s_memrealtime s[96:97]")
    a("s_and_b32 s3, s2, 7")
    a("s_lshr_b32 s31, s2, 3")
    a(f"s_and_b32 s{S_RB}, s3, 3")
    a(f"s_lshl_b32 s{S_RB}, s{S_RB}, 2")
    a("s_and_b32 s40, s31, 3")
    a(f"s_add_u32 s{S_RB}, s{S_RB}, s40")
    a(f"s_lshr_b32 s{S_C}, s3, 2")
    a(f"s_lshl_b32 s{S_C}, s{S_C}, 3")
    a("s_lshr_b32 s40, s31, 2")
    a(f"s_add_u32 s{S_C}, s{S_C}, s40")
    a(f"s_lshl_b32 s{S_TB}, s3, 2")
    a("s_and_b32 s40, s31, 3")
    a(f"s_add_u32 s{S_TB}, s{S_TB}, s40")
    a(f"s_lshr_b32 s{S_J}, s31, 2")
    a("v_lshrrev_b32 v1, 6, v0")
    a("v_and_b32 v0, 63, v0")
    a("s_nop 0")
    a(f"v_readfirstlane_b32 s{S_W}, v1")
    a("s_waitcnt lgkmcnt(0)")
    a(f"s_load_dword s{S_EP}, s[{S_WS}:{S_WS+1}], {hex(WS_SY + SY_EPOCH)}") if False else None
    srd(a, SY, S_WS, SY_SIZE, WS_SY)
    a(f"s_load_dword s{S_EP}, s[{SY}:{SY+1}], {SY_EPOCH}")
    srd(a, 36, S_X, 2048 * 1024)
    a(f"s_cmp_ge_u32 s{S_W}, 4")
    a(f"s_cbranch_scc1 {L('loader')}")

    a(f"s_lshl_b32 s40, s{S_RB}, 7")
    a(f"s_lshl_b32 s41, s{S_C}, 3")
    a("s_add_u32 s40, s40, s41")
    a(f"s_lshl_b32 s41, s{S_W}, 1")
    a("s_add_u32 s40, s40, s41")
    a("s_lshl_b32 s40, s40, 10")
    a("v_lshlrev_b32 v9, 4, v0")
    a("buffer_load_dwordx4 v[44:47], v9, s[36:39], s40 offen")
    a("buffer_load_dwordx4 v[48:51], v9, s[36:39], s40 offen offset:1024")
    a(f"s_and_b32 s42, s{S_W}, 1")
    a(f"s_lshr_b32 s43, s{S_W}, 1")
    a("v_and_b32 v1, 15, v0")
    a("v_lshrrev_b32 v2, 4, v0")
    a("v_lshrrev_b32 v3, 1, v1")
    a("v_xor_b32 v3, v3, v2")
    a("v_lshlrev_b32 v3, 4, v3")
    a("s_lshl_b32 s40, s42, 13")
    a("v_lshl_add_u32 v3, v1, 7, v3")
    a(f"s_add_u32 s40, s40, {SB}")
    a("v_add_u32 v10, s40, v3")
    a("v_xor_b32 v11, 64, v10")
    a("v_bfe_u32 v4, v0, 2, 2")
    a("v_lshl_add_u32 v4, v2, 3, v4")
    a("v_mul_u32_u24 v4, 192, v4")
    a("v_and_b32 v5, 3, v0")
    a("v_lshl_add_u32 v4, v5, 3, v4")
    a(f"v_add_u32 v4, {SB+XB}, v4")
    a("v_and_b32 v5, 1, v2")
    a("v_lshlrev_b32 v5, 5, v5")
    a("s_lshl_b32 s40, s43, 7")
    a("v_add3_u32 v12, v4, v5, s40")
    a("v_xor_b32 v6, 32, v5")
    a("v_add3_u32 v13, v4, v6, s40")
    a("s_lshl_b32 s40, s43, 5")
    a("v_xor_b32 v6, s40, v5")
    a("v_add_u32 v6, 64, v6")
    a("v_add_u32 v14, v4, v6")
    for b in (1, 2):
        for i in range(5):
            a(f"v_add_u32 {v(10+5*b+i)}, {STG*b}, {v(10+i)}")
    for i in range(0, 144, 2):
        a(f"v_pk_mov_b32 {v(ACC+i,2)}, 0, 0")
    a("s_waitcnt lgkmcnt(0)")
    a(f"s_mul_i32 s{S_TAG}, s{S_EP}, 0x01010101")
    a(f"s_add_u32 s{S_TAG}, s{S_TAG}, 0x5A3C96E1")
    a("s_waitcnt vmcnt(0)")
    for k in range(2):
        for d in range(4):
            a(f"v_lshlrev_b32 {v(52+8*k+2*d)}, 16, {v(44+4*k+d)}")
            a(f"v_and_b32 {v(53+8*k+2*d)}, 0xffff0000, {v(44+4*k+d)}")
    a("s_mov_b32 s44, 0x3b000000")
    a("s_mov_b32 s45, 0x3727c5ac")
    for k in range(2):
        b = 52 + 8 * k
        m, q = 68 + k, 70 + k
        a(f"v_add_f32 {v(m)}, {v(b)}, {v(b+1)}")
        for e in range(2, 8):
            a(f"v_add_f32 {v(m)}, {v(m)}, {v(b+e)}")
        allreduce64(a, m, 72)
        a(f"v_mul_f32 {v(m)}, s44, {v(m)}")
        for e in range(8):
            a(f"v_sub_f32 {v(b+e)}, {v(b+e)}, {v(m)}")
        a(f"v_mul_f32 {v(q)}, {v(b)}, {v(b)}")
        for e in range(1, 8):
            a(f"v_fmac_f32 {v(q)}, {v(b+e)}, {v(b+e)}")
        allreduce64(a, q, 72)
        a(f"v_mul_f32 {v(q)}, s44, {v(q)}")
        bf16_round(a, q)
        a(f"v_add_f32 {v(q)}, s45, {v(q)}")
        bf16_round(a, q)
        a(f"v_sqrt_f32 {v(q)}, {v(q)}")
        a("s_nop 0")
        a(f"v_cvt_pk_bf16_f32 {v(44+k)}, {v(m)}, {v(q)}")
    a(f"v_mov_b32 v46, s{S_TAG}")
    a(f"v_mov_b32 v47, s{S_TAG}")
    a(f"s_lshl_b32 s40, s{S_RB}, 4")
    a(f"s_add_u32 s40, s40, s{S_C}")
    a("s_lshl_b32 s40, s40, 2")
    a(f"s_add_u32 s40, s40, s{S_W}")
    a("s_lshl_b32 s46, s40, 7")
    a(f"s_add_u32 s40, s46, {SY_ROW}")
    a("s_mov_b64 exec, 0xff")
    a(f"buffer_store_dwordx4 v[44:47], v9, {s(SY,4)}, s40 offen sc1")
    a("s_mov_b64 exec, -1")
    a("v_mov_b32 v27, 0")

    def rd_x(buf, ks, xb):
        return [f"ds_read_b128 {v(XF+16*xb+4*i,4)}, {v(10+5*buf+ks)} offset:{i*2048}" for i in range(4)]
    def rd_w(buf, ks, j):
        img, p = j // 3, j % 3
        addr = 10 + 5 * buf + 2 + p
        return [f"ds_read_b64_tr_b16 {v(WF+4*j+2*hf,2)}, {v(addr)} offset:{img*IMG + ks*6144 + hf*768}" for hf in range(2)]
    def mfma(j, i, xb):
        acc = v(ACC + 4 * (4 * j + i), 4)
        w = v(WF + 4 * j, 4); x = v(XF + 16 * xb + 4 * i, 4)
        if j == 2:
            return f"v_mfma_f32_16x16x32_bf16 {acc}, {x}, {w}, {acc}"
        return f"v_mfma_f32_16x16x32_bf16 {acc}, {w}, {x}, {acc}"
    lg = Counter(a, "lgkmcnt", 12)
    def q_x(step):
        buf, ks = (step // 2) % 3, step % 2
        return [(l, ("x", step, i)) for i, l in enumerate(rd_x(buf, ks, step % 2))]
    def q_w(step, j):
        buf, ks = (step // 2) % 3, step % 2
        return [(l, ("w", step, j)) for l in rd_w(buf, ks, j)]
    ts("c", lg)
    a("s_barrier")
    ts("c", lg)
    a(f"s_cmp_lg_u32 s{S_W}, 0")
    a(f"s_cbranch_scc1 {L('noat')}")
    a("v_mov_b32 v26, 1")
    a("s_mov_b64 exec, 1")
    a(f"global_atomic_add v26, v27, v26, s[{S_DBG}:{S_DBG+1}] sc0 sc1")
    a("s_mov_b64 exec, -1")
    a.label(L("noat"))
    for l, t in q_x(0): lg.issue(l, t)
    for j in range(9):
        if j == 4: lg.wait(("w", 0, 0))
        for l, t in q_w(0, j): lg.issue(l, t)
    pend = []
    for step in range(16):
        ks = step % 2
        xb = step % 2
        nstep = step + 1
        has_next = nstep < 16
        hold = []
        for j in range(9):
            while any(t in (("w", step, j),) or t[:2] == ("x", step) for _, t in pend):
                l, t = pend.pop(0); lg.issue(l, t)
            lg.wait(("w", step, j), ("x", step, 3))
            for i in range(4):
                a(mfma(j, i, xb))
                if pend:
                    l, t = pend.pop(0); lg.issue(l, t)
            new = []
            if has_next:
                new += q_w(nstep, j)
                if j in (2, 3):
                    new += q_x(nstep)[2*(j-2):2*(j-2)+2]
            if ks == 1 and j < 1:
                hold += new
                continue
            if ks == 1 and j == 1:
                assert not pend
                lg.wait_all()
                a("s_barrier")
                if step in (3, 7, 11, 15): ts("c", lg)
                pend += hold
            pend += new
    ts("c", lg)
    a(f"s_cmp_lg_u32 s{S_W}, 0")
    a(f"s_cbranch_scc1 {L('noep')}")
    a("s_waitcnt vmcnt(0)")
    a("v_readfirstlane_b32 s3, v26")
    a("s_nop 3")
    a("s_cmp_lg_u32 s3, 255")
    a(f"s_cbranch_scc1 {L('noep')}")
    a(f"s_add_u32 s3, s{S_EP}, 1")
    a("v_mov_b32 v26, s3")
    a("s_mov_b64 exec, 1")
    a(f"buffer_store_dword v26, v27, {s(SY,4)}, 0 offen sc1")
    a("s_mov_b64 exec, -1")
    a.label(L("noep"))
    srd(a, 48, S_WS, 4 << 20, WS_QK)
    srd(a, 52, S_WS, 2 << 20, WS_VT)
    srd(a, 56, S_WS, NSLAB_H * 131072, WS_H)
    a("s_lshl_b32 s40, s42, 8")
    a("v_lshl_add_u32 v3, v1, 2, s40")
    for i in range(4):
        a(f"ds_read_b32 {v(44+2*i)}, v3 offset:{ST_M + 64*i}")
        a(f"ds_read_b32 {v(45+2*i)}, v3 offset:{ST_RS + 64*i}")
    a("v_lshl_add_u32 v7, v2, 4, s40")
    a("s_lshl_b32 s40, s43, 8")
    a("v_lshl_add_u32 v4, v2, 4, s40")
    a("s_lshl_b32 s40, s43, 6")
    a("v_lshl_add_u32 v5, v2, 4, s40")
    a("v_lshl_add_u32 v6, v1, 2, s40")
    for j in range(9):
        img, p = j // 3, j % 3
        if j == 2:
            a(f"ds_read_b32 {v(WF+4*j)}, v6 offset:{ST_CS + 128}")
        elif p < 2:
            a(f"ds_read_b128 {v(WF+4*j,4)}, v4 offset:{ST_CS + img*384 + p*64}")
        else:
            a(f"ds_read_b128 {v(WF+4*j,4)}, v5 offset:{ST_CS + img*384 + 128}")
    a(f"s_cmp_lt_u32 s{S_C}, 8")
    a("s_cselect_b32 s60, 0x3eb8aa3b, 1.0")
    a(f"s_lshl_b32 s61, s{S_C}, 2")
    a("s_lshl_b32 s40, s43, 1")
    a("s_add_u32 s61, s61, s40")
    a("s_lshl_b32 s61, s61, 16")
    a(f"s_lshl_b32 s40, s{S_RB}, 12")
    a("s_add_u32 s61, s61, s40")
    a("s_lshl_b32 s62, s42, 11")
    a("s_add_u32 s61, s61, s62")
    a("s_add_u32 s62, s62, s40")
    a(f"s_lshl_b32 s40, s{S_C}, 1")
    a("s_add_u32 s40, s40, s43")
    a("s_lshl_b32 s40, s40, 16")
    a("s_add_u32 s62, s62, s40")
    a("v_and_b32 v8, 1, v2")
    a("v_lshl_add_u32 v8, v8, 4, v1")
    a("v_lshlrev_b32 v8, 5, v8")
    a("v_lshrrev_b32 v9, 1, v2")
    a("v_lshl_add_u32 v8, v9, 4, v8")
    a("s_add_u32 s63, s61, 0x10000")
    a("v_lshl_add_u32 v9, v9, 4, v1")
    a("v_lshlrev_b32 v9, 4, v9")
    a("v_and_b32 v60, 1, v2")
    a("v_lshl_add_u32 v9, v60, 10, v9")
    a(f"s_mul_i32 s64, s{S_C}, 3")
    a("s_lshl_b32 s40, s43, 1")
    a("s_add_u32 s65, s64, s40")
    a("s_add_u32 s64, s64, 1")
    a("s_lshl_b32 s65, s65, 17")
    a("s_lshl_b32 s64, s64, 17")
    a(f"s_lshl_b32 s40, s{S_RB}, 13")
    a("s_add_u32 s65, s65, s40")
    a("s_add_u32 s64, s64, s40")
    a("s_lshl_b32 s40, s42, 12")
    a("s_add_u32 s65, s65, s40")
    a("s_add_u32 s64, s64, s40")
    a("s_lshl_b32 s40, s43, 9")
    a("s_add_u32 s64, s64, s40")
    a("s_waitcnt lgkmcnt(0)")
    for i in range(4):
        a(f"ds_read_b128 {v(10+8*i,4)}, v7 offset:{ST_M + 64*i}")
        a(f"ds_read_b128 {v(14+8*i,4)}, v7 offset:{ST_RS + 64*i}")
    for i in range(4):
        a(f"v_mul_f32 {v(52+2*i)}, s60, {v(45+2*i)}")
        a(f"v_mul_f32 {v(53+2*i)}, {v(45+2*i)}, {v(45+2*i)}")
    A = lambda j, i, r: ACC + 4 * (4 * j + i) + r
    BL = "op_sel_hi:[1,0,1]"
    def corr(j, i):
        for r in (0, 2):
            a(f"v_pk_fma_f32 {v(A(j,i,r),2)}, {v(WF+4*j+r,2)}, {v(44+2*i,2)}, {v(A(j,i,r),2)} {BL}")
    vm = Counter(a, "vmcnt", 60)
    def pack_store(j, i0, vo, sr, so, off, tag):
        d = A(j, i0, 0)
        a(f"v_cvt_pk_bf16_f32 {v(d)}, {v(d)}, {v(d+1)}")
        a(f"v_cvt_pk_bf16_f32 {v(d+1)}, {v(d+2)}, {v(d+3)}")
        a(f"v_cvt_pk_bf16_f32 {v(d+2)}, {v(d+4)}, {v(d+5)}")
        a(f"v_cvt_pk_bf16_f32 {v(d+3)}, {v(d+6)}, {v(d+7)}")
        a("s_nop 0")
        a(f"v_permlane16_swap_b32 {v(d)}, {v(d+2)}")
        a(f"v_permlane16_swap_b32 {v(d+1)}, {v(d+3)}")
        vm.issue(f"buffer_store_dwordx4 {v(d,4)}, {v(vo)}, {s(sr,4)}, {s(so)} offen offset:{off} sc1", tag)
    for j in (0, 1):
        for i in range(4):
            corr(j, i)
            for r in (0, 2):
                a(f"v_pk_mul_f32 {v(A(j,i,r),2)}, {v(A(j,i,r),2)}, {v(52+2*i,2)} op_sel_hi:[1,0]")
            if i & 1:
                pack_store(j, i - 1, 8, 48, 61 if j == 0 else 63, 512 * (i - 1), "qkv")
    a("s_waitcnt lgkmcnt(0)")
    for i in range(4):
        for r in (0, 2):
            a(f"v_pk_fma_f32 {v(A(2,i,r),2)}, {v(10+8*i+r,2)}, {v(WF+8,2)}, {v(A(2,i,r),2)} {BL}")
        for r in (0, 2):
            a(f"v_pk_mul_f32 {v(A(2,i,r),2)}, {v(A(2,i,r),2)}, {v(14+8*i+r,2)}")
        if i & 1:
            pack_store(2, i - 1, 8, 52, 62, 512 * (i - 1), "qkv")
    for p in range(3):
        for i in range(4):
            corr(3 + p, i); corr(6 + p, i)
            for r in range(4):
                a(f"v_max_f32 {v(A(3+p,i,r))}, 0, {v(A(3+p,i,r))}")
            for r in (0, 2):
                a(f"v_pk_mul_f32 {v(A(6+p,i,r),2)}, {v(A(6+p,i,r),2)}, {v(52+2*i,2)} op_sel:[0,1] op_sel_hi:[1,1]")
            for r in (0, 2):
                a(f"v_pk_mul_f32 {v(A(3+p,i,r),2)}, {v(A(3+p,i,r),2)}, {v(A(6+p,i,r),2)}")
            if i & 1:
                pack_store(3 + p, i - 1, 9, 56, 65 if p < 2 else 64, 1024 * (i - 1) + (512 if p == 1 else 0), "h")
    a("s_barrier")
    ts("c")
    a("v_lshlrev_b32 v3, 4, v0")
    for r in range(4):
        a(f"v_mov_b32 {v(4+r)}, s{S_TAG}")
    a(f"s_add_u32 s40, s46, {SY_QF}")
    a(f"s_add_u32 s41, s46, {SY_HF}")
    vm.wait("qkv")
    a("s_mov_b64 exec, 0xff")
    vm.issue(f"buffer_store_dwordx4 v[4:7], v3, {s(SY,4)}, s40 offen sc1")
    vm.wait("h")
    vm.issue(f"buffer_store_dwordx4 v[4:7], v3, {s(SY,4)}, s41 offen sc1")
    a("s_mov_b64 exec, -1")
    a("s_nop 1")
    ts("c")

    KF, VF, QF = 16, 56, 136
    S = [144, 160, 176]
    NM, O, P, MK = 192, 208, 224, 240
    srd(a, 56, S_WS, 16 * 131072, WS_O)
    a(f"s_lshl_b32 s40, s{S_J}, 2")
    a(f"s_add_u32 s42, s40, s{S_W}")
    a("s_lshl_b32 s43, s42, 16")
    a("s_add_u32 s44, s43, 0x200000")
    a(f"s_lshl_b32 s45, s{S_TB}, 6")
    a("v_and_b32 v1, 31, v0")
    a("v_lshrrev_b32 v2, 5, v0")
    a("v_lshlrev_b32 v3, 4, v2")
    a("v_bfe_u32 v4, v0, 2, 3")
    a("v_min_u32 v4, 4, v4")
    a("v_and_b32 v5, 3, v0")
    a("v_cmp_eq_u32 vcc, 1, v5")
    a(f"v_cmp_eq_u32 s[60:61], 2, v5")
    a("s_nop 1")
    a("s_or_b64 s[62:63], vcc, s[60:61]")
    a("s_nop 1")
    a("v_cndmask_b32 v4, 0, v4, s[62:63]")
    a(f"v_sub_u32 v4, s{S_TB}, v4")
    a("v_max_i32 v4, 0, v4")
    a("s_bfe_u32 s40, s42, 0x10001")
    a("s_lshl_b32 s40, s40, 8")
    a(f"s_lshl_b32 s41, s{S_J}, 9")
    a("s_add_u32 s40, s40, s41")
    a("s_add_u32 s41, s40, 4096")
    a("s_lshl_b32 s47, s42, 8")
    a("v_mov_b32 v6, s40")
    a("v_mov_b32 v7, s41")
    a("v_cndmask_b32 v6, v6, v7, vcc")
    a("v_mov_b32 v7, s47")
    a("v_cndmask_b32 v6, v6, v7, s[60:61]")
    a("v_lshrrev_b32 v7, 1, v4")
    a("v_lshl_add_u32 v6, v7, 13, v6")
    a("v_and_b32 v7, 1, v4")
    a("v_lshl_add_u32 v6, v7, 7, v6")
    a(f"v_add_u32 v6, {SY_QF}, v6")
    a("v_lshlrev_b32 v8, 3, v2")
    a("v_sub_u32 v8, v1, v8")
    a("s_sub_u32 s47, s45, 256")
    a("s_mov_b32 exec_lo, 0xffff0000")
    a("s_mov_b32 exec_hi, 0xffff0000")
    for kt in range(10):
        a(f"s_cmp_ge_i32 s47, {-32*kt}")
        a("s_cselect_b32 s40, 0x3f803f80, 0")
        a("s_mov_b32 s41, s40")
        for r in range(0, 8, 2):
            a(f"v_pk_mov_b32 {v(VF+8*kt+r,2)}, s[40:41], s[40:41]")
    a("s_mov_b64 exec, -1")
    a("v_add_u32 v4, s45, v1")
    a("v_lshl_add_u32 v4, v4, 5, v3")
    a("v_and_b32 v5, 0x13, v1")
    a("v_bfe_u32 v7, v1, 2, 1")
    a("v_lshl_or_b32 v5, v7, 3, v5")
    a("v_bfe_u32 v7, v1, 3, 1")
    a("v_lshl_or_b32 v5, v7, 2, v5")
    a("v_lshl_add_u32 v7, v5, 5, v3")
    a("v_add_u32 v5, s47, v5")
    for kt in range(10):
        a(f"v_add_u32 {v(S[0]+kt)}, {32*kt}, v5")
        a(f"v_max_i32 {v(S[0]+kt)}, 0, {v(S[0]+kt)}")
        a(f"v_lshl_add_u32 {v(S[0]+kt)}, {v(S[0]+kt)}, 5, v3")
    a("v_and_b32 v12, 15, v1")
    a("v_lshl_add_u32 v12, v2, 4, v12")
    a("v_lshlrev_b32 v12, 4, v12")
    a("v_lshrrev_b32 v13, 4, v1")
    a("v_lshl_add_u32 v12, v13, 10, v12")
    a("s_and_b32 s40, s42, 1")
    a("s_lshl_b32 s40, s40, 9")
    a("v_add_u32 v12, s40, v12")
    a("s_lshr_b32 s46, s42, 1")
    a("s_lshl_b32 s46, s46, 17")
    a(f"s_lshl_b32 s40, s{S_TB}, 12")
    a("s_add_u32 s46, s46, s40")
    poll("pq", 6, 14)
    ts("c")
    vm = Counter(a, "vmcnt", 60)
    for t in range(2):
        vm.issue(f"buffer_load_dwordx4 {v(QF+4*t,4)}, v4, s[48:51], s43 offen offset:{1024*t} sc1", ("q", t))
    for kt in range(10):
        vm.issue(f"buffer_load_dwordx4 {v(KF+4*kt,4)}, {v(S[0]+kt)}, s[48:51], s44 offen sc1", ("k", kt))
    a("s_mov_b32 exec_lo, 0xffff")
    a("s_mov_b32 exec_hi, 0xffff")
    a("s_lshl_b32 s41, s47, 5")
    a("s_add_u32 s41, s41, s43")
    for kt in list(range(1, 10)) + [0]:
        a(f"s_add_u32 s40, s41, {1024*kt}")
        a(f"s_cmp_ge_i32 s47, {-32*kt}")
        a("s_cselect_b32 s40, s40, 0x7fff0000")
        for hh in range(2):
            vm.issue(f"buffer_load_dwordx4 {v(VF+8*kt+4*hh,4)}, v7, s[52:55], s40 offen offset:{512*hh} sc1", ("v", kt))
    a("s_mov_b64 exec, -1")
    if timing:
        pass
    MS = 60 if not timing else None
    if timing:
        MSL = [4, 6, 8, 10, 12, 14, 16, 18, 60, 62, 64, 66, 36, 38, 40, 44]
    else:
        MSL = [60 + 2 * r for r in range(16)]
    for r in range(16):
        a(f"v_cmp_le_i32 {s(MSL[r],2)}, {(r&7)+16*(r>>3)}, v8")
    a("v_mov_b32 v9, 0xffff")
    a("v_mov_b32 v10, 0xffff0000")
    for p in range(8):
        a(f"v_cndmask_b32 {v(MK+p)}, 0, v9, {s(MSL[2*p],2)}")
        a(f"v_cndmask_b32 v11, 0, v10, {s(MSL[2*p+1],2)}")
        a(f"v_or_b32 {v(MK+p)}, {v(MK+p)}, v11")
    def M(dst, kt, t, c):
        vm.wait(("k", kt), ("q", t))
        a(f"v_mfma_f32_32x32x16_bf16 {v(dst,16)}, {v(KF+4*kt,4)}, {v(QF+4*t,4)}, {c}")
    for t in range(2):
        far, diag = t, t + 8
        full = list(range(t + 1, t + 8))
        MX = 14
        M(O, far, t, "0")
        if t == 0: ts("c")
        M(S[0], full[0], t, "0")
        M(S[1], full[1], t, "0")
        a("s_nop 7")
        def mx(src, first=False):
            for q in range(0, 16, 4):
                if first and q == 0:
                    a(f"v_max_f32 {v(MX)}, {v(src)}, {v(src+1)}")
                    a(f"v_max_f32 {v(MX+1)}, {v(src+2)}, {v(src+3)}")
                else:
                    a(f"v_max3_f32 {v(MX)}, {v(src+q)}, {v(src+q+1)}, {v(MX)}")
                    a(f"v_max3_f32 {v(MX+1)}, {v(src+q+2)}, {v(src+q+3)}, {v(MX+1)}")
        for n in range(7):
            if n + 2 < 7:
                M(S[(n + 2) % 3], full[n + 2], t, "0")
            elif n + 2 == 7:
                M(NM, diag, t, "0")
            if n == 0:
                a("s_nop 1")
            mx(S[n % 3], first=(n == 0))
        for r in range(16):
            a(f"v_cndmask_b32 {v(O+r)}, {v(O+r)}, {v(NM+r)}, {s(MSL[r],2)}")
        mx(O)
        a(f"v_max_f32 {v(MX)}, {v(MX)}, {v(MX+1)}")
        a(f"v_mov_b32 {v(MX+1)}, {v(MX)}")
        a("s_nop 1")
        a(f"v_permlane32_swap_b32 {v(MX)}, {v(MX+1)}")
        a("s_nop 1")
        a(f"v_max_f32 {v(MX)}, {v(MX)}, {v(MX+1)}")
        a(f"v_sub_f32 {v(MX)}, 0, {v(MX)}")
        for r in range(0, 16, 2):
            a(f"v_pk_mov_b32 {v(NM+r,2)}, {v(MX,2)}, {v(MX,2)} op_sel:[0,0]")
        a("s_nop 1")
        M(S[0], full[0], t, v(NM, 16))
        M(S[2], far, t, v(NM, 16))
        a("s_nop 9")
        first_pv = [True]
        def PV(kt, hh, preg):
            vm.wait(("v", kt))
            c = "0" if first_pv[0] else v(O, 16)
            first_pv[0] = False
            a(f"v_mfma_f32_32x32x16_bf16 {v(O,16)}, {v(VF+8*kt+4*hh,4)}, {v(preg+4*hh,4)}, {c}")
        for n in range(8):
            cur = S[n % 2]
            nxt = S[(n + 1) % 2]
            if n + 1 < 7:
                M(nxt, full[n + 1], t, v(NM, 16))
            elif n + 1 == 7:
                M(nxt, diag, t, v(NM, 16))
            if n == 7:
                for r in range(16):
                    a(f"v_cndmask_b32 {v(cur+r)}, {v(S[2]+r)}, {v(cur+r)}, {s(MSL[r],2)}")
            for r in range(16):
                a(f"v_exp_f32 {v(cur+r)}, {v(cur+r)}")
                if n > 0 and r == 5: PV(full[n - 1], 0, P)
                if n > 0 and r == 11: PV(full[n - 1], 1, P)
            for p in range(8):
                a(f"v_cvt_pk_bf16_f32 {v(P+p)}, {v(cur+2*p)}, {v(cur+2*p+1)}")
        for p in range(8):
            a(f"v_bfi_b32 {v(P+8+p)}, {v(MK+p)}, 0, {v(P+p)}")
            a(f"v_and_b32 {v(P+p)}, {v(MK+p)}, {v(P+p)}")
        a("s_nop 1")
        PV(diag, 0, P); PV(diag, 1, P); PV(far, 0, P + 8); PV(far, 1, P + 8)
        a("s_nop 11")
        a(f"v_rcp_f32 v14, {v(O+8)}")
        a("s_nop 0")
        for r in range(8):
            a(f"v_mul_f32 {v(O+r)}, v14, {v(O+r)}")
        for p in range(4):
            a(f"v_cvt_pk_bf16_f32 {v(248+4*t+p)}, {v(O+2*p)}, {v(O+2*p+1)}")
        vm.issue(f"buffer_store_dwordx4 {v(248+4*t,4)}, v12, s[56:59], s46 offen offset:{2048*t} sc1")
    ts("c")
    a(f"s_lshl_b32 s40, s{S_TB}, 5")
    a("s_add_u32 s40, s40, s42")
    a("s_lshl_b32 s40, s40, 7")
    a(f"s_add_u32 s40, s40, {SY_OF}")
    a("v_lshlrev_b32 v3, 4, v0")
    for r in range(4):
        a(f"v_mov_b32 {v(4+r)}, s{S_TAG}")
    a("s_mov_b64 exec, 0xff")
    a("s_waitcnt vmcnt(0)")
    a(f"buffer_store_dwordx4 v[4:7], v3, {s(SY,4)}, s40 offen sc1")
    a("s_nop 1")
    ts_dump("c")
    a(f"s_branch {L('end')}")

    a.label(L("loader"))
    LW = 31
    a(f"s_sub_u32 s{LW}, s{S_W}, 4")
    a("s_setprio 3")
    srd(a, 40, S_WQKV, 512 * 3072)
    srd(a, 44, S_WG, 512 * 2752)
    srd(a, 48, S_WU, 512 * 2752)
    a(f"s_and_b32 s52, s{S_RB}, 1")
    a(f"s_lshr_b32 s53, s{S_RB}, 1")
    a("s_xor_b32 s10, s53, 1")
    a("v_lshrrev_b32 v1, 3, v0")
    a("v_and_b32 v2, 7, v0")
    a("s_lshl_b32 s3, s52, 2")
    a("v_xor_b32 v2, s3, v2")
    a(f"s_lshl_b32 s54, s{S_RB}, 7")
    a(f"s_lshl_b32 s55, s{LW}, 5")
    a("s_add_u32 s54, s54, s55")
    a("v_lshrrev_b32 v4, 4, v0")
    a("v_xor_b32 v4, v4, v2")
    a("v_add_u32 v3, s54, v1")
    a("v_lshlrev_b32 v3, 10, v3")
    a("v_lshl_add_u32 v10, v4, 4, v3")
    a("v_xor_b32 v11, 64, v10")
    a("v_add_u32 v11, 0x2000, v11")
    a("v_add_u32 v12, 0x4000, v10")
    a("v_add_u32 v13, 0x4000, v11")
    a(f"s_lshl_b32 s56, s{LW}, 12")
    a(f"s_add_u32 s56, s56, {SB}")
    a(f"s_mul_i32 s57, s{LW}, 3072")
    a(f"s_add_u32 s57, s57, {SB+XB}")
    vm = Counter(a, "vmcnt", 60)
    lg = Counter(a, "lgkmcnt", 12)
    def dma_soff(stage):
        a(f"s_add_u32 s58, s{10 if stage & 1 else 53}, {stage & ~1}")
        a("s_and_b32 s58, s58, 7")
        a(f"s_mul_i32 s59, s58, {64*3072}")
        a(f"s_mul_i32 s60, s58, {64*2752}")
        a("s_lshl_b32 s58, s58, 7")
    def dma_x(stage):
        buf = stage % 3
        for i in range(4):
            a(f"s_add_u32 m0, s56, {buf*STG + i*1024}")
            a("s_nop 0")
            vm.issue(f"buffer_load_dwordx4 {v(10+i)}, s[36:39], s58 offen lds", ("st", stage))
    def dma_wimg(stage, lo=0, hi=9):
        buf = stage % 3
        for n in range(lo, hi):
            img, b = n // 3, n % 3
            a(f"s_add_u32 m0, s57, {buf*STG + img*IMG + b*1024}")
            a("s_nop 0")
            if img == 0:
                vm.issue(f"buffer_load_dwordx4 {v(14+b)}, s[40:43], s59 offen lds", ("st", stage))
            else:
                vm.issue(f"buffer_load_dwordx4 {v(17+b)}, {s(40+4*img,4)}, s60 offen lds", ("st", stage))
    def dma(stage):
        dma_soff(stage); dma_x(stage); dma_wimg(stage)
    dma_soff(0); dma_x(0)
    a("s_lshl_b32 s3, s52, 1")
    a(f"s_xor_b32 s54, s{LW}, s3")
    a("s_lshl_b32 s54, s54, 4")
    a(f"s_mul_i32 s55, s{S_C}, 192")
    a(f"s_lshl_b32 s61, s{S_C}, 7")
    a(f"s_lshl_b32 s62, s{S_C}, 6")
    a("s_add_u32 s62, s62, 2048")
    a("s_movk_i32 s63, 2752")
    a("s_movk_i32 s64, 3072")
    a("v_mov_b32 v8, s61")
    a("v_mov_b32 v9, s62")
    for b in range(3):
        a(f"v_add_u32 v3, {64*b}, v0")
        a("v_mul_u32_u24 v4, 171, v3")
        a("v_lshrrev_b32 v4, 11, v4")
        a("v_mul_u32_u24 v5, 12, v4")
        a("v_sub_u32 v5, v3, v5")
        a("v_lshrrev_b32 v6, 3, v4")
        a("v_lshlrev_b32 v6, 1, v6")
        a("v_xor_b32 v5, v5, v6")
        a("v_add_u32 v4, s54, v4")
        a("v_mul_u32_u24 v6, s63, v4")
        a("v_lshl_add_u32 v6, v5, 4, v6")
        a(f"v_add_u32 {v(17+b)}, s55, v6")
        a("v_cmp_gt_u32 vcc, 4, v5")
        a("v_mul_u32_u24 v6, s64, v4")
        a("v_subrev_u32 v7, 4, v5")
        a("v_cndmask_b32 v7, v7, v5, vcc")
        a("v_lshl_add_u32 v6, v7, 4, v6")
        a("v_lshrrev_b32 v7, 2, v5")
        a("v_cmp_eq_u32 vcc, 1, v7")
        a("s_nop 1")
        a("v_cndmask_b32 v7, v8, v9, vcc")
        a(f"v_add_u32 {v(14+b)}, v6, v7")
    dma_wimg(0)
    dma_soff(1); dma_x(1); dma_wimg(1, 0, 2)
    a("v_lshrrev_b32 v2, 4, v0")
    a("v_bfe_u32 v4, v0, 2, 2")
    a("v_lshl_add_u32 v4, v2, 3, v4")
    a("v_mul_u32_u24 v4, 192, v4")
    a("v_and_b32 v5, 3, v0")
    a("v_lshl_add_u32 v4, v5, 3, v4")
    a(f"v_add_u32 v4, {SB+XB}, v4")
    a("v_and_b32 v5, 1, v2")
    a("v_lshlrev_b32 v5, 5, v5")
    for i in range(5):
        T = 61 + i
        if i < 4:
            a(f"s_add_u32 s{T}, s{LW}, {4*i}")
        else:
            a(f"s_and_b32 s{T}, s{LW}, 1")
            a(f"s_add_u32 s{T}, s{T}, 16")
        a(f"s_mul_i32 s54, s{T}, 43")
        a("s_lshr_b32 s54, s54, 8")
        a("s_mul_i32 s55, s54, 6")
        a(f"s_sub_u32 s55, s{T}, s55")
        a("s_lshl_b32 s55, s55, 5")
        a(f"s_mul_i32 s54, s54, {IMG}")
        a("v_xor_b32 v6, s55, v5")
        a(f"v_add3_u32 {v(21+i)}, v4, v6, s54")
    for r in range(4):
        a(f"v_mov_b32 {v(28+r)}, 0x3f803f80")
    a("v_and_b32 v6, 15, v0")
    a("v_cmp_gt_u32 vcc, 2, v6")
    a("v_lshlrev_b32 v26, 4, v2")
    a("v_lshl_add_u32 v26, v6, 6, v26")
    a("v_mov_b32 v6, 0x7fff0000")
    a("v_cndmask_b32 v26, v6, v26, vcc")
    a(f"s_mul_i32 s66, s{S_C}, {18*2048}")
    a(f"s_add_u32 s66, s66, {SY_CS}")
    a("s_waitcnt lgkmcnt(0)")
    a(f"s_mul_i32 s{S_TAG}, s{S_EP}, 0x01010101")
    a(f"s_add_u32 s{S_TAG}, s{S_TAG}, 0x5A3C96E1")
    ts("l")
    vm.wait(("st", 0))
    a("s_barrier")
    ts("l")
    dma_wimg(1, 2, 9)
    dma(2)
    ts("l")
    WD = 32
    for i in range(5):
        for hf in range(2):
            lg.issue(f"ds_read_b64_tr_b16 {v(WD+4*i+2*hf,2)}, {v(21+i)} offset:{hf*768}", ("c", i))
    for i in range(5):
        lg.wait(("c", i))
        a(f"v_mfma_f32_16x16x32_bf16 {v(52+4*i,4)}, {v(WD+4*i,4)}, v[28:31], 0")
    a(f"s_lshl_b32 s54, s{S_RB}, 7")
    a("s_add_u32 s54, s54, s66")
    a("v_mov_b32 v6, 0xff")
    a(f"s_lshr_b32 s67, s{S_TAG}, 8")
    a(f"s_lshr_b32 s0, s{S_TAG}, 16")
    a(f"s_lshr_b32 s1, s{S_TAG}, 24")
    TB = [S_TAG, 67, 0, 1]
    a("s_nop 2")
    for i in range(5):
        for r in range(4):
            a(f"v_bfi_b32 {v(52+4*i+r)}, v6, s{TB[r]}, {v(52+4*i+r)}")
        a(f"s_lshl_b32 s55, s{61+i}, 11")
        a("s_add_u32 s55, s55, s54")
        if "nocsst" not in opt:
            vm.issue(f"buffer_store_dwordx4 {v(52+4*i,4)}, v26, {s(SY,4)}, s55 offen sc1")
    ts("l")
    ts("l")
    vm.wait(("st", 1))
    ts("l")
    a("s_barrier")
    dma(3)
    ts("l")
    vm.wait(("st", 2))
    ts("l")
    a("s_barrier")
    dma(4)
    a("v_lshrrev_b32 v4, 2, v0")
    a("v_and_b32 v5, 3, v0")
    a("v_lshlrev_b32 v4, 7, v4")
    a("v_lshl_add_u32 v34, v5, 4, v4")
    a(f"s_lshl_b32 s54, s{S_RB}, 13")
    a(f"s_lshl_b32 s55, s{LW}, 11")
    a("s_add_u32 s54, s54, s55")
    a(f"s_add_u32 s54, s54, {SY_ROW}")
    a("v_and_b32 v33, 15, v0")
    a("v_lshlrev_b32 v33, 7, v33")
    a("v_add_u32 v33, s54, v33")
    a("v_mov_b32 v35, 0x0c0c0400")
    vm.wait(("st", 3))
    a("s_barrier")
    def gather(cnt):
        f = (lambda l: vm.issue(l, "gat")) if cnt else a
        f(f"buffer_load_dwordx4 v[40:43], v33, {s(SY,4)}, 0 offen sc1")
        for i in range(5):
            a(f"s_lshl_b32 s55, s{61+i}, 11")
            a("s_add_u32 s55, s55, s66")
            f(f"buffer_load_dwordx4 {v(52+4*i,4)}, v34, {s(SY,4)}, s55 offen sc1")
    if "nogat" not in opt:
        gather(True)
    else:
        vm.tag["gat"] = vm.n
    dma(5)
    vm.wait(("st", 4))
    a("s_barrier")
    dma(6)
    vm.wait(("st", 5), "gat")
    a(f"s_mov_b32 s3, {SPIN}")
    if "nogat" in opt:
        a(f"s_branch {L('valok')}")
    a.label(L("val"))
    a(f"v_cmp_eq_u32 vcc, s{S_TAG}, v42")
    for i in range(5):
        b = 52 + 4 * i
        a(f"v_perm_b32 v36, {v(b+1)}, {v(b)}, v35")
        a(f"v_perm_b32 v37, {v(b+3)}, {v(b+2)}, v35")
        a("v_lshl_or_b32 v36, v37, 16, v36")
        a(f"v_cmp_eq_u32 s[54:55], s{S_TAG}, v36")
        a("s_nop 1")
        a("s_and_b64 vcc, vcc, s[54:55]")
    a("s_cmp_eq_u64 vcc, -1")
    a(f"s_cbranch_scc1 {L('valok')}")
    a("s_sub_u32 s3, s3, 1")
    a("s_cmp_eq_u32 s3, 0")
    a(f"s_cbranch_scc1 {L('valok')}")
    a("s_sleep 4")
    gather(False)
    a("s_waitcnt vmcnt(0)")
    a(f"s_branch {L('val')}")
    a.label(L("valok"))
    a("s_barrier")
    dma(7)
    a("v_and_b32 v6, 15, v0")
    a(f"s_lshl_b32 s3, s{LW}, 7")
    a("v_lshl_add_u32 v6, v6, 3, s3")
    for k in range(2):
        a(f"v_lshlrev_b32 {v(44+k)}, 16, {v(40+k)}")
        a(f"v_xor_b32 {v(44+k)}, 0x80000000, {v(44+k)}")
        a(f"v_and_b32 {v(46+k)}, 0xffff0000, {v(40+k)}")
        a(f"v_rcp_f32 {v(46+k)}, {v(46+k)}")
    a("s_nop 0")
    a(f"ds_write_b64 v6, v[44:45] offset:{ST_M}")
    a(f"ds_write_b64 v6, v[46:47] offset:{ST_RS}")
    for c in ("row_ror:4", "row_ror:8"):
        for r in range(20 if "nored" not in opt else 0):
            a(f"v_add_f32_dpp {v(52+r)}, {v(52+r)}, {v(52+r)} {c} row_mask:0xf bank_mask:0xf")
    a("v_and_b32 v6, 3, v0")
    a("v_lshlrev_b32 v6, 4, v6")
    def lvl2():
        for sw in ("v_permlane16_swap_b32", "v_permlane32_swap_b32"):
            for r in range(20):
                a(f"v_mov_b32 {v(72+r)}, {v(52+r)}")
            for r in range(20):
                a(f"{sw} {v(52+r)}, {v(72+r)}")
            for r in range(0, 20, 2):
                a(f"v_pk_add_f32 {v(52+r,2)}, {v(52+r,2)}, {v(72+r,2)}")
        for i in range(5):
            a(f"s_lshl_b32 s3, s{61+i}, 6")
            a("v_add_u32 v30, s3, v29")
            a(f"ds_write_b128 v30, {v(52+4*i,4)} offset:{ST_CS}")
    a("v_mov_b32 v29, v6")
    srd(a, 40, S_WD, 1376 * 1024)
    srd(a, 44, S_WO, 512 * 1024)
    srd(a, 48, S_WS, NSLAB_H * 131072, WS_H)
    srd(a, 52, S_WS, 16 * 131072, WS_O)
    G_ACC, BF, GW, XR = 192, 128, 96, 88
    D = 4
    a(f"s_lshl_b32 s3, s{S_TB}, 12")
    a("v_lshl_add_u32 v1, v0, 4, s3")
    a("v_lshrrev_b32 v3, 3, v0")
    a("v_and_b32 v4, 7, v0")
    a("v_and_b32 v5, 6, v3")
    a("v_xor_b32 v4, v4, v5")
    a("v_lshlrev_b32 v4, 4, v4")
    a("v_and_b32 v5, 4, v3")
    a("v_add_u32 v3, v3, v5")
    a("v_lshl_add_u32 v4, v3, 10, v4")
    a(f"s_lshl_b32 s3, s{S_J}, 7")
    a("v_add_u32 v2, s3, v4")
    a(f"s_mul_i32 s56, s{LW}, 12288")
    a(f"s_add_u32 s56, s56, {SB}")
    a(f"s_lshl_b32 s57, s{LW}, 15")
    a(f"s_lshl_b32 s58, s{LW}, 17")
    NH, NO = 11, 4
    NT = NH + NO
    NS = 9
    BUFORD = [2, 0, 1]
    def slot_off(k):
        sl = k % NS
        return BUFORD[sl // 3], (sl % 3) * 4096
    def dma_w(k):
        b, o = slot_off(k)
        for q in range(4):
            a(f"s_add_u32 m0, s56, {b*STG + o + q*1024}")
            if k < NH:
                a(f"s_add_u32 s59, s57, {k*4*32768 + (16*(q&1) + 4*(q>>1))*1024}")
                vm.issue(f"buffer_load_dwordx4 v2, s[40:43], s59 offen lds", ("w", k))
            else:
                a(f"s_add_u32 s59, s57, {(k-NH)*4*32768 + (16*(q&1) + 4*(q>>1))*1024}")
                vm.issue(f"buffer_load_dwordx4 v2, s[44:47], s59 offen lds", ("w", k))
    def load_b(k):
        kk, sr = (k, 48) if k < NH else (k - NH, 52)
        a(f"s_add_u32 s60, s58, {kk*4*131072}")
        for i in range(4):
            vm.issue(f"buffer_load_dwordx4 {v(BF+16*(k%D)+4*i,4)}, v1, {s(sr,4)}, s60 offen offset:{1024*i} sc1", ("b", k))
    a("s_waitcnt lgkmcnt(0)")
    vm.wait(("st", 6))
    a("s_barrier")
    for k in range(0, 3):
        if "now2" in opt: continue
        dma_w(k)
    a("v_lshrrev_b32 v3, 4, v0")
    a("v_bfe_u32 v4, v0, 2, 2")
    a("v_lshl_add_u32 v5, v3, 2, v4")
    a("v_bfe_u32 v6, v5, 1, 2")
    a("v_and_b32 v7, 3, v0")
    a("v_lshlrev_b32 v7, 3, v7")
    a("v_lshl_add_u32 v7, v5, 7, v7")
    a("v_add_u32 v7, s56, v7")
    for u in range(4):
        a(f"v_xor_b32 v8, {u}, v6")
        a(f"v_lshl_add_u32 {v(10+u)}, v8, 5, v7")
        a(f"v_add_u32 {v(14+u)}, {STG}, {v(10+u)}")
        a(f"v_add_u32 {v(18+u)}, {2*STG}, {v(10+u)}")
    if "nored" not in opt: lvl2()
    a("s_waitcnt lgkmcnt(0)")
    vm.wait(("st", 7))
    a("s_barrier")
    for k in range(3, 6):
        if "now2" in opt: continue
        dma_w(k)
    for i in range(0, 64, 2):
        a(f"v_pk_mov_b32 {v(G_ACC+i,2)}, 0, 0")
    a("v_and_b32 v8, 15, v0")
    a("v_lshlrev_b32 v9, 10, v8")
    a("v_lshl_add_u32 v9, v3, 4, v9")
    a(f"s_lshl_b32 s3, s{S_TB}, 16")
    a(f"s_lshl_b32 s61, s{LW}, 14")
    a("s_add_u32 s3, s3, s61")
    a(f"s_lshl_b32 s61, s{S_J}, 7")
    a("s_add_u32 s3, s3, s61")
    a("v_add_u32 v9, s3, v9")
    a("v_lshrrev_b32 v4, 1, v0")
    a("v_min_u32 v4, 14, v4")
    a("v_lshlrev_b32 v4, 9, v4")
    a("v_and_b32 v5, 1, v0")
    a("v_lshl_add_u32 v4, v5, 8, v4")
    a(f"s_lshr_b32 s3, s{S_TB}, 1")
    a("s_lshl_b32 s3, s3, 13")
    a(f"s_and_b32 s61, s{S_TB}, 1")
    a("s_lshl_b32 s61, s61, 7")
    a("s_add_u32 s3, s3, s61")
    a(f"s_add_u32 s3, s3, {SY_HF}")
    a("v_add_u32 v22, s3, v4")
    a("v_bfe_u32 v4, v0, 1, 2")
    a("v_lshlrev_b32 v4, 3, v4")
    a("v_add_u32 v4, v4, v5")
    a(f"s_lshl_b32 s3, s{LW}, 1")
    a("v_add_u32 v4, s3, v4")
    a("v_lshlrev_b32 v4, 7, v4")
    a(f"s_lshl_b32 s3, s{S_TB}, 12")
    a(f"s_add_u32 s3, s3, {SY_OF}")
    a("v_add_u32 v23, s3, v4")
    a("s_barrier")
    a("s_barrier")
    a("s_setprio 0")
    for k in range(6 if "now2" not in opt else 0, 9): dma_w(k)
    vm.issue(f"buffer_load_dwordx4 {v(XR,4)}, v9, s[36:39], 0 offen", "x")
    vm.issue(f"buffer_load_dwordx4 {v(XR+4,4)}, v9, s[36:39], 0 offen offset:64", "x")
    ts("l")
    poll("ph", 22, 24)
    vm.done = vm.n
    ts("l")
    for k in range(D): load_b(k)
    lg = Counter(a, "lgkmcnt", 12)
    def rd_w2(k):
        b, o = slot_off(k)
        for u in range(4):
            for hf in range(2):
                lg.issue(f"ds_read_b64_tr_b16 {v(GW+16*(k%2)+4*u+2*hf,2)}, {v(10+4*b+u)} offset:{o + hf*2048}", ("w", k, u))
    def mm(k):
        for u in range(4):
            lg.wait(("w", k, u))
            for i in range(4):
                acc = v(G_ACC + 4 * (4 * u + i), 4)
                a(f"v_mfma_f32_16x16x32_bf16 {acc}, {v(GW+16*(k%2)+4*u,4)}, {v(BF+16*(k%D)+4*i,4)}, {acc}")
    for k in range(NH):
        vm.wait(("w", k))
        rd_w2(k)
        vm.wait(("b", k))
        mm(k)
        if k + D < NH:
            load_b(k + D)
        if k + NS < NT:
            dma_w(k + NS)
    ts("l", lg)
    poll("po", 23, 24)
    vm.done = vm.n
    ts("l", lg)
    for k in range(NH, NT):
        load_b(k)
    for k in range(NH, NT):
        rd_w2(k)
        vm.wait(("b", k))
        mm(k)
    ts("l", lg)
    a("v_lshl_add_u32 v24, v0, 4, s56")
    a(f"v_add_u32 v25, {2*STG}, v24")
    a("s_nop 6")
    for t in range(16):
        if t < 12:
            a(f"ds_write_b128 v25, {v(G_ACC+4*t,4)} offset:{t*1024}")
        else:
            a(f"ds_write_b128 v24, {v(G_ACC+4*t,4)} offset:{(t-12)*1024}")
    srd(a, 40, S_OUT, 2048 * 1024)
    a("s_waitcnt lgkmcnt(0)")
    a("s_barrier")
    a("v_lshrrev_b32 v4, 1, v3")
    a("v_and_b32 v5, 1, v3")
    a("v_lshlrev_b32 v5, 9, v5")
    a("v_lshl_add_u32 v5, v8, 4, v5")
    a(f"s_lshl_b32 s3, s{LW}, 10")
    a(f"s_add_u32 s3, s3, {SB}")
    a("v_add_u32 v5, s3, v5")
    a("v_lshl_add_u32 v6, v4, 12, v5")
    a(f"v_add_u32 v6, {2*STG}, v6")
    a("v_cmp_eq_u32 vcc, 0, v4")
    a(f"v_add_u32 v7, {2*STG + 8192}, v5")
    a("s_nop 0")
    a("v_cndmask_b32 v7, v5, v7, vcc")
    for pw in range(4):
        for h2 in range(2):
            for e in range(2):
                a(f"ds_read_b128 {v(128+16*pw+8*h2+4*e,4)}, {v(6+h2)} offset:{pw*12288 + e*256}")
    for d in range(8):
        a(f"v_lshlrev_b32 {v(96+2*d)}, 16, {v(XR+d)}")
        a(f"v_and_b32 {v(97+2*d)}, 0xffff0000, {v(XR+d)}")
    for pw in range(4):
        a(f"s_waitcnt lgkmcnt({12-4*pw})")
        for e in range(0, 16, 2):
            a(f"v_pk_add_f32 {v(96+e,2)}, {v(96+e,2)}, {v(128+16*pw+e,2)}")
    for d in range(8):
        a(f"v_cvt_pk_bf16_f32 {v(112+d)}, {v(96+2*d)}, {v(97+2*d)}")
    a(f"buffer_store_dwordx4 v[112:115], v9, s[40:43], 0 offen")
    a(f"buffer_store_dwordx4 v[116:119], v9, s[40:43], 0 offen offset:64")
    ts_dump("l")
    a.label(L("end"))
    a("s_endpgm")
```

```python
from asmlib import *

WS_QK = 0
WS_VT = 4 << 20
WS_H = 6 << 20
NSLAB_H = 43
WS_O = WS_H + NSLAB_H * 131072
WS_FLAG = 14 << 20

STG = 53248
XB = 16384
IMG = 12288
STAT = 0
SB = 4096
ST_M = STAT
ST_RS = STAT + 512
ST_CS = STAT + 1024
K1_LDS = SB + 3 * STG

ACC = 112
WF = 76
XF = 44

def bf16_round(a, r, tmp=None):
    a(f"v_cvt_pk_bf16_f32 {v(r)}, {v(r)}, {v(r)}")
    a(f"v_lshlrev_b32 {v(r)}, 16, {v(r)}")

def k1_body(a, name, st="", timing=False, opt=()):
    L = lambda x: f"{name}_{x}"
    a("s_cmp_ge_u32 s2, 256")
    a(f"s_cbranch_scc1 {L('end')}")
    a("s_load_dwordx4 s[4:7], s[0:1], 0")
    a("s_load_dwordx4 s[8:11], s[0:1], 32")
    a("s_load_dwordx2 s[12:13], s[0:1], 72")
    if timing:
        a("s_memtime s[60:61]")
        a("s_memrealtime s[96:97]")
    a("s_and_b32 s3, s2, 7")
    a("s_lshr_b32 s17, s2, 3")
    a("s_and_b32 s14, s3, 1")
    a("s_lshl_b32 s14, s14, 3")
    a("s_and_b32 s18, s17, 7")
    a("s_add_u32 s14, s14, s18")
    a("s_lshr_b32 s15, s3, 1")
    a("s_lshl_b32 s15, s15, 2")
    a("s_lshr_b32 s18, s17, 3")
    a("s_add_u32 s15, s15, s18")
    a("v_lshrrev_b32 v1, 6, v0")
    a("v_and_b32 v0, 63, v0")
    a("s_nop 0")
    a("v_readfirstlane_b32 s16, v1")
    a("s_waitcnt lgkmcnt(0)")
    srd(a, 20, 4, 2048 * 1024)
    srd(a, 24, 6, 512 * 3072)
    srd(a, 28, 8, 512 * 2752)
    srd(a, 32, 10, 512 * 2752)
    srd(a, 36, 12, 4 << 20, WS_QK)
    srd(a, 40, 12, 2 << 20, WS_VT)
    srd(a, 44, 12, NSLAB_H * 131072, WS_H)
    a("s_cmp_ge_u32 s16, 4")
    a(f"s_cbranch_scc1 {L('loader')}")

    a("s_and_b32 s17, s16, 1")
    a("s_lshr_b32 s18, s16, 1")
    a("v_and_b32 v1, 15, v0")
    a("v_lshrrev_b32 v2, 4, v0")
    a("v_lshrrev_b32 v3, 1, v1")
    a("v_xor_b32 v3, v3, v2")
    a("v_lshlrev_b32 v3, 4, v3")
    a("s_lshl_b32 s19, s17, 13")
    a("v_lshl_add_u32 v3, v1, 7, v3")
    a(f"s_add_u32 s19, s19, {SB}")
    a("v_add_u32 v10, s19, v3")
    a("v_xor_b32 v11, 64, v10")
    a("v_bfe_u32 v4, v0, 2, 2")
    a("v_lshl_add_u32 v4, v2, 3, v4")
    a("v_mul_u32_u24 v4, 192, v4")
    a("v_and_b32 v5, 3, v0")
    a("v_lshl_add_u32 v4, v5, 3, v4")
    a(f"v_add_u32 v4, {SB+XB}, v4")
    a("v_and_b32 v5, 1, v2")
    a("v_lshlrev_b32 v5, 5, v5")
    a("s_lshl_b32 s19, s18, 7")
    a("v_add3_u32 v12, v4, v5, s19")
    a("v_xor_b32 v6, 32, v5")
    a("v_add3_u32 v13, v4, v6, s19")
    a("s_lshl_b32 s19, s18, 5")
    a("v_xor_b32 v6, s19, v5")
    a("v_add_u32 v6, 64, v6")
    a("v_add_u32 v14, v4, v6")
    for b in (1, 2):
        for i in range(5):
            a(f"v_add_u32 {v(10+5*b+i)}, {STG*b}, {v(10+i)}")
    for i in range(144):
        a(f"v_mov_b32 {v(ACC+i)}, 0")

    def rd_x(buf, ks, xb):
        out = []
        for i in range(4):
            out.append(f"ds_read_b128 {v(XF+16*xb+4*i,4)}, {v(10+5*buf+ks)} offset:{i*2048}")
        return out
    def rd_w(buf, ks, j):
        img, p = j // 3, j % 3
        addr = 10 + 5 * buf + 2 + p
        return [f"ds_read_b64_tr_b16 {v(WF+4*j+2*hf,2)}, {v(addr)} offset:{img*IMG + ks*6144 + hf*768}" for hf in range(2)]
    def mfma(j, i, xb):
        acc = v(ACC + 4 * (4 * j + i), 4)
        w = v(WF + 4 * j, 4); x = v(XF + 16 * xb + 4 * i, 4)
        if j == 2:
            return f"v_mfma_f32_16x16x32_bf16 {acc}, {x}, {w}, {acc}"
        return f"v_mfma_f32_16x16x32_bf16 {acc}, {w}, {x}, {acc}"

    lg = Counter(a, "lgkmcnt", 12)
    def issue_x(step, lo, hi):
        buf, ks = (step // 2) % 3, step % 2
        for i, l in enumerate(rd_x(buf, ks, step % 2)):
            if "nords" in opt and step > 0: l = "s_nop 0"
            if lo <= i < hi: lg.issue(l, ("x", step, i))
    def issue_w(step, j):
        buf, ks = (step // 2) % 3, step % 2
        for l in rd_w(buf, ks, j):
            if "nords" in opt and step > 0: l = "s_nop 0"
            lg.issue(l, ("w", step, j))
    TS = [0]
    def ts():
        if timing:
            a(f"s_memtime s[{70+2*TS[0]}:{71+2*TS[0]}]")
            a("s_waitcnt lgkmcnt(0)")
            lg.done = lg.n
            TS[0] += 1
    ts()
    a("s_barrier")
    ts()
    issue_x(0, 0, 4)
    for j in range(9):
        if j == 5: lg.wait(("w", 0, 0))
        issue_w(0, j)
    for step in range(16):
        sidx, ks = step // 2, step % 2
        xb = step % 2
        nstep = step + 1
        has_next = nstep < 16
        for j in range(9):
            lg.wait(("w", step, j), ("x", step, 3))
            for i in range(4):
                if "nomfma" not in opt: a(mfma(j, i, xb))
            if ks == 1 and j == 0:
                continue
            if ks == 1 and j == 1:
                lg.wait_all()
                a("s_barrier")
                ts()
                if has_next:
                    issue_w(nstep, 0)
            if has_next:
                if j in (2, 3):
                    issue_x(nstep, 2*(j-2), 2*(j-2)+2)
                issue_w(nstep, j)
    a("s_barrier")
    if timing:
        a("s_memtime s[62:63]")
    a("s_lshl_b32 s19, s17, 8")
    a("v_lshl_add_u32 v3, v1, 2, s19")
    for i in range(4):
        a(f"ds_read_b32 {v(44+i)}, v3 offset:{ST_M + 64*i}")
        a(f"ds_read_b32 {v(48+i)}, v3 offset:{ST_RS + 64*i}")
    a("s_lshl_b32 s19, s18, 8")
    a("v_lshl_add_u32 v4, v2, 4, s19")
    a("s_lshl_b32 s19, s18, 6")
    a("v_lshl_add_u32 v5, v2, 4, s19")
    a("v_lshl_add_u32 v6, v1, 2, s19")
    for j in range(9):
        img, p = j // 3, j % 3
        if j == 2:
            a(f"ds_read_b32 {v(WF+4*j)}, v6 offset:{ST_CS + 128}")
        elif p < 2:
            a(f"ds_read_b128 {v(WF+4*j,4)}, v4 offset:{ST_CS + img*384 + p*64}")
        else:
            a(f"ds_read_b128 {v(WF+4*j,4)}, v5 offset:{ST_CS + img*384 + 128}")
    a("s_lshl_b32 s19, s17, 8")
    a("v_lshl_add_u32 v7, v2, 4, s19")
    a("s_cmp_lt_u32 s15, 8")
    a("s_cselect_b32 s50, 0x3eb8aa3b, 1.0")
    a("s_lshl_b32 s51, s15, 2")
    a("s_lshl_b32 s19, s18, 1")
    a("s_add_u32 s51, s51, s19")
    a("s_lshl_b32 s51, s51, 16")
    a("s_lshl_b32 s19, s14, 12")
    a("s_add_u32 s51, s51, s19")
    a("s_lshl_b32 s52, s17, 11")
    a("s_add_u32 s51, s51, s52")
    a("s_add_u32 s52, s52, s19")
    a("s_lshl_b32 s19, s15, 1")
    a("s_add_u32 s19, s19, s18")
    a("s_lshl_b32 s19, s19, 16")
    a("s_add_u32 s52, s52, s19")
    a("v_lshlrev_b32 v8, 5, v1")
    a("v_lshl_add_u32 v8, v2, 3, v8")
    a("s_add_u32 s53, s51, 0x10000")
    a("s_mul_i32 s54, s15, 3")
    a("s_lshl_b32 s19, s18, 1")
    a("s_add_u32 s55, s54, s19")
    a("s_add_u32 s54, s54, 1")
    a("s_lshl_b32 s55, s55, 17")
    a("s_lshl_b32 s54, s54, 17")
    a("s_lshl_b32 s19, s14, 13")
    a("s_add_u32 s55, s55, s19")
    a("s_add_u32 s54, s54, s19")
    a("s_lshl_b32 s19, s17, 12")
    a("s_add_u32 s55, s55, s19")
    a("s_add_u32 s54, s54, s19")
    a("s_lshl_b32 s19, s18, 3")
    a("s_add_u32 s54, s54, s19")
    a("v_lshlrev_b32 v9, 4, v0")
    a("s_waitcnt lgkmcnt(0)")
    for i in range(4):
        a(f"ds_read_b128 {v(10+8*i,4)}, v7 offset:{ST_M + 64*i}")
        a(f"ds_read_b128 {v(14+8*i,4)}, v7 offset:{ST_RS + 64*i}")
    for i in range(4):
        a(f"v_mul_f32 {v(52+i)}, s50, {v(48+i)}")
        a(f"v_mul_f32 {v(56+i)}, {v(48+i)}, {v(48+i)}")
    A = lambda j, i, r: ACC + 4 * (4 * j + i) + r
    T = 60
    for j in (0, 1):
        for i in range(4):
            for r in range(4):
                a(f"v_fma_f32 {v(A(j,i,r))}, {v(44+i)}, {v(WF+4*j+r)}, {v(A(j,i,r))}")
            for r in range(4):
                a(f"v_mul_f32 {v(A(j,i,r))}, {v(52+i)}, {v(A(j,i,r))}")
            a(f"v_cvt_pk_bf16_f32 {v(A(j,i,0))}, {v(A(j,i,0))}, {v(A(j,i,1))}")
            a(f"v_cvt_pk_bf16_f32 {v(A(j,i,1))}, {v(A(j,i,2))}, {v(A(j,i,3))}")
            a(f"buffer_store_dwordx2 {v(A(j,i,0),2)}, v8, s[36:39], {s(51 if j==0 else 53)} offen offset:{512*i} {st}")
    for i in range(4):
        for p in range(3):
            for r in range(4):
                a(f"v_fma_f32 {v(A(3+p,i,r))}, {v(44+i)}, {v(WF+4*(3+p)+r)}, {v(A(3+p,i,r))}")
                a(f"v_fma_f32 {v(A(6+p,i,r))}, {v(44+i)}, {v(WF+4*(6+p)+r)}, {v(A(6+p,i,r))}")
            for r in range(4):
                a(f"v_max_f32 {v(A(3+p,i,r))}, 0, {v(A(3+p,i,r))}")
                a(f"v_mul_f32 {v(A(6+p,i,r))}, {v(56+i)}, {v(A(6+p,i,r))}")
            for r in range(4):
                a(f"v_mul_f32 {v(A(3+p,i,r))}, {v(A(3+p,i,r))}, {v(A(6+p,i,r))}")
        d = A(6, i, 0)
        a(f"v_cvt_pk_bf16_f32 {v(d+0)}, {v(A(3,i,0))}, {v(A(3,i,1))}")
        a(f"v_cvt_pk_bf16_f32 {v(d+1)}, {v(A(3,i,2))}, {v(A(3,i,3))}")
        a(f"v_cvt_pk_bf16_f32 {v(d+2)}, {v(A(4,i,0))}, {v(A(4,i,1))}")
        a(f"v_cvt_pk_bf16_f32 {v(d+3)}, {v(A(4,i,2))}, {v(A(4,i,3))}")
        a(f"buffer_store_dwordx4 {v(d,4)}, v9, s[44:47], s55 offen offset:{1024*i} {st}")
        d = A(7, i, 0)
        a(f"v_cvt_pk_bf16_f32 {v(d+0)}, {v(A(5,i,0))}, {v(A(5,i,1))}")
        a(f"v_cvt_pk_bf16_f32 {v(d+1)}, {v(A(5,i,2))}, {v(A(5,i,3))}")
        a(f"buffer_store_dwordx2 {v(d,2)}, v9, s[44:47], s54 offen offset:{1024*i} {st}")
    a("s_waitcnt lgkmcnt(0)")
    for i in range(4):
        for r in range(4):
            a(f"v_fma_f32 {v(A(2,i,r))}, {v(10+8*i+r)}, {v(WF+8)}, {v(A(2,i,r))}")
        for r in range(4):
            a(f"v_mul_f32 {v(A(2,i,r))}, {v(14+8*i+r)}, {v(A(2,i,r))}")
        a(f"v_cvt_pk_bf16_f32 {v(A(2,i,0))}, {v(A(2,i,0))}, {v(A(2,i,1))}")
        a(f"v_cvt_pk_bf16_f32 {v(A(2,i,1))}, {v(A(2,i,2))}, {v(A(2,i,3))}")
        a(f"buffer_store_dwordx2 {v(A(2,i,0),2)}, v8, s[40:43], s52 offen offset:{512*i} {st}")
    if timing:
        a("s_waitcnt vmcnt(0)")
        a("s_memtime s[64:65]")
        a("s_memrealtime s[98:99]")
        a("s_waitcnt lgkmcnt(0)")
        a("s_sub_u32 s62, s62, s60")
        a("s_sub_u32 s64, s64, s60")
        a("v_mov_b32 v4, s62")
        a("v_mov_b32 v5, s64")
        a("s_lshl_b32 s19, s2, 5")
        a("s_lshl_b32 s3, s16, 3")
        a("s_add_u32 s19, s19, s3")
        a("s_add_u32 s19, s19, 0x1000000")
        a("v_mov_b32 v3, s19")
        srd(a, 36, 12, 32 << 20, 0)
        a("buffer_store_dwordx2 v[4:5], v3, s[36:39], 0 offen")
        a("s_lshl_b32 s19, s2, 8")
        a("s_lshl_b32 s3, s16, 6")
        a("s_add_u32 s19, s19, s3")
        a("s_add_u32 s19, s19, 0x1100000")
        a("v_mov_b32 v3, s19")
        a("v_mov_b32 v4, s96")
        a("v_mov_b32 v5, s98")
        a("buffer_store_dwordx2 v[4:5], v3, s[36:39], 0 offen offset:56")
        a("s_nop 1")
        for q in range(TS[0]):
            a(f"s_sub_u32 s62, s{70+2*q}, s60")
            a("v_mov_b32 v4, s62")
            a(f"buffer_store_dword v4, v3, s[36:39], 0 offen offset:{4*q}")
            a("s_nop 1")
    a(f"s_branch {L('end')}")

    a.label(L("loader"))
    a("s_sub_u32 s16, s16, 4")
    srd(a, 36, 12, 32768, WS_FLAG)
    a("s_lshl_b32 s17, s2, 7")
    a("v_mov_b32 v1, s17")
    a("v_mov_b32 v2, 0")
    a("buffer_store_dword v2, v1, s[36:39], 0 offen")
    a("v_lshrrev_b32 v1, 3, v0")
    a("v_and_b32 v2, 7, v0")
    a("s_lshl_b32 s17, s14, 7")
    a("s_lshl_b32 s18, s16, 5")
    a("s_add_u32 s17, s17, s18")
    for i in range(4):
        a(f"v_add_u32 v3, {8*i}, v1")
        a("v_lshrrev_b32 v4, 1, v3")
        a("v_and_b32 v4, 7, v4")
        a("v_xor_b32 v4, v4, v2")
        a("v_add_u32 v3, s17, v3")
        a("v_lshlrev_b32 v3, 10, v3")
        a(f"v_lshl_add_u32 {v(10+i)}, v4, 4, v3")
    a("s_lshl_b32 s17, s16, 4")
    a("s_mul_i32 s18, s15, 192")
    a("s_lshl_b32 s19, s15, 7")
    a("s_lshl_b32 s48, s15, 6")
    a("s_add_u32 s48, s48, 2048")
    a("s_movk_i32 s49, 2752")
    a("s_movk_i32 s50, 3072")
    for b in range(3):
        a(f"v_add_u32 v3, {64*b}, v0")
        a("v_mul_u32_u24 v4, 171, v3")
        a("v_lshrrev_b32 v4, 11, v4")
        a("v_mul_u32_u24 v5, 12, v4")
        a("v_sub_u32 v5, v3, v5")
        a("v_lshrrev_b32 v6, 3, v4")
        a("v_lshlrev_b32 v6, 1, v6")
        a("v_xor_b32 v5, v5, v6")
        a("v_add_u32 v4, s17, v4")
        a("v_mul_lo_u32 v6, v4, s49")
        a("v_lshl_add_u32 v6, v5, 4, v6")
        a(f"v_add_u32 {v(17+b)}, s18, v6")
        a("v_mul_lo_u32 v6, v4, s50")
        a("v_subrev_u32 v7, 4, v5")
        a("v_cmp_gt_u32 vcc, 4, v5")
        a("s_nop 1")
        a("v_cndmask_b32 v7, v7, v5, vcc")
        a("v_lshl_add_u32 v6, v7, 4, v6")
        a("v_lshrrev_b32 v7, 2, v5")
        a("v_cmp_eq_u32 vcc, 1, v7")
        a("v_mov_b32 v8, s19")
        a("v_mov_b32 v9, s48")
        a("v_cndmask_b32 v8, v8, v9, vcc")
        a(f"v_add_u32 {v(14+b)}, v6, v8")
    a("s_lshl_b32 s51, s16, 12")
    a(f"s_add_u32 s51, s51, {SB}")
    a("s_mul_i32 s52, s16, 3072")
    a(f"s_add_u32 s52, s52, {SB+XB}")

    def dma(stage):
        buf = stage % 3
        a(f"s_movk_i32 s53, {stage*128}")
        a(f"s_mov_b32 s54, {stage*64*3072}")
        a(f"s_mov_b32 s55, {stage*64*2752}")
        for i in range(4):
            a(f"s_add_u32 m0, s51, {buf*STG + i*1024}")
            a("s_nop 0")
            a(f"buffer_load_dwordx4 {v(10+i)}, s[20:23], s53 offen lds")
        for img in range(3):
            for b in range(3):
                a(f"s_add_u32 m0, s52, {buf*STG + img*IMG + b*1024}")
                a("s_nop 0")
                if img == 0:
                    a(f"buffer_load_dwordx4 {v(14+b)}, s[24:27], s54 offen lds")
                else:
                    a(f"buffer_load_dwordx4 {v(17+b)}, {s(24+4*img,4)}, s55 offen lds")
    for stg in range(2):
        dma(stg)
    a("v_lshl_add_u32 v20, v0, 4, s51")
    a("v_lshrrev_b32 v2, 4, v0")
    a("v_bfe_u32 v4, v0, 2, 2")
    a("v_lshl_add_u32 v4, v2, 3, v4")
    a("v_mul_u32_u24 v4, 192, v4")
    a("v_and_b32 v5, 3, v0")
    a("v_lshl_add_u32 v4, v5, 3, v4")
    a(f"v_add_u32 v4, {SB+XB}, v4")
    a("v_and_b32 v5, 1, v2")
    a("v_lshlrev_b32 v5, 5, v5")
    for i in range(5):
        if i < 4:
            a(f"s_add_u32 s56, s16, {4*i}")
        else:
            a("s_and_b32 s56, s16, 1")
            a("s_add_u32 s56, s56, 16")
        a(f"s_mov_b32 {s(64+i)}, s56")
        a("s_mul_i32 s57, s56, 43")
        a("s_lshr_b32 s57, s57, 8")
        a("s_mul_i32 s58, s57, 6")
        a("s_sub_u32 s58, s56, s58")
        a("s_lshl_b32 s58, s58, 5")
        a(f"s_mul_i32 s57, s57, {IMG}")
        a("v_xor_b32 v6, s58, v5")
        a(f"v_add3_u32 {v(21+i)}, v4, v6, s57")
    for r in range(30, 43):
        a(f"v_mov_b32 {v(r)}, 0")
    a("s_mov_b32 s59, 0x3f803f80")
    XD = 48
    WD = 64
    def stats(stage):
        buf = stage % 3
        base = buf * STG
        a(f"v_add_u32 v26, {base}, v20")
        for i in range(4):
            a(f"ds_read_b128 {v(XD+4*i,4)}, v26 offset:{i*1024}")
        for i in range(5):
            a(f"v_add_u32 v27, {base}, {v(21+i)}")
            for q in range(4):
                a(f"ds_read_b64_tr_b16 {v(WD+8*i+2*q,2)}, v27 offset:{(q>>1)*6144 + (q&1)*768}")
            if i == 1 and "noxs" not in opt:
                a("s_waitcnt lgkmcnt(8)")
                for k in range(4):
                    for r in range(4):
                        d = XD+4*k+r
                        if "dot" in opt:
                            a(f"v_dot2c_f32_bf16 {v(30+k)}, s59, {v(d)}")
                            a(f"v_dot2c_f32_bf16 {v(34+k)}, {v(d)}, {v(d)}")
                        else:
                            a(f"v_lshlrev_b32 v28, 16, {v(d)}")
                            a(f"v_and_b32 v29, 0xffff0000, {v(d)}")
                            a(f"v_add_f32 {v(30+k)}, {v(30+k)}, v28")
                            a(f"v_fmac_f32 {v(34+k)}, v28, v28")
                            a(f"v_add_f32 {v(30+k)}, {v(30+k)}, v29")
                            a(f"v_fmac_f32 {v(34+k)}, v29, v29")
        for i in range(5):
            a(f"s_waitcnt lgkmcnt({min(12,4*(4-i))})")
            if "nocs" in opt: continue
            for r in range(8):
                d = WD+8*i+r
                if "dot" in opt:
                    a(f"v_dot2c_f32_bf16 {v(38+i)}, s59, {v(d)}")
                else:
                    a(f"v_lshlrev_b32 v28, 16, {v(d)}")
                    a(f"v_and_b32 v29, 0xffff0000, {v(d)}")
                    a(f"v_add_f32 {v(38+i)}, {v(38+i)}, v28")
                    a(f"v_add_f32 {v(38+i)}, {v(38+i)}, v29")
    a("s_waitcnt vmcnt(13)")
    a("s_barrier")
    for sidx in range(8):
        if sidx + 2 < 8 and ("nodma" not in opt or sidx == 0):
            dma(sidx + 2)
        if "nostats" not in opt: stats(sidx)
        if sidx + 1 < 8:
            a(f"s_waitcnt vmcnt({13 if sidx + 2 < 8 else 0})")
        a("s_barrier")
    a("s_nop 4")
    for k in range(8):
        r = 30 + k
        a(f"v_add_f32_dpp {v(r)}, {v(r)}, {v(r)} quad_perm:[1,0,3,2] row_mask:0xf bank_mask:0xf")
    a("s_nop 1")
    for k in range(8):
        r = 30 + k
        a(f"v_add_f32_dpp {v(r)}, {v(r)}, {v(r)} quad_perm:[2,3,0,1] row_mask:0xf bank_mask:0xf")
    a("s_nop 1")
    for k in range(8):
        r = 30 + k
        a(f"v_add_f32_dpp {v(r)}, {v(r)}, {v(r)} row_half_mirror row_mask:0xf bank_mask:0xf")
    a("s_mov_b32 s56, 0x3b000000")
    a("s_mov_b32 s57, 0x3727c5ac")
    a("v_lshrrev_b32 v1, 3, v0")
    a("s_lshl_b32 s58, s16, 7")
    a("v_lshl_add_u32 v1, v1, 2, s58")
    for k in range(4):
        m, q = 30 + k, 34 + k
        a(f"v_mul_f32 {v(m)}, s56, {v(m)}")
        a(f"v_mul_f32 {v(q)}, s56, {v(q)}")
        a(f"v_fma_f32 {v(q)}, -{v(m)}, {v(m)}, {v(q)}")
        a(f"v_max_f32 {v(q)}, 0, {v(q)}")
        bf16_round(a, q)
        a(f"v_add_f32 {v(q)}, s57, {v(q)}")
        bf16_round(a, q)
        a(f"v_sqrt_f32 {v(q)}, {v(q)}")
        a("s_nop 0")
        bf16_round(a, q)
        a(f"v_rcp_f32 {v(q)}, {v(q)}")
        bf16_round(a, m)
        a(f"v_xor_b32 {v(m)}, 0x80000000, {v(m)}")
        a(f"ds_write_b32 v1, {v(m)} offset:{ST_M + 32*k}")
        a(f"ds_write_b32 v1, {v(q)} offset:{ST_RS + 32*k}")
    a("v_and_b32 v2, 15, v0")
    a("v_lshlrev_b32 v2, 2, v2")
    for i in range(5):
        r = 38 + i
        a(f"v_mov_b32 v3, {v(r)}")
        a("s_nop 1")
        a(f"v_permlane32_swap_b32 {v(r)}, v3")
        a("s_nop 1")
        a(f"v_add_f32 {v(r)}, {v(r)}, v3")
        a(f"v_mov_b32 v3, {v(r)}")
        a("s_nop 1")
        a(f"v_permlane16_swap_b32 {v(r)}, v3")
        a("s_nop 1")
        a(f"v_add_f32 {v(r)}, {v(r)}, v3")
        a(f"s_lshl_b32 s58, {s(64+i)}, 6")
        a("v_add_u32 v4, s58, v2")
        a(f"ds_write_b32 v4, {v(r)} offset:{ST_CS}")
    a("s_waitcnt lgkmcnt(0)")
    a("s_barrier")
    a.label(L("end"))
    a("s_endpgm")
```

```python
from asmlib import *
from k1 import WS_QK, WS_VT, WS_H, WS_O, NSLAB_H, WS_FLAG

D = 4
RING = (D + 1) * 4096
SLEEP = 4
LB = 256
K2_LDS = LB + 4 * RING

def k2_body(a, name, ld="", timing=False, opt=()):
    L = lambda x: f"{name}_{x}"
    a("s_cmp_ge_u32 s2, 256")
    a(f"s_cbranch_scc1 {L('end')}")
    a("s_load_dwordx2 s[4:5], s[0:1], 0")
    a("s_load_dwordx2 s[6:7], s[0:1], 16")
    a("s_load_dwordx4 s[8:11], s[0:1], 48")
    a("s_load_dwordx4 s[12:15], s[0:1], 64")
    if timing:
        a("s_memtime s[60:61]")
        a("s_memrealtime s[56:57]")
    a("s_and_b32 s3, s2, 7")
    a("s_lshr_b32 s19, s2, 3")
    a("s_lshl_b32 s17, s3, 2")
    a("s_and_b32 s18, s19, 3")
    a("s_add_u32 s17, s17, s18")
    a("s_lshr_b32 s18, s19, 2")
    a("v_lshrrev_b32 v1, 6, v0")
    a("v_and_b32 v0, 63, v0")
    a("v_mov_b32 v2, 0")
    a("v_readfirstlane_b32 s16, v1")
    a("ds_write_b32 v2, v2")
    a("s_waitcnt lgkmcnt(0)")
    srd(a, 20, 14, 32768, WS_FLAG)
    srd(a, 24, 14, 16 * 131072, WS_O)
    a("s_cmp_ge_u32 s16, 4")
    a(f"s_cbranch_scc1 {L('attn')}")

    srd(a, 28, 14, NSLAB_H * 131072, WS_H)
    srd(a, 32, 8, 1376 * 1024)
    srd(a, 36, 6, 512 * 1024)
    srd(a, 40, 4, 2048 * 1024)
    srd(a, 44, 10, 2048 * 1024)
    ACC = 192
    BF = 128
    WF = 96
    XR = 88
    a("s_lshl_b32 s19, s17, 12")
    a("v_lshl_add_u32 v1, v0, 4, s19")
    a("v_lshrrev_b32 v3, 3, v0")
    a("v_and_b32 v4, 7, v0")
    a("v_and_b32 v5, 6, v3")
    a("v_xor_b32 v4, v4, v5")
    a("v_lshlrev_b32 v4, 4, v4")
    a("v_lshl_add_u32 v4, v3, 10, v4")
    a("s_lshl_b32 s19, s18, 7")
    a("v_add_u32 v2, s19, v4")
    a(f"s_mul_i32 s48, s16, {RING}")
    a(f"s_add_u32 s48, s48, {LB}")
    a("s_lshl_b32 s49, s16, 15")
    a("s_lshl_b32 s50, s16, 17")
    vm = Counter(a, "vmcnt", 60)
    lg = Counter(a, "lgkmcnt", 12)
    NH = 11; NO = 4; NT = NH + NO
    def dma_w(k):
        slot = k % (D + 1)
        for q in range(4):
            a(f"s_add_u32 m0, s48, {slot*4096 + q*1024}")
            if k < NH:
                a(f"s_add_u32 s51, s49, {k*4*32768 + q*8192}")
                vm.issue(f"buffer_load_dwordx4 v2, s[32:35], s51 offen lds", ("w", k))
            else:
                a(f"s_add_u32 s51, s49, {(k-NH)*4*32768 + (16*(q&1) + 8*(q>>1))*1024}")
                vm.issue(f"buffer_load_dwordx4 v2, s[36:39], s51 offen lds", ("w", k))
    def load_b(k):
        if k < NH:
            a(f"s_add_u32 s52, s50, {k*4*131072}")
            for i in range(4):
                vm.issue(f"buffer_load_dwordx4 {v(BF+16*(k%D)+4*i,4)}, v1, s[28:31], s52 offen offset:{1024*i} {ld}", ("b", k))
        else:
            a(f"s_add_u32 s52, s50, {(k-NH)*4*131072}")
            for i in range(4):
                vm.issue(f"buffer_load_dwordx4 {v(BF+16*(k%D)+4*i,4)}, v1, s[24:27], s52 offen offset:{1024*i} sc1", ("b", k))
    a("s_barrier")
    for k in range(D):
        dma_w(k); load_b(k)
    a("v_lshrrev_b32 v3, 4, v0")
    a("v_bfe_u32 v4, v0, 2, 2")
    a("v_lshl_add_u32 v5, v3, 2, v4")
    a("v_bfe_u32 v6, v5, 1, 2")
    a("v_and_b32 v7, 3, v0")
    a("v_lshlrev_b32 v7, 3, v7")
    a("v_lshl_add_u32 v7, v5, 7, v7")
    a("v_add_u32 v7, s48, v7")
    for u in range(4):
        a(f"v_xor_b32 v8, {u}, v6")
        a(f"v_lshl_add_u32 {v(10+u)}, v8, 5, v7")
    for i in range(64):
        a(f"v_mov_b32 {v(ACC+i)}, 0")
    a("v_and_b32 v8, 15, v0")
    a("v_lshlrev_b32 v9, 10, v8")
    a("v_lshl_add_u32 v9, v3, 4, v9")
    a("s_lshl_b32 s19, s17, 16")
    a("s_lshl_b32 s53, s16, 14")
    a("s_add_u32 s19, s19, s53")
    a("s_lshl_b32 s53, s18, 7")
    a("s_add_u32 s19, s19, s53")
    a("v_add_u32 v9, s19, v9")
    def rd_w(k):
        slot = k % (D + 1)
        for u in range(4):
            for hf in range(2):
                lg.issue(f"ds_read_b64_tr_b16 {v(WF+16*(k%2)+4*u+2*hf,2)}, {v(10+u)} offset:{slot*4096 + hf*2048}", ("w", k, u))
    def mm(k):
        for u in range(4):
            lg.wait(("w", k, u))
            for i in range(4):
                acc = v(ACC + 4 * (4 * u + i), 4)
                a(f"v_mfma_f32_16x16x32_bf16 {acc}, {v(WF+16*(k%2)+4*u,4)}, {v(BF+16*(k%D)+4*i,4)}, {acc}")
    for k in range(NH):
        vm.wait(("w", k), ("b", k))
        rd_w(k)
        mm(k)
        nk = k + D
        if nk < NT:
            dma_w(nk)
        if nk < NH:
            load_b(nk)
    vm.issue(f"buffer_load_dwordx4 {v(XR,4)}, v9, s[40:43], 0 offen", "x")
    vm.issue(f"buffer_load_dwordx4 {v(XR+4,4)}, v9, s[40:43], 0 offen offset:64", "x")
    if timing:
        a("s_memtime s[62:63]")
    a("s_cmp_lg_u32 s16, 0")
    a(f"s_cbranch_scc1 {L('go')}")
    a("s_lshl_b32 s19, s17, 10")
    a("v_and_b32 v14, 7, v0")
    a("v_lshl_add_u32 v14, v14, 7, s19")
    a.label(L("poll"))
    a("buffer_load_dword v16, v14, s[20:23], 0 offen sc1")
    a("s_waitcnt vmcnt(0)")
    a("v_cmp_eq_u32 vcc, 1, v16")
    a("s_nop 3")
    a("s_cmp_eq_u64 vcc, -1")
    a(f"s_cbranch_scc1 {L('go')}")
    a(f"s_sleep {SLEEP}")
    a(f"s_branch {L('poll')}")
    a.label(L("go"))
    a("s_waitcnt vmcnt(0)")
    a("s_barrier")
    vm.done = vm.n
    if timing:
        a("s_memtime s[64:65]")
        a("s_waitcnt lgkmcnt(0)")
    for k in range(NH, NT):
        load_b(k)
    for k in range(NH, NT):
        rd_w(k)
        vm.wait(("b", k))
        mm(k)
    a("v_lshl_add_u32 v14, v0, 4, s48")
    a("s_nop 7")
    for t in range(16):
        a(f"ds_write_b128 v14, {v(ACC+4*t,4)} offset:{t*1024}")
    a("s_waitcnt lgkmcnt(0)")
    a("s_barrier")
    a("v_lshrrev_b32 v4, 1, v3")
    a("v_lshlrev_b32 v4, 12, v4")
    a("v_and_b32 v5, 1, v3")
    a("v_lshl_add_u32 v4, v5, 9, v4")
    a("v_lshl_add_u32 v4, v8, 4, v4")
    a("s_lshl_b32 s19, s16, 10")
    a(f"s_add_u32 s19, s19, {LB}")
    a("v_add_u32 v4, s19, v4")
    a(f"v_add_u32 v5, {2*RING}, v4")
    for pw in range(4):
        base = v(4) if pw < 2 else v(5)
        off = (pw % 2) * RING
        for h2 in range(2):
            for e in range(2):
                a(f"ds_read_b128 {v(128+16*pw+8*h2+4*e,4)}, {base} offset:{off + h2*8192 + e*256}")
    for d in range(8):
        a(f"v_lshlrev_b32 {v(96+2*d)}, 16, {v(XR+d)}")
        a(f"v_and_b32 {v(97+2*d)}, 0xffff0000, {v(XR+d)}")
    for pw in range(4):
        a(f"s_waitcnt lgkmcnt({12-4*pw})")
        for e in range(16):
            a(f"v_add_f32 {v(96+e)}, {v(96+e)}, {v(128+16*pw+e)}")
    for d in range(8):
        a(f"v_cvt_pk_bf16_f32 {v(112+d)}, {v(96+2*d)}, {v(97+2*d)}")
    a(f"buffer_store_dwordx4 v[112:115], v9, s[44:47], 0 offen")
    a(f"buffer_store_dwordx4 v[116:119], v9, s[44:47], 0 offen offset:64")
    if timing:
        a("s_waitcnt vmcnt(0)")
        a("s_memtime s[66:67]")
        a("s_memrealtime s[58:59]")
        a("s_waitcnt lgkmcnt(0)")
        srd(a, 36, 14, 64 << 20, 0)
        a("s_lshl_b32 s19, s2, 8")
        a("s_lshl_b32 s3, s16, 5")
        a("s_add_u32 s19, s19, s3")
        a("s_add_u32 s19, s19, 0x1200000")
        a("v_mov_b32 v3, s19")
        a("v_mov_b32 v4, s56")
        a("v_mov_b32 v5, s58")
        a("buffer_store_dwordx2 v[4:5], v3, s[36:39], 0 offen offset:24")
        a("s_nop 1")
        for q in range(3):
            a(f"s_sub_u32 s62, s{62+2*q}, s60")
            a("v_mov_b32 v4, s62")
            a(f"buffer_store_dword v4, v3, s[36:39], 0 offen offset:{4*q}")
            a("s_nop 1")
    a(f"s_branch {L('end')}")

    a.label(L("attn"))
    srd(a, 28, 14, 4 << 20, WS_QK)
    srd(a, 32, 14, 2 << 20, WS_VT)
    KF, VF, QF = 16, 56, 136
    S = [144, 160, 176]
    NM, O, P, MK = 192, 208, 224, 240
    a("s_sub_u32 s16, s16, 4")
    a("s_lshl_b32 s19, s18, 2")
    a("s_add_u32 s19, s19, s16")
    a("s_lshl_b32 s48, s19, 16")
    a("s_add_u32 s49, s48, 0x200000")
    a("s_lshl_b32 s50, s17, 6")
    a("v_and_b32 v1, 31, v0")
    a("v_lshrrev_b32 v2, 5, v0")
    a("v_lshlrev_b32 v3, 4, v2")
    vm = Counter(a, "vmcnt", 60)
    a("v_add_u32 v4, s50, v1")
    a("v_lshl_add_u32 v4, v4, 5, v3")
    for t in range(2):
        vm.issue(f"buffer_load_dwordx4 {v(QF+4*t,4)}, v4, s[28:31], s48 offen offset:{1024*t} {ld}", ("q", t))
    a("v_and_b32 v5, 0x13, v1")
    a("v_bfe_u32 v6, v1, 2, 1")
    a("v_lshl_or_b32 v5, v6, 3, v5")
    a("v_bfe_u32 v6, v1, 3, 1")
    a("v_lshl_or_b32 v5, v6, 2, v5")
    a("s_sub_u32 s51, s50, 256")
    a("v_add_u32 v5, s51, v5")
    for kt in range(10):
        a(f"v_add_u32 v6, {32*kt}, v5")
        a("v_max_i32 v6, 0, v6")
        a("v_lshl_add_u32 v6, v6, 5, v3")
        vm.issue(f"buffer_load_dwordx4 {v(KF+4*kt,4)}, v6, s[28:31], s49 offen {ld}", ("k", kt))
    a("v_lshl_add_u32 v7, v1, 5, v3")
    a("s_mov_b32 exec_lo, 0xffff")
    a("s_mov_b32 exec_hi, 0xffff")
    a("s_lshl_b32 s52, s51, 5")
    a("s_add_u32 s52, s52, s48")
    for kt in range(10):
        a(f"s_add_u32 s53, s52, {1024*kt}")
        a(f"s_cmp_ge_i32 s51, {-32*kt}")
        a("s_cselect_b32 s53, s53, 0x7fff0000")
        for hh in range(2):
            vm.issue(f"buffer_load_dwordx4 {v(VF+8*kt+4*hh,4)}, v7, s[32:35], s53 offen offset:{512*hh} {ld}", ("v", kt))
    a("s_barrier")
    a("s_mov_b32 exec_lo, 0xffff0000")
    a("s_mov_b32 exec_hi, 0xffff0000")
    for kt in range(10):
        a(f"s_cmp_ge_i32 s51, {-32*kt}")
        a("s_cselect_b32 s53, 0x3f803f80, 0")
        for r in range(8):
            a(f"v_mov_b32 {v(VF+8*kt+r)}, s53")
    a("s_mov_b64 exec, -1")
    a("v_lshlrev_b32 v8, 3, v2")
    a("v_sub_u32 v8, v1, v8")
    MS = 68
    for r in range(16):
        a(f"v_cmp_le_i32 {s(MS+2*r,2)}, {(r&7)+16*(r>>3)}, v8")
    a("v_mov_b32 v9, 0xffff")
    a("v_mov_b32 v10, 0xffff0000")
    for p in range(8):
        a(f"v_cndmask_b32 {v(MK+p)}, 0, v9, {s(MS+4*p,2)}")
        a(f"v_cndmask_b32 v11, 0, v10, {s(MS+4*p+2,2)}")
        a(f"v_or_b32 {v(MK+p)}, {v(MK+p)}, v11")
    a("v_and_b32 v12, 15, v1")
    a("v_lshl_add_u32 v12, v2, 4, v12")
    a("v_lshlrev_b32 v12, 4, v12")
    a("v_lshrrev_b32 v13, 4, v1")
    a("v_lshl_add_u32 v12, v13, 10, v12")
    a("s_and_b32 s53, s19, 1")
    a("s_lshl_b32 s53, s53, 9")
    a("v_add_u32 v12, s53, v12")
    a("s_lshr_b32 s54, s19, 1")
    a("s_lshl_b32 s54, s54, 17")
    a("s_lshl_b32 s53, s17, 12")
    a("s_add_u32 s54, s54, s53")

    def M(dst, kt, t, c):
        vm.wait(("k", kt), ("q", t))
        a(f"v_mfma_f32_32x32x16_bf16 {v(dst,16)}, {v(KF+4*kt,4)}, {v(QF+4*t,4)}, {c}")
    for t in range(2):
        far, diag = t, t + 8
        full = list(range(t + 1, t + 8))
        MX = 14
        M(O, far, t, "0")
        if timing:
            a(f"s_memtime s[{40+2*t}:{41+2*t}]")
        M(S[0], full[0], t, "0")
        M(S[1], full[1], t, "0")
        a("s_nop 7")
        def mx(src, first=False):
            for q in range(0, 16, 4):
                if first and q == 0:
                    a(f"v_max_f32 {v(MX)}, {v(src)}, {v(src+1)}")
                    a(f"v_max_f32 {v(MX+1)}, {v(src+2)}, {v(src+3)}")
                else:
                    a(f"v_max3_f32 {v(MX)}, {v(src+q)}, {v(src+q+1)}, {v(MX)}")
                    a(f"v_max3_f32 {v(MX+1)}, {v(src+q+2)}, {v(src+q+3)}, {v(MX+1)}")
        for n in range(7):
            if n + 2 < 7:
                M(S[(n + 2) % 3], full[n + 2], t, "0")
            elif n + 2 == 7:
                M(NM, diag, t, "0")
            if n == 0:
                a("s_nop 1")
            mx(S[n % 3], first=(n == 0))
        for r in range(16):
            a(f"v_cndmask_b32 {v(O+r)}, {v(O+r)}, {v(NM+r)}, {s(MS+2*r,2)}")
        mx(O)
        a(f"v_max_f32 {v(MX)}, {v(MX)}, {v(MX+1)}")
        a(f"v_mov_b32 {v(MX+1)}, {v(MX)}")
        a("s_nop 1")
        a(f"v_permlane32_swap_b32 {v(MX)}, {v(MX+1)}")
        a("s_nop 1")
        a(f"v_max_f32 {v(MX)}, {v(MX)}, {v(MX+1)}")
        for r in range(16):
            a(f"v_sub_f32 {v(NM+r)}, 0, {v(MX)}")
        a("s_nop 1")
        M(S[0], full[0], t, v(NM, 16))
        M(S[2], far, t, v(NM, 16))
        a("s_nop 9")
        first_pv = [True]
        def PV(kt, hh, preg):
            vm.wait(("v", kt))
            c = "0" if first_pv[0] else v(O, 16)
            first_pv[0] = False
            a(f"v_mfma_f32_32x32x16_bf16 {v(O,16)}, {v(VF+8*kt+4*hh,4)}, {v(preg+4*hh,4)}, {c}")
        for n in range(8):
            cur = S[n % 2]
            nxt = S[(n + 1) % 2]
            if n + 1 < 7:
                M(nxt, full[n + 1], t, v(NM, 16))
            elif n + 1 == 7:
                M(nxt, diag, t, v(NM, 16))
            if n == 7:
                for r in range(16):
                    a(f"v_cndmask_b32 {v(cur+r)}, {v(S[2]+r)}, {v(cur+r)}, {s(MS+2*r,2)}")
            for r in range(16):
                a(f"v_exp_f32 {v(cur+r)}, {v(cur+r)}")
                if n > 0 and r == 5: PV(full[n - 1], 0, P)
                if n > 0 and r == 11: PV(full[n - 1], 1, P)
            for p in range(8):
                a(f"v_cvt_pk_bf16_f32 {v(P+p)}, {v(cur+2*p)}, {v(cur+2*p+1)}")
        for p in range(8):
            a(f"v_bfi_b32 {v(P+8+p)}, {v(MK+p)}, 0, {v(P+p)}")
            a(f"v_and_b32 {v(P+p)}, {v(MK+p)}, {v(P+p)}")
        a("s_nop 1")
        PV(diag, 0, P); PV(diag, 1, P); PV(far, 0, P + 8); PV(far, 1, P + 8)
        a("s_nop 11")
        a(f"v_rcp_f32 v14, {v(O+8)}")
        a("s_nop 0")
        for r in range(8):
            a(f"v_mul_f32 {v(O+r)}, v14, {v(O+r)}")
        for p in range(4):
            a(f"v_cvt_pk_bf16_f32 {v(248+4*t+p)}, {v(O+2*p)}, {v(O+2*p+1)}")
        vm.issue(f"buffer_store_dwordx4 {v(248+4*t,4)}, v12, s[24:27], s54 offen offset:{2048*t} sc1")
    if timing:
        a("s_memtime s[44:45]")
    a("s_waitcnt vmcnt(0)")
    if timing:
        a("s_memtime s[62:63]")
    a("v_mov_b32 v1, 0")
    a("v_mov_b32 v2, 1")
    a("s_mov_b64 exec, 1")
    a("ds_add_rtn_u32 v3, v1, v2")
    a("s_waitcnt lgkmcnt(0)")
    a("v_readfirstlane_b32 s19, v3")
    a("s_nop 3")
    a("s_cmp_eq_u32 s19, 3")
    a(f"s_cbranch_scc0 {L('aend')}")
    a("s_lshl_b32 s19, s17, 3")
    a("s_add_u32 s19, s19, s18")
    a("s_lshl_b32 s19, s19, 7")
    a("v_mov_b32 v1, s19")
    a("buffer_store_dword v2, v1, s[20:23], 0 offen sc1")
    a.label(L("aend"))
    if timing:
        srd(a, 36, 14, 64 << 20, 0)
        a("s_lshl_b32 s19, s2, 8")
        a("s_lshl_b32 s3, s16, 5")
        a("s_add_u32 s19, s19, s3")
        a("s_add_u32 s19, s19, 0x1200080")
        a("v_mov_b32 v3, s19")
        a(f"s_sub_u32 s62, s62, s60")
        a("v_mov_b32 v4, s62")
        a(f"buffer_store_dword v4, v3, s[36:39], 0 offen")
        for q in range(3):
            a("s_nop 1")
            a(f"s_sub_u32 s62, s{40+2*q}, s60")
            a("v_mov_b32 v4, s62")
            a(f"buffer_store_dword v4, v3, s[36:39], 0 offen offset:{4+4*q}")
    a.label(L("end"))
    a("s_endpgm")
```

```python
import sys
from asmlib import *
import k1, k2, fused
NAME = 'parallel_sum__sliding_block__glu_gated_reglu__prompt_kernel'
HEADER = open("parallel_sum__sliding_block__glu_gated_reglu__prompt.s.ref").read().split("; Override launch")[0]
def build(kernels, path):
    a = Asm()
    a.raw(HEADER.rstrip("\n"))
    for (name, body, grid, block, lds, vg, sg) in kernels:
        if name == NAME:
            a.raw(f"; @launch grid=({grid},1,1) block=({block},1,1) lds={lds}")
        else:
            a.raw(f"; @launch kernel={name} grid=({grid},1,1) block=({block},1,1) lds={lds}")
    a.raw('.amdgcn_target "amdgcn-amd-amdhsa--gfx950"')
    a.raw(".text")
    for (name, body, grid, block, lds, vg, sg) in kernels:
        kernel_begin(a, name)
        body(a, name)
    a.raw('.section .rodata,"a"')
    for (name, body, grid, block, lds, vg, sg) in kernels:
        descriptor(a, name, vg, sg)
    open(path, "w").write(a.text())
if __name__ == "__main__":
    for timing, fn in ((True, "fz_t.s"), (False, "fz.s")):
        build([(NAME, lambda a, n: fused.body(a, "fz", timing=timing), 256, 512, fused.LDS_BYTES, 256, 102)], fn)
    for nm, opt in (("a", ("nocsst", "nogat")), ("b", ("nocsst", "nogat", "nored")), ("c", ("nocsst", "nogat", "nored", "now2")), ("d", ("nogat",))):
        build([(NAME, lambda a, n: fused.body(a, "fz", timing=True, opt=opt), 256, 512, fused.LDS_BYTES, 256, 102)], f"fz{nm}_t.s")
    build([(NAME, lambda a, n: fused.body(a, "fz", opt=("diag",)), 256, 512, fused.LDS_BYTES, 256, 102)], "fz_diag.s")
```

```python
from asmlib import *

WS_QK = 0
WS_VT = 4 << 20
WS_H = 6 << 20
NSLAB_H = 43
WS_O = WS_H + NSLAB_H * 131072
WS_SY = 14 << 20
SY_EPOCH = 0
SY_ROW = 0x20000
SY_QF = 0x40000
SY_HF = 0x60000
SY_OF = 0x80000
SY_CS = 0xA0000
SY_SIZE = 0xA0000 + 16 * 18 * 2048
WS_TIM = 16 << 20

STG = 53248
XB = 16384
IMG = 12288
ST_M = 0
ST_RS = 512
ST_CS = 1024
SB = 4096
LDS_BYTES = SB + 3 * STG

ACC = 112
WF = 76
XF = 44
SPIN = 20000

S_X, S_WQKV, S_WO, S_WG, S_WU, S_WD, S_OUT, S_DBG, S_WS = 4, 6, 8, 12, 14, 16, 18, 20, 22
S_RB, S_C, S_W, S_TB, S_J, S_TAG, S_EP = 24, 25, 26, 27, 28, 29, 30
SY = 32

def bf16_round(a, r):
    a(f"v_cvt_pk_bf16_f32 {v(r)}, {v(r)}, {v(r)}")
    a(f"v_lshlrev_b32 {v(r)}, 16, {v(r)}")

def allreduce64(a, r, t, op="v_add_f32"):
    for c in ("quad_perm:[1,0,3,2]", "quad_perm:[2,3,0,1]", "row_half_mirror", "row_mirror"):
        a("s_nop 1")
        a(f"{op}_dpp {v(r)}, {v(r)}, {v(r)} {c} row_mask:0xf bank_mask:0xf")
    for sw in ("v_permlane16_swap_b32", "v_permlane32_swap_b32"):
        a(f"v_mov_b32 {v(t)}, {v(r)}")
        a("s_nop 1")
        a(f"{sw} {v(r)}, {v(t)}")
        a("s_nop 1")
        a(f"{op} {v(r)}, {v(r)}, {v(t)}")

def body(a, name, timing=False, opt=()):
    L = lambda x: f"{name}_{x}"
    TS = {}
    def ts(role, lg=None):
        if timing:
            i = TS.get(role, 0)
            assert i < 14
            a(f"s_memtime s[{68+2*i}:{69+2*i}]")
            a("s_waitcnt lgkmcnt(0)")
            if lg is not None: lg.done = lg.n
            TS[role] = i + 1
    def ts_dump(role):
        if timing:
            a("s_mov_b64 exec, -1")
            a("s_waitcnt vmcnt(0)")
            ts(role)
            a("s_memrealtime s[98:99]")
            a("s_waitcnt lgkmcnt(0)")
            srd(a, 36, S_WS, 1 << 20, WS_TIM)
            a("s_lshl_b32 s3, s2, 9")
            a(f"s_lshl_b32 s40, s{S_W}, 6")
            a("s_add_u32 s3, s3, s40")
            a("v_mov_b32 v3, s3")
            a("v_mov_b32 v4, s96")
            a("v_mov_b32 v5, s98")
            a("buffer_store_dwordx2 v[4:5], v3, s[36:39], 0 offen offset:56")
            for q in range(TS[role]):
                a("s_nop 1")
                a(f"s_sub_u32 s40, s{68+2*q}, s100")
                a("v_mov_b32 v4, s40")
                a(f"buffer_store_dword v4, v3, s[36:39], 0 offen offset:{4*q}")
    def poll(lbl, vaddr, vdst, width=1, tagreg=0, sleep=2):
        a(f"s_mov_b32 s3, {SPIN}")
        a.label(L(lbl))
        w = {1: "dword", 4: "dwordx4"}[width]
        a(f"buffer_load_{w} {v(vdst,width)}, {v(vaddr)}, {s(SY,4)}, 0 offen sc1")
        a("s_waitcnt vmcnt(0)")
        a(f"v_cmp_eq_u32 vcc, s{S_TAG}, {v(vdst+tagreg)}")
        a("s_sub_u32 s3, s3, 1")
        a("s_cmp_eq_u32 s3, 0")
        a(f"s_cbranch_scc1 {L(lbl+'_ok')}")
        a("s_cmp_eq_u64 vcc, -1")
        a(f"s_cbranch_scc1 {L(lbl+'_ok')}")
        a(f"s_sleep {sleep}")
        a(f"s_branch {L(lbl)}")
        a.label(L(lbl + "_ok"))

    a("s_cmp_ge_u32 s2, 256")
    a(f"s_cbranch_scc1 {L('end')}")
    a("s_load_dwordx4 s[20:23], s[0:1], 64")
    a("s_load_dwordx4 s[4:7], s[0:1], 0")
    a("s_load_dwordx4 s[12:15], s[0:1], 32")
    a("s_load_dwordx2 s[8:9], s[0:1], 16")
    a("s_load_dwordx4 s[16:19], s[0:1], 48")
    if timing or "diag" in opt:
        a("s_memtime s[100:101]")
        a("s_memrealtime s[96:97]")
    a("s_and_b32 s3, s2, 7")
    a("s_lshr_b32 s31, s2, 3")
    a(f"s_and_b32 s{S_RB}, s3, 3")
    a(f"s_lshl_b32 s{S_RB}, s{S_RB}, 2")
    a("s_and_b32 s40, s31, 3")
    a(f"s_add_u32 s{S_RB}, s{S_RB}, s40")
    a(f"s_lshr_b32 s{S_C}, s3, 2")
    a(f"s_lshl_b32 s{S_C}, s{S_C}, 3")
    a("s_lshr_b32 s40, s31, 2")
    a(f"s_add_u32 s{S_C}, s{S_C}, s40")
    a(f"s_lshl_b32 s{S_TB}, s3, 2")
    a("s_and_b32 s40, s31, 3")
    a(f"s_add_u32 s{S_TB}, s{S_TB}, s40")
    a(f"s_lshr_b32 s{S_J}, s31, 2")
    a("v_lshrrev_b32 v1, 6, v0")
    a("v_and_b32 v0, 63, v0")
    a("s_nop 0")
    a(f"v_readfirstlane_b32 s{S_W}, v1")
    a("s_waitcnt lgkmcnt(0)")
    a(f"s_load_dword s{S_EP}, s[{S_WS}:{S_WS+1}], {hex(WS_SY + SY_EPOCH)}") if False else None
    srd(a, SY, S_WS, SY_SIZE, WS_SY)
    a(f"s_load_dword s{S_EP}, s[{SY}:{SY+1}], {SY_EPOCH}")
    srd(a, 36, S_X, 2048 * 1024)
    a(f"s_cmp_ge_u32 s{S_W}, 4")
    a(f"s_cbranch_scc1 {L('loader')}")

    a(f"s_lshl_b32 s40, s{S_RB}, 7")
    a(f"s_lshl_b32 s41, s{S_C}, 3")
    a("s_add_u32 s40, s40, s41")
    a(f"s_lshl_b32 s41, s{S_W}, 1")
    a("s_add_u32 s40, s40, s41")
    a("s_lshl_b32 s40, s40, 10")
    a("v_lshlrev_b32 v9, 4, v0")
    a("buffer_load_dwordx4 v[44:47], v9, s[36:39], s40 offen")
    a("buffer_load_dwordx4 v[48:51], v9, s[36:39], s40 offen offset:1024")
    a(f"s_and_b32 s42, s{S_W}, 1")
    a(f"s_lshr_b32 s43, s{S_W}, 1")
    a("v_and_b32 v1, 15, v0")
    a("v_lshrrev_b32 v2, 4, v0")
    a("v_lshrrev_b32 v3, 1, v1")
    a("v_xor_b32 v3, v3, v2")
    a("v_lshlrev_b32 v3, 4, v3")
    a("s_lshl_b32 s40, s42, 13")
    a("v_lshl_add_u32 v3, v1, 7, v3")
    a(f"s_add_u32 s40, s40, {SB}")
    a("v_add_u32 v10, s40, v3")
    a("v_xor_b32 v11, 64, v10")
    a("v_bfe_u32 v4, v0, 2, 2")
    a("v_lshl_add_u32 v4, v2, 3, v4")
    a("v_mul_u32_u24 v4, 192, v4")
    a("v_and_b32 v5, 3, v0")
    a("v_lshl_add_u32 v4, v5, 3, v4")
    a(f"v_add_u32 v4, {SB+XB}, v4")
    a("v_and_b32 v5, 1, v2")
    a("v_lshlrev_b32 v5, 5, v5")
    a("s_lshl_b32 s40, s43, 7")
    a("v_add3_u32 v12, v4, v5, s40")
    a("v_xor_b32 v6, 32, v5")
    a("v_add3_u32 v13, v4, v6, s40")
    a("s_lshl_b32 s40, s43, 5")
    a("v_xor_b32 v6, s40, v5")
    a("v_add_u32 v6, 64, v6")
    a("v_add_u32 v14, v4, v6")
    for b in (1, 2):
        for i in range(5):
            a(f"v_add_u32 {v(10+5*b+i)}, {STG*b}, {v(10+i)}")
    for i in range(0, 144, 2):
        a(f"v_pk_mov_b32 {v(ACC+i,2)}, 0, 0")
    a("s_waitcnt lgkmcnt(0)")
    a(f"s_mul_i32 s{S_TAG}, s{S_EP}, 0x01010101")
    a(f"s_add_u32 s{S_TAG}, s{S_TAG}, 0x5A3C96E1")
    a("s_waitcnt vmcnt(0)")
    for k in range(2):
        for d in range(4):
            a(f"v_lshlrev_b32 {v(52+8*k+2*d)}, 16, {v(44+4*k+d)}")
            a(f"v_and_b32 {v(53+8*k+2*d)}, 0xffff0000, {v(44+4*k+d)}")
    a("s_mov_b32 s44, 0x3b000000")
    a("s_mov_b32 s45, 0x3727c5ac")
    for k in range(2):
        b = 52 + 8 * k
        m, q = 68 + k, 70 + k
        a(f"v_add_f32 {v(m)}, {v(b)}, {v(b+1)}")
        for e in range(2, 8):
            a(f"v_add_f32 {v(m)}, {v(m)}, {v(b+e)}")
        allreduce64(a, m, 72)
        a(f"v_mul_f32 {v(m)}, s44, {v(m)}")
        for e in range(8):
            a(f"v_sub_f32 {v(b+e)}, {v(b+e)}, {v(m)}")
        a(f"v_mul_f32 {v(q)}, {v(b)}, {v(b)}")
        for e in range(1, 8):
            a(f"v_fmac_f32 {v(q)}, {v(b+e)}, {v(b+e)}")
        allreduce64(a, q, 72)
        a(f"v_mul_f32 {v(q)}, s44, {v(q)}")
        bf16_round(a, q)
        a(f"v_add_f32 {v(q)}, s45, {v(q)}")
        bf16_round(a, q)
        a(f"v_sqrt_f32 {v(q)}, {v(q)}")
        a("s_nop 0")
        a(f"v_cvt_pk_bf16_f32 {v(44+k)}, {v(m)}, {v(q)}")
    a(f"v_mov_b32 v46, s{S_TAG}")
    a(f"v_mov_b32 v47, s{S_TAG}")
    a(f"s_lshl_b32 s40, s{S_RB}, 4")
    a(f"s_add_u32 s40, s40, s{S_C}")
    a("s_lshl_b32 s40, s40, 2")
    a(f"s_add_u32 s40, s40, s{S_W}")
    a("s_lshl_b32 s46, s40, 7")
    a(f"s_add_u32 s40, s46, {SY_ROW}")
    a("s_mov_b64 exec, 0xff")
    a(f"buffer_store_dwordx4 v[44:47], v9, {s(SY,4)}, s40 offen sc1")
    a("s_mov_b64 exec, -1")
    a("v_mov_b32 v27, 0")

    def rd_x(buf, ks, xb):
        return [f"ds_read_b128 {v(XF+16*xb+4*i,4)}, {v(10+5*buf+ks)} offset:{i*2048}" for i in range(4)]
    def rd_w(buf, ks, j):
        img, p = j // 3, j % 3
        addr = 10 + 5 * buf + 2 + p
        return [f"ds_read_b64_tr_b16 {v(WF+4*j+2*hf,2)}, {v(addr)} offset:{img*IMG + ks*6144 + hf*768}" for hf in range(2)]
    def mfma(j, i, xb):
        acc = v(ACC + 4 * (4 * j + i), 4)
        w = v(WF + 4 * j, 4); x = v(XF + 16 * xb + 4 * i, 4)
        if j == 2:
            return f"v_mfma_f32_16x16x32_bf16 {acc}, {x}, {w}, {acc}"
        return f"v_mfma_f32_16x16x32_bf16 {acc}, {w}, {x}, {acc}"
    lg = Counter(a, "lgkmcnt", 12)
    def q_x(step):
        buf, ks = (step // 2) % 3, step % 2
        return [(l, ("x", step, i)) for i, l in enumerate(rd_x(buf, ks, step % 2))]
    def q_w(step, j):
        buf, ks = (step // 2) % 3, step % 2
        return [(l, ("w", step, j)) for l in rd_w(buf, ks, j)]
    ts("c", lg)
    a("s_barrier")
    ts("c", lg)
    a(f"s_cmp_lg_u32 s{S_W}, 0")
    a(f"s_cbranch_scc1 {L('noat')}")
    a("v_mov_b32 v26, 1")
    a("s_mov_b64 exec, 1")
    a(f"global_atomic_add v26, v27, v26, s[{S_DBG}:{S_DBG+1}] sc0 sc1")
    a("s_mov_b64 exec, -1")
    a.label(L("noat"))
    for l, t in q_x(0): lg.issue(l, t)
    for j in range(9):
        if j == 4: lg.wait(("w", 0, 0))
        for l, t in q_w(0, j): lg.issue(l, t)
    pend = []
    for step in range(16):
        ks = step % 2
        xb = step % 2
        nstep = step + 1
        has_next = nstep < 16
        hold = []
        for j in range(9):
            while any(t in (("w", step, j),) or t[:2] == ("x", step) for _, t in pend):
                l, t = pend.pop(0); lg.issue(l, t)
            lg.wait(("w", step, j), ("x", step, 3))
            for i in range(4):
                a(mfma(j, i, xb))
                if pend:
                    l, t = pend.pop(0); lg.issue(l, t)
            new = []
            if has_next:
                new += q_w(nstep, j)
                if j in (2, 3):
                    new += q_x(nstep)[2*(j-2):2*(j-2)+2]
            if ks == 1 and j < 1:
                hold += new
                continue
            if ks == 1 and j == 1:
                assert not pend
                lg.wait_all()
                a("s_barrier")
                if step in (3, 7, 11, 15): ts("c", lg)
                pend += hold
            pend += new
    ts("c", lg)
    a(f"s_cmp_lg_u32 s{S_W}, 0")
    a(f"s_cbranch_scc1 {L('noep')}")
    a("s_waitcnt vmcnt(0)")
    a("v_readfirstlane_b32 s3, v26")
    a("s_nop 3")
    a("s_cmp_lg_u32 s3, 255")
    a(f"s_cbranch_scc1 {L('noep')}")
    a(f"s_add_u32 s3, s{S_EP}, 1")
    a("v_mov_b32 v26, s3")
    a("s_mov_b64 exec, 1")
    a(f"buffer_store_dword v26, v27, {s(SY,4)}, 0 offen sc1")
    a("s_mov_b64 exec, -1")
    a.label(L("noep"))
    srd(a, 48, S_WS, 4 << 20, WS_QK)
    srd(a, 52, S_WS, 2 << 20, WS_VT)
    srd(a, 56, S_WS, NSLAB_H * 131072, WS_H)
    a("s_lshl_b32 s40, s42, 8")
    a("v_lshl_add_u32 v3, v1, 2, s40")
    for i in range(4):
        a(f"ds_read_b32 {v(44+2*i)}, v3 offset:{ST_M + 64*i}")
        a(f"ds_read_b32 {v(45+2*i)}, v3 offset:{ST_RS + 64*i}")
    a("v_lshl_add_u32 v7, v2, 4, s40")
    a("s_lshl_b32 s40, s43, 8")
    a("v_lshl_add_u32 v4, v2, 4, s40")
    a("s_lshl_b32 s40, s43, 6")
    a("v_lshl_add_u32 v5, v2, 4, s40")
    a("v_lshl_add_u32 v6, v1, 2, s40")
    for j in range(9):
        img, p = j // 3, j % 3
        if j == 2:
            a(f"ds_read_b32 {v(WF+4*j)}, v6 offset:{ST_CS + 128}")
        elif p < 2:
            a(f"ds_read_b128 {v(WF+4*j,4)}, v4 offset:{ST_CS + img*384 + p*64}")
        else:
            a(f"ds_read_b128 {v(WF+4*j,4)}, v5 offset:{ST_CS + img*384 + 128}")
    a(f"s_cmp_lt_u32 s{S_C}, 8")
    a("s_cselect_b32 s60, 0x3eb8aa3b, 1.0")
    a(f"s_lshl_b32 s61, s{S_C}, 2")
    a("s_lshl_b32 s40, s43, 1")
    a("s_add_u32 s61, s61, s40")
    a("s_lshl_b32 s61, s61, 16")
    a(f"s_lshl_b32 s40, s{S_RB}, 12")
    a("s_add_u32 s61, s61, s40")
    a("s_lshl_b32 s62, s42, 11")
    a("s_add_u32 s61, s61, s62")
    a("s_add_u32 s62, s62, s40")
    a(f"s_lshl_b32 s40, s{S_C}, 1")
    a("s_add_u32 s40, s40, s43")
    a("s_lshl_b32 s40, s40, 16")
    a("s_add_u32 s62, s62, s40")
    a("v_and_b32 v8, 1, v2")
    a("v_lshl_add_u32 v8, v8, 4, v1")
    a("v_lshlrev_b32 v8, 5, v8")
    a("v_lshrrev_b32 v9, 1, v2")
    a("v_lshl_add_u32 v8, v9, 4, v8")
    a("s_add_u32 s63, s61, 0x10000")
    a("v_lshl_add_u32 v9, v9, 4, v1")
    a("v_lshlrev_b32 v9, 4, v9")
    a("v_and_b32 v60, 1, v2")
    a("v_lshl_add_u32 v9, v60, 10, v9")
    a(f"s_mul_i32 s64, s{S_C}, 3")
    a("s_lshl_b32 s40, s43, 1")
    a("s_add_u32 s65, s64, s40")
    a("s_add_u32 s64, s64, 1")
    a("s_lshl_b32 s65, s65, 17")
    a("s_lshl_b32 s64, s64, 17")
    a(f"s_lshl_b32 s40, s{S_RB}, 13")
    a("s_add_u32 s65, s65, s40")
    a("s_add_u32 s64, s64, s40")
    a("s_lshl_b32 s40, s42, 12")
    a("s_add_u32 s65, s65, s40")
    a("s_add_u32 s64, s64, s40")
    a("s_lshl_b32 s40, s43, 9")
    a("s_add_u32 s64, s64, s40")
    a("s_waitcnt lgkmcnt(0)")
    for i in range(4):
        a(f"ds_read_b128 {v(10+8*i,4)}, v7 offset:{ST_M + 64*i}")
        a(f"ds_read_b128 {v(14+8*i,4)}, v7 offset:{ST_RS + 64*i}")
    for i in range(4):
        a(f"v_mul_f32 {v(52+2*i)}, s60, {v(45+2*i)}")
        a(f"v_mul_f32 {v(53+2*i)}, {v(45+2*i)}, {v(45+2*i)}")
    A = lambda j, i, r: ACC + 4 * (4 * j + i) + r
    BL = "op_sel_hi:[1,0,1]"
    def corr(j, i):
        for r in (0, 2):
            a(f"v_pk_fma_f32 {v(A(j,i,r),2)}, {v(WF+4*j+r,2)}, {v(44+2*i,2)}, {v(A(j,i,r),2)} {BL}")
    vm = Counter(a, "vmcnt", 60)
    def pack_store(j, i0, vo, sr, so, off, tag):
        d = A(j, i0, 0)
        a(f"v_cvt_pk_bf16_f32 {v(d)}, {v(d)}, {v(d+1)}")
        a(f"v_cvt_pk_bf16_f32 {v(d+1)}, {v(d+2)}, {v(d+3)}")
        a(f"v_cvt_pk_bf16_f32 {v(d+2)}, {v(d+4)}, {v(d+5)}")
        a(f"v_cvt_pk_bf16_f32 {v(d+3)}, {v(d+6)}, {v(d+7)}")
        a("s_nop 0")
        a(f"v_permlane16_swap_b32 {v(d)}, {v(d+2)}")
        a(f"v_permlane16_swap_b32 {v(d+1)}, {v(d+3)}")
        vm.issue(f"buffer_store_dwordx4 {v(d,4)}, {v(vo)}, {s(sr,4)}, {s(so)} offen offset:{off} sc1", tag)
    for j in (0, 1):
        for i in range(4):
            corr(j, i)
            for r in (0, 2):
                a(f"v_pk_mul_f32 {v(A(j,i,r),2)}, {v(A(j,i,r),2)}, {v(52+2*i,2)} op_sel_hi:[1,0]")
            if i & 1:
                pack_store(j, i - 1, 8, 48, 61 if j == 0 else 63, 512 * (i - 1), "qkv")
    a("s_waitcnt lgkmcnt(0)")
    for i in range(4):
        for r in (0, 2):
            a(f"v_pk_fma_f32 {v(A(2,i,r),2)}, {v(10+8*i+r,2)}, {v(WF+8,2)}, {v(A(2,i,r),2)} {BL}")
        for r in (0, 2):
            a(f"v_pk_mul_f32 {v(A(2,i,r),2)}, {v(A(2,i,r),2)}, {v(14+8*i+r,2)}")
        if i & 1:
            pack_store(2, i - 1, 8, 52, 62, 512 * (i - 1), "qkv")
    for p in range(3):
        for i in range(4):
            corr(3 + p, i); corr(6 + p, i)
            for r in range(4):
                a(f"v_max_f32 {v(A(3+p,i,r))}, 0, {v(A(3+p,i,r))}")
            for r in (0, 2):
                a(f"v_pk_mul_f32 {v(A(6+p,i,r),2)}, {v(A(6+p,i,r),2)}, {v(52+2*i,2)} op_sel:[0,1] op_sel_hi:[1,1]")
            for r in (0, 2):
                a(f"v_pk_mul_f32 {v(A(3+p,i,r),2)}, {v(A(3+p,i,r),2)}, {v(A(6+p,i,r),2)}")
            if i & 1:
                pack_store(3 + p, i - 1, 9, 56, 65 if p < 2 else 64, 1024 * (i - 1) + (512 if p == 1 else 0), "h")
    a("s_barrier")
    ts("c")
    a("v_lshlrev_b32 v3, 4, v0")
    for r in range(4):
        a(f"v_mov_b32 {v(4+r)}, s{S_TAG}")
    a(f"s_add_u32 s40, s46, {SY_QF}")
    a(f"s_add_u32 s41, s46, {SY_HF}")
    vm.wait("qkv")
    a("s_mov_b64 exec, 0xff")
    vm.issue(f"buffer_store_dwordx4 v[4:7], v3, {s(SY,4)}, s40 offen sc1")
    vm.wait("h")
    vm.issue(f"buffer_store_dwordx4 v[4:7], v3, {s(SY,4)}, s41 offen sc1")
    a("s_mov_b64 exec, -1")
    a("s_nop 1")
    ts("c")

    KF, VF, QF = 16, 56, 136
    S = [144, 160, 176]
    NM, O, P, MK = 192, 208, 224, 240
    srd(a, 56, S_WS, 16 * 131072, WS_O)
    a(f"s_lshl_b32 s40, s{S_J}, 2")
    a(f"s_add_u32 s42, s40, s{S_W}")
    a("s_lshl_b32 s43, s42, 16")
    a("s_add_u32 s44, s43, 0x200000")
    a(f"s_lshl_b32 s45, s{S_TB}, 6")
    a("v_and_b32 v1, 31, v0")
    a("v_lshrrev_b32 v2, 5, v0")
    a("v_lshlrev_b32 v3, 4, v2")
    a("v_bfe_u32 v4, v0, 2, 3")
    a("v_min_u32 v4, 4, v4")
    a("v_and_b32 v5, 3, v0")
    a("v_cmp_eq_u32 vcc, 1, v5")
    a(f"v_cmp_eq_u32 s[60:61], 2, v5")
    a("s_nop 1")
    a("s_or_b64 s[62:63], vcc, s[60:61]")
    a("s_nop 1")
    a("v_cndmask_b32 v4, 0, v4, s[62:63]")
    a(f"v_sub_u32 v4, s{S_TB}, v4")
    a("v_max_i32 v4, 0, v4")
    a("s_bfe_u32 s40, s42, 0x10001")
    a("s_lshl_b32 s40, s40, 8")
    a(f"s_lshl_b32 s41, s{S_J}, 9")
    a("s_add_u32 s40, s40, s41")
    a("s_add_u32 s41, s40, 4096")
    a("s_lshl_b32 s47, s42, 8")
    a("v_mov_b32 v6, s40")
    a("v_mov_b32 v7, s41")
    a("v_cndmask_b32 v6, v6, v7, vcc")
    a("v_mov_b32 v7, s47")
    a("v_cndmask_b32 v6, v6, v7, s[60:61]")
    a("v_lshrrev_b32 v7, 1, v4")
    a("v_lshl_add_u32 v6, v7, 13, v6")
    a("v_and_b32 v7, 1, v4")
    a("v_lshl_add_u32 v6, v7, 7, v6")
    a(f"v_add_u32 v6, {SY_QF}, v6")
    a("v_lshlrev_b32 v8, 3, v2")
    a("v_sub_u32 v8, v1, v8")
    a("s_sub_u32 s47, s45, 256")
    a("s_mov_b32 exec_lo, 0xffff0000")
    a("s_mov_b32 exec_hi, 0xffff0000")
    for kt in range(10):
        a(f"s_cmp_ge_i32 s47, {-32*kt}")
        a("s_cselect_b32 s40, 0x3f803f80, 0")
        a("s_mov_b32 s41, s40")
        for r in range(0, 8, 2):
            a(f"v_pk_mov_b32 {v(VF+8*kt+r,2)}, s[40:41], s[40:41]")
    a("s_mov_b64 exec, -1")
    a("v_add_u32 v4, s45, v1")
    a("v_lshl_add_u32 v4, v4, 5, v3")
    a("v_and_b32 v5, 0x13, v1")
    a("v_bfe_u32 v7, v1, 2, 1")
    a("v_lshl_or_b32 v5, v7, 3, v5")
    a("v_bfe_u32 v7, v1, 3, 1")
    a("v_lshl_or_b32 v5, v7, 2, v5")
    a("v_lshl_add_u32 v7, v5, 5, v3")
    a("v_add_u32 v5, s47, v5")
    for kt in range(10):
        a(f"v_add_u32 {v(S[0]+kt)}, {32*kt}, v5")
        a(f"v_max_i32 {v(S[0]+kt)}, 0, {v(S[0]+kt)}")
        a(f"v_lshl_add_u32 {v(S[0]+kt)}, {v(S[0]+kt)}, 5, v3")
    a("v_and_b32 v12, 15, v1")
    a("v_lshl_add_u32 v12, v2, 4, v12")
    a("v_lshlrev_b32 v12, 4, v12")
    a("v_lshrrev_b32 v13, 4, v1")
    a("v_lshl_add_u32 v12, v13, 10, v12")
    a("s_and_b32 s40, s42, 1")
    a("s_lshl_b32 s40, s40, 9")
    a("v_add_u32 v12, s40, v12")
    a("s_lshr_b32 s46, s42, 1")
    a("s_lshl_b32 s46, s46, 17")
    a(f"s_lshl_b32 s40, s{S_TB}, 12")
    a("s_add_u32 s46, s46, s40")
    poll("pq", 6, 14)
    ts("c")
    vm = Counter(a, "vmcnt", 60)
    for t in range(2):
        vm.issue(f"buffer_load_dwordx4 {v(QF+4*t,4)}, v4, s[48:51], s43 offen offset:{1024*t} sc1", ("q", t))
    for kt in range(10):
        vm.issue(f"buffer_load_dwordx4 {v(KF+4*kt,4)}, {v(S[0]+kt)}, s[48:51], s44 offen sc1", ("k", kt))
    a("s_mov_b32 exec_lo, 0xffff")
    a("s_mov_b32 exec_hi, 0xffff")
    a("s_lshl_b32 s41, s47, 5")
    a("s_add_u32 s41, s41, s43")
    for kt in list(range(1, 10)) + [0]:
        a(f"s_add_u32 s40, s41, {1024*kt}")
        a(f"s_cmp_ge_i32 s47, {-32*kt}")
        a("s_cselect_b32 s40, s40, 0x7fff0000")
        for hh in range(2):
            vm.issue(f"buffer_load_dwordx4 {v(VF+8*kt+4*hh,4)}, v7, s[52:55], s40 offen offset:{512*hh} sc1", ("v", kt))
    a("s_mov_b64 exec, -1")
    if timing:
        pass
    MS = 60 if not timing else None
    if timing:
        MSL = [4, 6, 8, 10, 12, 14, 16, 18, 60, 62, 64, 66, 36, 38, 40, 44]
    else:
        MSL = [60 + 2 * r for r in range(16)]
    for r in range(16):
        a(f"v_cmp_le_i32 {s(MSL[r],2)}, {(r&7)+16*(r>>3)}, v8")
    a("v_mov_b32 v9, 0xffff")
    a("v_mov_b32 v10, 0xffff0000")
    for p in range(8):
        a(f"v_cndmask_b32 {v(MK+p)}, 0, v9, {s(MSL[2*p],2)}")
        a(f"v_cndmask_b32 v11, 0, v10, {s(MSL[2*p+1],2)}")
        a(f"v_or_b32 {v(MK+p)}, {v(MK+p)}, v11")
    def M(dst, kt, t, c):
        vm.wait(("k", kt), ("q", t))
        a(f"v_mfma_f32_32x32x16_bf16 {v(dst,16)}, {v(KF+4*kt,4)}, {v(QF+4*t,4)}, {c}")
    for t in range(2):
        far, diag = t, t + 8
        full = list(range(t + 1, t + 8))
        MX = 14
        M(O, far, t, "0")
        if t == 0: ts("c")
        M(S[0], full[0], t, "0")
        M(S[1], full[1], t, "0")
        a("s_nop 7")
        def mx(src, first=False):
            for q in range(0, 16, 4):
                if first and q == 0:
                    a(f"v_max_f32 {v(MX)}, {v(src)}, {v(src+1)}")
                    a(f"v_max_f32 {v(MX+1)}, {v(src+2)}, {v(src+3)}")
                else:
                    a(f"v_max3_f32 {v(MX)}, {v(src+q)}, {v(src+q+1)}, {v(MX)}")
                    a(f"v_max3_f32 {v(MX+1)}, {v(src+q+2)}, {v(src+q+3)}, {v(MX+1)}")
        for n in range(7):
            if n + 2 < 7:
                M(S[(n + 2) % 3], full[n + 2], t, "0")
            elif n + 2 == 7:
                M(NM, diag, t, "0")
            if n == 0:
                a("s_nop 1")
            mx(S[n % 3], first=(n == 0))
        for r in range(16):
            a(f"v_cndmask_b32 {v(O+r)}, {v(O+r)}, {v(NM+r)}, {s(MSL[r],2)}")
        mx(O)
        a(f"v_max_f32 {v(MX)}, {v(MX)}, {v(MX+1)}")
        a(f"v_mov_b32 {v(MX+1)}, {v(MX)}")
        a("s_nop 1")
        a(f"v_permlane32_swap_b32 {v(MX)}, {v(MX+1)}")
        a("s_nop 1")
        a(f"v_max_f32 {v(MX)}, {v(MX)}, {v(MX+1)}")
        a(f"v_sub_f32 {v(MX)}, 0, {v(MX)}")
        for r in range(0, 16, 2):
            a(f"v_pk_mov_b32 {v(NM+r,2)}, {v(MX,2)}, {v(MX,2)} op_sel:[0,0]")
        a("s_nop 1")
        M(S[0], full[0], t, v(NM, 16))
        M(S[2], far, t, v(NM, 16))
        a("s_nop 9")
        first_pv = [True]
        def PV(kt, hh, preg):
            vm.wait(("v", kt))
            c = "0" if first_pv[0] else v(O, 16)
            first_pv[0] = False
            a(f"v_mfma_f32_32x32x16_bf16 {v(O,16)}, {v(VF+8*kt+4*hh,4)}, {v(preg+4*hh,4)}, {c}")
        for n in range(8):
            cur = S[n % 2]
            nxt = S[(n + 1) % 2]
            if n + 1 < 7:
                M(nxt, full[n + 1], t, v(NM, 16))
            elif n + 1 == 7:
                M(nxt, diag, t, v(NM, 16))
            if n == 7:
                for r in range(16):
                    a(f"v_cndmask_b32 {v(cur+r)}, {v(S[2]+r)}, {v(cur+r)}, {s(MSL[r],2)}")
            for r in range(16):
                a(f"v_exp_f32 {v(cur+r)}, {v(cur+r)}")
                if n > 0 and r == 5: PV(full[n - 1], 0, P)
                if n > 0 and r == 11: PV(full[n - 1], 1, P)
            for p in range(8):
                a(f"v_cvt_pk_bf16_f32 {v(P+p)}, {v(cur+2*p)}, {v(cur+2*p+1)}")
        for p in range(8):
            a(f"v_bfi_b32 {v(P+8+p)}, {v(MK+p)}, 0, {v(P+p)}")
            a(f"v_and_b32 {v(P+p)}, {v(MK+p)}, {v(P+p)}")
        a("s_nop 1")
        PV(diag, 0, P); PV(diag, 1, P); PV(far, 0, P + 8); PV(far, 1, P + 8)
        a("s_nop 11")
        a(f"v_rcp_f32 v14, {v(O+8)}")
        a("s_nop 0")
        for r in range(8):
            a(f"v_mul_f32 {v(O+r)}, v14, {v(O+r)}")
        for p in range(4):
            a(f"v_cvt_pk_bf16_f32 {v(248+4*t+p)}, {v(O+2*p)}, {v(O+2*p+1)}")
        vm.issue(f"buffer_store_dwordx4 {v(248+4*t,4)}, v12, s[56:59], s46 offen offset:{2048*t} sc1")
    ts("c")
    a(f"s_lshl_b32 s40, s{S_TB}, 5")
    a("s_add_u32 s40, s40, s42")
    a("s_lshl_b32 s40, s40, 7")
    a(f"s_add_u32 s40, s40, {SY_OF}")
    a("v_lshlrev_b32 v3, 4, v0")
    for r in range(4):
        a(f"v_mov_b32 {v(4+r)}, s{S_TAG}")
    a("s_mov_b64 exec, 0xff")
    a("s_waitcnt vmcnt(0)")
    a(f"buffer_store_dwordx4 v[4:7], v3, {s(SY,4)}, s40 offen sc1")
    a("s_nop 1")
    ts_dump("c")
    a(f"s_branch {L('end')}")

    a.label(L("loader"))
    LW = 31
    a(f"s_sub_u32 s{LW}, s{S_W}, 4")
    a("s_setprio 3")
    srd(a, 40, S_WQKV, 512 * 3072)
    srd(a, 44, S_WG, 512 * 2752)
    srd(a, 48, S_WU, 512 * 2752)
    a(f"s_and_b32 s52, s{S_RB}, 1")
    a(f"s_lshr_b32 s53, s{S_RB}, 1")
    a("s_xor_b32 s10, s53, 1")
    a("v_lshrrev_b32 v1, 3, v0")
    a("v_and_b32 v2, 7, v0")
    a("s_lshl_b32 s3, s52, 2")
    a("v_xor_b32 v2, s3, v2")
    a(f"s_lshl_b32 s54, s{S_RB}, 7")
    a(f"s_lshl_b32 s55, s{LW}, 5")
    a("s_add_u32 s54, s54, s55")
    a("v_lshrrev_b32 v4, 4, v0")
    a("v_xor_b32 v4, v4, v2")
    a("v_add_u32 v3, s54, v1")
    a("v_lshlrev_b32 v3, 10, v3")
    a("v_lshl_add_u32 v10, v4, 4, v3")
    a("v_xor_b32 v11, 64, v10")
    a("v_add_u32 v11, 0x2000, v11")
    a("v_add_u32 v12, 0x4000, v10")
    a("v_add_u32 v13, 0x4000, v11")
    a(f"s_lshl_b32 s56, s{LW}, 12")
    a(f"s_add_u32 s56, s56, {SB}")
    a(f"s_mul_i32 s57, s{LW}, 3072")
    a(f"s_add_u32 s57, s57, {SB+XB}")
    vm = Counter(a, "vmcnt", 60)
    lg = Counter(a, "lgkmcnt", 12)
    def dma_soff(stage):
        a(f"s_add_u32 s58, s{10 if stage & 1 else 53}, {stage & ~1}")
        a("s_and_b32 s58, s58, 7")
        a(f"s_mul_i32 s59, s58, {64*3072}")
        a(f"s_mul_i32 s60, s58, {64*2752}")
        a("s_lshl_b32 s58, s58, 7")
    def dma_x(stage):
        buf = stage % 3
        for i in range(4):
            a(f"s_add_u32 m0, s56, {buf*STG + i*1024}")
            a("s_nop 0")
            vm.issue(f"buffer_load_dwordx4 {v(10+i)}, s[36:39], s58 offen lds", ("st", stage))
    def dma_wimg(stage, lo=0, hi=9):
        buf = stage % 3
        for n in range(lo, hi):
            img, b = n // 3, n % 3
            a(f"s_add_u32 m0, s57, {buf*STG + img*IMG + b*1024}")
            a("s_nop 0")
            if img == 0:
                vm.issue(f"buffer_load_dwordx4 {v(14+b)}, s[40:43], s59 offen lds", ("st", stage))
            else:
                vm.issue(f"buffer_load_dwordx4 {v(17+b)}, {s(40+4*img,4)}, s60 offen lds", ("st", stage))
    def dma(stage):
        dma_soff(stage); dma_x(stage); dma_wimg(stage)
    dma_soff(0); dma_x(0)
    a("s_lshl_b32 s3, s52, 1")
    a(f"s_xor_b32 s54, s{LW}, s3")
    a("s_lshl_b32 s54, s54, 4")
    a(f"s_mul_i32 s55, s{S_C}, 192")
    a(f"s_lshl_b32 s61, s{S_C}, 7")
    a(f"s_lshl_b32 s62, s{S_C}, 6")
    a("s_add_u32 s62, s62, 2048")
    a("s_movk_i32 s63, 2752")
    a("s_movk_i32 s64, 3072")
    a("v_mov_b32 v8, s61")
    a("v_mov_b32 v9, s62")
    for b in range(3):
        a(f"v_add_u32 v3, {64*b}, v0")
        a("v_mul_u32_u24 v4, 171, v3")
        a("v_lshrrev_b32 v4, 11, v4")
        a("v_mul_u32_u24 v5, 12, v4")
        a("v_sub_u32 v5, v3, v5")
        a("v_lshrrev_b32 v6, 3, v4")
        a("v_lshlrev_b32 v6, 1, v6")
        a("v_xor_b32 v5, v5, v6")
        a("v_add_u32 v4, s54, v4")
        a("v_mul_u32_u24 v6, s63, v4")
        a("v_lshl_add_u32 v6, v5, 4, v6")
        a(f"v_add_u32 {v(17+b)}, s55, v6")
        a("v_cmp_gt_u32 vcc, 4, v5")
        a("v_mul_u32_u24 v6, s64, v4")
        a("v_subrev_u32 v7, 4, v5")
        a("v_cndmask_b32 v7, v7, v5, vcc")
        a("v_lshl_add_u32 v6, v7, 4, v6")
        a("v_lshrrev_b32 v7, 2, v5")
        a("v_cmp_eq_u32 vcc, 1, v7")
        a("s_nop 1")
        a("v_cndmask_b32 v7, v8, v9, vcc")
        a(f"v_add_u32 {v(14+b)}, v6, v7")
    dma_wimg(0)
    dma_soff(1); dma_x(1); dma_wimg(1, 0, 2)
    a("v_lshrrev_b32 v2, 4, v0")
    a("v_bfe_u32 v4, v0, 2, 2")
    a("v_lshl_add_u32 v4, v2, 3, v4")
    a("v_mul_u32_u24 v4, 192, v4")
    a("v_and_b32 v5, 3, v0")
    a("v_lshl_add_u32 v4, v5, 3, v4")
    a(f"v_add_u32 v4, {SB+XB}, v4")
    a("v_and_b32 v5, 1, v2")
    a("v_lshlrev_b32 v5, 5, v5")
    for i in range(5):
        T = 61 + i
        if i < 4:
            a(f"s_add_u32 s{T}, s{LW}, {4*i}")
        else:
            a(f"s_and_b32 s{T}, s{LW}, 1")
            a(f"s_add_u32 s{T}, s{T}, 16")
        a(f"s_mul_i32 s54, s{T}, 43")
        a("s_lshr_b32 s54, s54, 8")
        a("s_mul_i32 s55, s54, 6")
        a(f"s_sub_u32 s55, s{T}, s55")
        a("s_lshl_b32 s55, s55, 5")
        a(f"s_mul_i32 s54, s54, {IMG}")
        a("v_xor_b32 v6, s55, v5")
        a(f"v_add3_u32 {v(21+i)}, v4, v6, s54")
    for r in range(4):
        a(f"v_mov_b32 {v(28+r)}, 0x3f803f80")
    a("v_and_b32 v6, 15, v0")
    a("v_cmp_gt_u32 vcc, 2, v6")
    a("v_lshlrev_b32 v26, 4, v2")
    a("v_lshl_add_u32 v26, v6, 6, v26")
    a("v_mov_b32 v6, 0x7fff0000")
    a("v_cndmask_b32 v26, v6, v26, vcc")
    a(f"s_mul_i32 s66, s{S_C}, {18*2048}")
    a(f"s_add_u32 s66, s66, {SY_CS}")
    a("s_waitcnt lgkmcnt(0)")
    a(f"s_mul_i32 s{S_TAG}, s{S_EP}, 0x01010101")
    a(f"s_add_u32 s{S_TAG}, s{S_TAG}, 0x5A3C96E1")
    ts("l")
    vm.wait(("st", 0))
    a("s_barrier")
    ts("l")
    dma_wimg(1, 2, 9)
    dma(2)
    ts("l")
    WD = 32
    for i in range(5):
        for hf in range(2):
            lg.issue(f"ds_read_b64_tr_b16 {v(WD+4*i+2*hf,2)}, {v(21+i)} offset:{hf*768}", ("c", i))
    for i in range(5):
        lg.wait(("c", i))
        a(f"v_mfma_f32_16x16x32_bf16 {v(52+4*i,4)}, {v(WD+4*i,4)}, v[28:31], 0")
    a(f"s_lshl_b32 s54, s{S_RB}, 7")
    a("s_add_u32 s54, s54, s66")
    a("v_mov_b32 v6, 0xff")
    a(f"s_lshr_b32 s67, s{S_TAG}, 8")
    a(f"s_lshr_b32 s0, s{S_TAG}, 16")
    a(f"s_lshr_b32 s1, s{S_TAG}, 24")
    TB = [S_TAG, 67, 0, 1]
    a("s_nop 2")
    for i in range(5):
        for r in range(4):
            a(f"v_bfi_b32 {v(52+4*i+r)}, v6, s{TB[r]}, {v(52+4*i+r)}")
        a(f"s_lshl_b32 s55, s{61+i}, 11")
        a("s_add_u32 s55, s55, s54")
        if "nocsst" not in opt:
            vm.issue(f"buffer_store_dwordx4 {v(52+4*i,4)}, v26, {s(SY,4)}, s55 offen sc1")
    ts("l")
    ts("l")
    vm.wait(("st", 1))
    ts("l")
    a("s_barrier")
    dma(3)
    ts("l")
    vm.wait(("st", 2))
    ts("l")
    a("s_barrier")
    dma(4)
    a("v_lshrrev_b32 v4, 2, v0")
    a("v_and_b32 v5, 3, v0")
    a("v_lshlrev_b32 v4, 7, v4")
    a("v_lshl_add_u32 v34, v5, 4, v4")
    a(f"s_lshl_b32 s54, s{S_RB}, 13")
    a(f"s_lshl_b32 s55, s{LW}, 11")
    a("s_add_u32 s54, s54, s55")
    a(f"s_add_u32 s54, s54, {SY_ROW}")
    a("v_and_b32 v33, 15, v0")
    a("v_lshlrev_b32 v33, 7, v33")
    a("v_add_u32 v33, s54, v33")
    a("v_mov_b32 v35, 0x0c0c0400")
    vm.wait(("st", 3))
    a("s_barrier")
    def gather(cnt):
        f = (lambda l: vm.issue(l, "gat")) if cnt else a
        f(f"buffer_load_dwordx4 v[40:43], v33, {s(SY,4)}, 0 offen sc1")
        for i in range(5):
            a(f"s_lshl_b32 s55, s{61+i}, 11")
            a("s_add_u32 s55, s55, s66")
            f(f"buffer_load_dwordx4 {v(52+4*i,4)}, v34, {s(SY,4)}, s55 offen sc1")
    if "nogat" not in opt:
        gather(True)
    else:
        vm.tag["gat"] = vm.n
    dma(5)
    vm.wait(("st", 4))
    a("s_barrier")
    dma(6)
    vm.wait(("st", 5), "gat")
    a(f"s_mov_b32 s3, {SPIN}")
    if "nogat" in opt:
        a(f"s_branch {L('valok')}")
    a.label(L("val"))
    a(f"v_cmp_eq_u32 vcc, s{S_TAG}, v42")
    for i in range(5):
        b = 52 + 4 * i
        a(f"v_perm_b32 v36, {v(b+1)}, {v(b)}, v35")
        a(f"v_perm_b32 v37, {v(b+3)}, {v(b+2)}, v35")
        a("v_lshl_or_b32 v36, v37, 16, v36")
        a(f"v_cmp_eq_u32 s[54:55], s{S_TAG}, v36")
        a("s_nop 1")
        a("s_and_b64 vcc, vcc, s[54:55]")
    a("s_cmp_eq_u64 vcc, -1")
    a(f"s_cbranch_scc1 {L('valok')}")
    a("s_sub_u32 s3, s3, 1")
    a("s_cmp_eq_u32 s3, 0")
    a(f"s_cbranch_scc1 {L('valok')}")
    a("s_sleep 4")
    gather(False)
    a("s_waitcnt vmcnt(0)")
    a(f"s_branch {L('val')}")
    a.label(L("valok"))
    a("s_barrier")
    dma(7)
    a("v_and_b32 v6, 15, v0")
    a(f"s_lshl_b32 s3, s{LW}, 7")
    a("v_lshl_add_u32 v6, v6, 3, s3")
    for k in range(2):
        a(f"v_lshlrev_b32 {v(44+k)}, 16, {v(40+k)}")
        a(f"v_xor_b32 {v(44+k)}, 0x80000000, {v(44+k)}")
        a(f"v_and_b32 {v(46+k)}, 0xffff0000, {v(40+k)}")
        a(f"v_rcp_f32 {v(46+k)}, {v(46+k)}")
    a("s_nop 0")
    a(f"ds_write_b64 v6, v[44:45] offset:{ST_M}")
    a(f"ds_write_b64 v6, v[46:47] offset:{ST_RS}")
    for c in ("row_ror:4", "row_ror:8"):
        for r in range(20 if "nored" not in opt else 0):
            a(f"v_add_f32_dpp {v(52+r)}, {v(52+r)}, {v(52+r)} {c} row_mask:0xf bank_mask:0xf")
    a("v_and_b32 v6, 3, v0")
    a("v_lshlrev_b32 v6, 4, v6")
    def lvl2():
        for sw in ("v_permlane16_swap_b32", "v_permlane32_swap_b32"):
            for r in range(20):
                a(f"v_mov_b32 {v(72+r)}, {v(52+r)}")
            for r in range(20):
                a(f"{sw} {v(52+r)}, {v(72+r)}")
            for r in range(0, 20, 2):
                a(f"v_pk_add_f32 {v(52+r,2)}, {v(52+r,2)}, {v(72+r,2)}")
        for i in range(5):
            a(f"s_lshl_b32 s3, s{61+i}, 6")
            a("v_add_u32 v30, s3, v29")
            a(f"ds_write_b128 v30, {v(52+4*i,4)} offset:{ST_CS}")
    a("v_mov_b32 v29, v6")
    srd(a, 40, S_WD, 1376 * 1024)
    srd(a, 44, S_WO, 512 * 1024)
    srd(a, 48, S_WS, NSLAB_H * 131072, WS_H)
    srd(a, 52, S_WS, 16 * 131072, WS_O)
    G_ACC, BF, GW, XR = 192, 128, 96, 88
    D = 4
    a(f"s_lshl_b32 s3, s{S_TB}, 12")
    a("v_lshl_add_u32 v1, v0, 4, s3")
    a("v_lshrrev_b32 v3, 3, v0")
    a("v_and_b32 v4, 7, v0")
    a("v_and_b32 v5, 6, v3")
    a("v_xor_b32 v4, v4, v5")
    a("v_lshlrev_b32 v4, 4, v4")
    a("v_and_b32 v5, 4, v3")
    a("v_add_u32 v3, v3, v5")
    a("v_lshl_add_u32 v4, v3, 10, v4")
    a(f"s_lshl_b32 s3, s{S_J}, 7")
    a("v_add_u32 v2, s3, v4")
    a(f"s_mul_i32 s56, s{LW}, 12288")
    a(f"s_add_u32 s56, s56, {SB}")
    a(f"s_lshl_b32 s57, s{LW}, 15")
    a(f"s_lshl_b32 s58, s{LW}, 17")
    NH, NO = 11, 4
    NT = NH + NO
    NS = 9
    BUFORD = [2, 0, 1]
    def slot_off(k):
        sl = k % NS
        return BUFORD[sl // 3], (sl % 3) * 4096
    def dma_w(k):
        b, o = slot_off(k)
        for q in range(4):
            a(f"s_add_u32 m0, s56, {b*STG + o + q*1024}")
            if k < NH:
                a(f"s_add_u32 s59, s57, {k*4*32768 + (16*(q&1) + 4*(q>>1))*1024}")
                vm.issue(f"buffer_load_dwordx4 v2, s[40:43], s59 offen lds", ("w", k))
            else:
                a(f"s_add_u32 s59, s57, {(k-NH)*4*32768 + (16*(q&1) + 4*(q>>1))*1024}")
                vm.issue(f"buffer_load_dwordx4 v2, s[44:47], s59 offen lds", ("w", k))
    def load_b(k):
        kk, sr = (k, 48) if k < NH else (k - NH, 52)
        a(f"s_add_u32 s60, s58, {kk*4*131072}")
        for i in range(4):
            vm.issue(f"buffer_load_dwordx4 {v(BF+16*(k%D)+4*i,4)}, v1, {s(sr,4)}, s60 offen offset:{1024*i} sc1", ("b", k))
    a("s_waitcnt lgkmcnt(0)")
    vm.wait(("st", 6))
    a("s_barrier")
    for k in range(0, 3):
        if "now2" in opt: continue
        dma_w(k)
    a("v_lshrrev_b32 v3, 4, v0")
    a("v_bfe_u32 v4, v0, 2, 2")
    a("v_lshl_add_u32 v5, v3, 2, v4")
    a("v_bfe_u32 v6, v5, 1, 2")
    a("v_and_b32 v7, 3, v0")
    a("v_lshlrev_b32 v7, 3, v7")
    a("v_lshl_add_u32 v7, v5, 7, v7")
    a("v_add_u32 v7, s56, v7")
    for u in range(4):
        a(f"v_xor_b32 v8, {u}, v6")
        a(f"v_lshl_add_u32 {v(10+u)}, v8, 5, v7")
        a(f"v_add_u32 {v(14+u)}, {STG}, {v(10+u)}")
        a(f"v_add_u32 {v(18+u)}, {2*STG}, {v(10+u)}")
    if "nored" not in opt: lvl2()
    a("s_waitcnt lgkmcnt(0)")
    vm.wait(("st", 7))
    a("s_barrier")
    for k in range(3, 6):
        if "now2" in opt: continue
        dma_w(k)
    for i in range(0, 64, 2):
        a(f"v_pk_mov_b32 {v(G_ACC+i,2)}, 0, 0")
    a("v_and_b32 v8, 15, v0")
    a("v_lshlrev_b32 v9, 10, v8")
    a("v_lshl_add_u32 v9, v3, 4, v9")
    a(f"s_lshl_b32 s3, s{S_TB}, 16")
    a(f"s_lshl_b32 s61, s{LW}, 14")
    a("s_add_u32 s3, s3, s61")
    a(f"s_lshl_b32 s61, s{S_J}, 7")
    a("s_add_u32 s3, s3, s61")
    a("v_add_u32 v9, s3, v9")
    a("v_lshrrev_b32 v4, 1, v0")
    a("v_min_u32 v4, 14, v4")
    a("v_lshlrev_b32 v4, 9, v4")
    a("v_and_b32 v5, 1, v0")
    a("v_lshl_add_u32 v4, v5, 8, v4")
    a(f"s_lshr_b32 s3, s{S_TB}, 1")
    a("s_lshl_b32 s3, s3, 13")
    a(f"s_and_b32 s61, s{S_TB}, 1")
    a("s_lshl_b32 s61, s61, 7")
    a("s_add_u32 s3, s3, s61")
    a(f"s_add_u32 s3, s3, {SY_HF}")
    a("v_add_u32 v22, s3, v4")
    a("v_bfe_u32 v4, v0, 1, 2")
    a("v_lshlrev_b32 v4, 3, v4")
    a("v_add_u32 v4, v4, v5")
    a(f"s_lshl_b32 s3, s{LW}, 1")
    a("v_add_u32 v4, s3, v4")
    a("v_lshlrev_b32 v4, 7, v4")
    a(f"s_lshl_b32 s3, s{S_TB}, 12")
    a(f"s_add_u32 s3, s3, {SY_OF}")
    a("v_add_u32 v23, s3, v4")
    a("s_barrier")
    a("s_barrier")
    a("s_setprio 0")
    for k in range(6 if "now2" not in opt else 0, 9): dma_w(k)
    vm.issue(f"buffer_load_dwordx4 {v(XR,4)}, v9, s[36:39], 0 offen", "x")
    vm.issue(f"buffer_load_dwordx4 {v(XR+4,4)}, v9, s[36:39], 0 offen offset:64", "x")
    ts("l")
    poll("ph", 22, 24)
    vm.done = vm.n
    ts("l")
    for k in range(D): load_b(k)
    lg = Counter(a, "lgkmcnt", 12)
    def rd_w2(k):
        b, o = slot_off(k)
        for u in range(4):
            for hf in range(2):
                lg.issue(f"ds_read_b64_tr_b16 {v(GW+16*(k%2)+4*u+2*hf,2)}, {v(10+4*b+u)} offset:{o + hf*2048}", ("w", k, u))
    def mm(k):
        for u in range(4):
            lg.wait(("w", k, u))
            for i in range(4):
                acc = v(G_ACC + 4 * (4 * u + i), 4)
                a(f"v_mfma_f32_16x16x32_bf16 {acc}, {v(GW+16*(k%2)+4*u,4)}, {v(BF+16*(k%D)+4*i,4)}, {acc}")
    for k in range(NH):
        vm.wait(("w", k))
        rd_w2(k)
        vm.wait(("b", k))
        mm(k)
        if k + D < NH:
            load_b(k + D)
        if k + NS < NT:
            dma_w(k + NS)
    ts("l", lg)
    poll("po", 23, 24)
    vm.done = vm.n
    ts("l", lg)
    for k in range(NH, NT):
        load_b(k)
    for k in range(NH, NT):
        rd_w2(k)
        vm.wait(("b", k))
        mm(k)
    ts("l", lg)
    a("v_lshl_add_u32 v24, v0, 4, s56")
    a(f"v_add_u32 v25, {2*STG}, v24")
    a("s_nop 6")
    for t in range(16):
        if t < 12:
            a(f"ds_write_b128 v25, {v(G_ACC+4*t,4)} offset:{t*1024}")
        else:
            a(f"ds_write_b128 v24, {v(G_ACC+4*t,4)} offset:{(t-12)*1024}")
    srd(a, 40, S_OUT, 2048 * 1024)
    a("s_waitcnt lgkmcnt(0)")
    a("s_barrier")
    a("v_lshrrev_b32 v4, 1, v3")
    a("v_and_b32 v5, 1, v3")
    a("v_lshlrev_b32 v5, 9, v5")
    a("v_lshl_add_u32 v5, v8, 4, v5")
    a(f"s_lshl_b32 s3, s{LW}, 10")
    a(f"s_add_u32 s3, s3, {SB}")
    a("v_add_u32 v5, s3, v5")
    a("v_lshl_add_u32 v6, v4, 12, v5")
    a(f"v_add_u32 v6, {2*STG}, v6")
    a("v_cmp_eq_u32 vcc, 0, v4")
    a(f"v_add_u32 v7, {2*STG + 8192}, v5")
    a("s_nop 0")
    a("v_cndmask_b32 v7, v5, v7, vcc")
    for pw in range(4):
        for h2 in range(2):
            for e in range(2):
                a(f"ds_read_b128 {v(128+16*pw+8*h2+4*e,4)}, {v(6+h2)} offset:{pw*12288 + e*256}")
    for d in range(8):
        a(f"v_lshlrev_b32 {v(96+2*d)}, 16, {v(XR+d)}")
        a(f"v_and_b32 {v(97+2*d)}, 0xffff0000, {v(XR+d)}")
    for pw in range(4):
        a(f"s_waitcnt lgkmcnt({12-4*pw})")
        for e in range(0, 16, 2):
            a(f"v_pk_add_f32 {v(96+e,2)}, {v(96+e,2)}, {v(128+16*pw+e,2)}")
    for d in range(8):
        a(f"v_cvt_pk_bf16_f32 {v(112+d)}, {v(96+2*d)}, {v(97+2*d)}")
    a(f"buffer_store_dwordx4 v[112:115], v9, s[40:43], 0 offen")
    a(f"buffer_store_dwordx4 v[116:119], v9, s[40:43], 0 offen offset:64")
    if "diag" in opt:
        a("s_waitcnt vmcnt(0)")
        a("s_memrealtime s[98:99]")
        a("s_memtime s[94:95]")
        a("s_waitcnt lgkmcnt(0)")
        a("s_mov_b64 exec, 1")
        a("v_mov_b32 v1, 4")
        a("v_mov_b32 v2, s98")
        a(f"global_atomic_umax v1, v2, s[{S_DBG}:{S_DBG+1}] sc1")
        a("s_not_b32 s3, s96")
        a("v_mov_b32 v3, s3")
        a(f"global_atomic_umax v1, v3, s[{S_DBG}:{S_DBG+1}] offset:4 sc1")
        a("v_mov_b32 v4, s96")
        a(f"global_atomic_umax v1, v4, s[{S_DBG}:{S_DBG+1}] offset:8 sc1")
        a("s_sub_u32 s3, s94, s100")
        a("v_mov_b32 v5, s3")
        a(f"global_atomic_umax v1, v5, s[{S_DBG}:{S_DBG+1}] offset:12 sc1")
    ts_dump("l")
    a.label(L("end"))
    a("s_endpgm")
```

```python
from asmlib import *

WS_QK = 0
WS_VT = 4 << 20
WS_H = 6 << 20
NSLAB_H = 43
WS_O = WS_H + NSLAB_H * 131072
WS_SY = 14 << 20
SY_EPOCH = 0
SY_ROW = 0x20000
SY_QF = 0x40000
SY_HF = 0x60000
SY_OF = 0x80000
SY_CS = 0xA0000
SY_SIZE = 0xA0000 + 16 * 18 * 2048
WS_TIM = 16 << 20

STG = 53248
XB = 16384
IMG = 12288
ST_M = 0
ST_RS = 512
ST_CS = 1024
SB = 4096
LDS_BYTES = SB + 3 * STG

ACC = 112
WF = 76
XF = 44
SPIN = 20000

S_X, S_WQKV, S_WO, S_WG, S_WU, S_WD, S_OUT, S_DBG, S_WS = 4, 6, 8, 12, 14, 16, 18, 20, 22
S_RB, S_C, S_W, S_TB, S_J, S_TAG, S_EP = 24, 25, 26, 27, 28, 29, 30
SY = 32

def bf16_round(a, r):
    a(f"v_cvt_pk_bf16_f32 {v(r)}, {v(r)}, {v(r)}")
    a(f"v_lshlrev_b32 {v(r)}, 16, {v(r)}")

def allreduce64(a, r, t, op="v_add_f32"):
    for c in ("quad_perm:[1,0,3,2]", "quad_perm:[2,3,0,1]", "row_half_mirror", "row_mirror"):
        a("s_nop 1")
        a(f"{op}_dpp {v(r)}, {v(r)}, {v(r)} {c} row_mask:0xf bank_mask:0xf")
    for sw in ("v_permlane16_swap_b32", "v_permlane32_swap_b32"):
        a(f"v_mov_b32 {v(t)}, {v(r)}")
        a("s_nop 1")
        a(f"{sw} {v(r)}, {v(t)}")
        a("s_nop 1")
        a(f"{op} {v(r)}, {v(r)}, {v(t)}")

def body(a, name, timing=False, opt=()):
    L = lambda x: f"{name}_{x}"
    TS = {}
    def ts(role, lg=None):
        if timing:
            i = TS.get(role, 0)
            assert i < 14
            a(f"s_memtime s[{68+2*i}:{69+2*i}]")
            a("s_waitcnt lgkmcnt(0)")
            if lg is not None: lg.done = lg.n
            TS[role] = i + 1
    def ts_dump(role):
        if timing:
            a("s_mov_b64 exec, -1")
            a("s_waitcnt vmcnt(0)")
            ts(role)
            a("s_memrealtime s[98:99]")
            a("s_waitcnt lgkmcnt(0)")
            srd(a, 36, S_WS, 1 << 20, WS_TIM)
            a("s_lshl_b32 s3, s2, 9")
            a(f"s_lshl_b32 s40, s{S_W}, 6")
            a("s_add_u32 s3, s3, s40")
            a("v_mov_b32 v3, s3")
            a("v_mov_b32 v4, s96")
            a("v_mov_b32 v5, s98")
            a("buffer_store_dwordx2 v[4:5], v3, s[36:39], 0 offen offset:56")
            for q in range(TS[role]):
                a("s_nop 1")
                a(f"s_sub_u32 s40, s{68+2*q}, s100")
                a("v_mov_b32 v4, s40")
                a(f"buffer_store_dword v4, v3, s[36:39], 0 offen offset:{4*q}")
    def poll(lbl, vaddr, vdst, width=1, tagreg=0, sleep=2):
        a(f"s_mov_b32 s3, {SPIN}")
        a.label(L(lbl))
        w = {1: "dword", 4: "dwordx4"}[width]
        a(f"buffer_load_{w} {v(vdst,width)}, {v(vaddr)}, {s(SY,4)}, 0 offen sc1")
        a("s_waitcnt vmcnt(0)")
        a(f"v_cmp_eq_u32 vcc, s{S_TAG}, {v(vdst+tagreg)}")
        a("s_sub_u32 s3, s3, 1")
        a("s_cmp_eq_u32 s3, 0")
        a(f"s_cbranch_scc1 {L(lbl+'_ok')}")
        a("s_cmp_eq_u64 vcc, -1")
        a(f"s_cbranch_scc1 {L(lbl+'_ok')}")
        a(f"s_sleep {sleep}")
        a(f"s_branch {L(lbl)}")
        a.label(L(lbl + "_ok"))

    a("s_cmp_ge_u32 s2, 256")
    a(f"s_cbranch_scc1 {L('end')}")
    a("s_load_dwordx4 s[20:23], s[0:1], 64")
    a("s_load_dwordx4 s[4:7], s[0:1], 0")
    a("s_load_dwordx4 s[12:15], s[0:1], 32")
    a("s_load_dwordx2 s[8:9], s[0:1], 16")
    a("s_load_dwordx4 s[16:19], s[0:1], 48")
    if timing or "diag" in opt:
        a("s_memtime s[100:101]")
        a("s_memrealtime s[96:97]")
    a("s_and_b32 s3, s2, 7")
    a("s_lshr_b32 s31, s2, 3")
    a(f"s_and_b32 s{S_RB}, s3, 3")
    a(f"s_lshl_b32 s{S_RB}, s{S_RB}, 2")
    a("s_and_b32 s40, s31, 3")
    a(f"s_add_u32 s{S_RB}, s{S_RB}, s40")
    a(f"s_lshr_b32 s{S_C}, s3, 2")
    a(f"s_lshl_b32 s{S_C}, s{S_C}, 3")
    a("s_lshr_b32 s40, s31, 2")
    a(f"s_add_u32 s{S_C}, s{S_C}, s40")
    a(f"s_lshl_b32 s{S_TB}, s3, 2")
    a("s_and_b32 s40, s31, 3")
    a(f"s_add_u32 s{S_TB}, s{S_TB}, s40")
    a(f"s_lshr_b32 s{S_J}, s31, 2")
    a("v_lshrrev_b32 v1, 6, v0")
    a("v_and_b32 v0, 63, v0")
    a("s_nop 0")
    a(f"v_readfirstlane_b32 s{S_W}, v1")
    a("s_waitcnt lgkmcnt(0)")
    a(f"s_load_dword s{S_EP}, s[{S_WS}:{S_WS+1}], {hex(WS_SY + SY_EPOCH)}") if False else None
    srd(a, SY, S_WS, SY_SIZE, WS_SY)
    a(f"s_load_dword s{S_EP}, s[{SY}:{SY+1}], {SY_EPOCH}")
    srd(a, 36, S_X, 2048 * 1024)
    a(f"s_cmp_ge_u32 s{S_W}, 4")
    a(f"s_cbranch_scc1 {L('loader')}")

    a(f"s_lshl_b32 s40, s{S_RB}, 7")
    a(f"s_lshl_b32 s41, s{S_C}, 3")
    a("s_add_u32 s40, s40, s41")
    a(f"s_lshl_b32 s41, s{S_W}, 1")
    a("s_add_u32 s40, s40, s41")
    a("s_lshl_b32 s40, s40, 10")
    a("v_lshlrev_b32 v9, 4, v0")
    a("buffer_load_dwordx4 v[44:47], v9, s[36:39], s40 offen")
    a("buffer_load_dwordx4 v[48:51], v9, s[36:39], s40 offen offset:1024")
    a(f"s_and_b32 s42, s{S_W}, 1")
    a(f"s_lshr_b32 s43, s{S_W}, 1")
    a("v_and_b32 v1, 15, v0")
    a("v_lshrrev_b32 v2, 4, v0")
    a("v_lshrrev_b32 v3, 1, v1")
    a("v_xor_b32 v3, v3, v2")
    a("v_lshlrev_b32 v3, 4, v3")
    a("s_lshl_b32 s40, s42, 13")
    a("v_lshl_add_u32 v3, v1, 7, v3")
    a(f"s_add_u32 s40, s40, {SB}")
    a("v_add_u32 v10, s40, v3")
    a("v_xor_b32 v11, 64, v10")
    a("v_bfe_u32 v4, v0, 2, 2")
    a("v_lshl_add_u32 v4, v2, 3, v4")
    a("v_mul_u32_u24 v4, 192, v4")
    a("v_and_b32 v5, 3, v0")
    a("v_lshl_add_u32 v4, v5, 3, v4")
    a(f"v_add_u32 v4, {SB+XB}, v4")
    a("v_and_b32 v5, 1, v2")
    a("v_lshlrev_b32 v5, 5, v5")
    a("s_lshl_b32 s40, s43, 7")
    a("v_add3_u32 v12, v4, v5, s40")
    a("v_xor_b32 v6, 32, v5")
    a("v_add3_u32 v13, v4, v6, s40")
    a("s_lshl_b32 s40, s43, 5")
    a("v_xor_b32 v6, s40, v5")
    a("v_add_u32 v6, 64, v6")
    a("v_add_u32 v14, v4, v6")
    for b in (1, 2):
        for i in range(5):
            a(f"v_add_u32 {v(10+5*b+i)}, {STG*b}, {v(10+i)}")
    for i in range(0, 144, 2):
        a(f"v_pk_mov_b32 {v(ACC+i,2)}, 0, 0")
    a("s_waitcnt lgkmcnt(0)")
    a(f"s_mul_i32 s{S_TAG}, s{S_EP}, 0x01010101")
    a(f"s_add_u32 s{S_TAG}, s{S_TAG}, 0x5A3C96E1")
    a("s_waitcnt vmcnt(0)")
    for k in range(2):
        for d in range(4):
            a(f"v_lshlrev_b32 {v(52+8*k+2*d)}, 16, {v(44+4*k+d)}")
            a(f"v_and_b32 {v(53+8*k+2*d)}, 0xffff0000, {v(44+4*k+d)}")
    a("s_mov_b32 s44, 0x3b000000")
    a("s_mov_b32 s45, 0x3727c5ac")
    for k in range(2):
        b = 52 + 8 * k
        m, q = 68 + k, 70 + k
        a(f"v_add_f32 {v(m)}, {v(b)}, {v(b+1)}")
        for e in range(2, 8):
            a(f"v_add_f32 {v(m)}, {v(m)}, {v(b+e)}")
        allreduce64(a, m, 72)
        a(f"v_mul_f32 {v(m)}, s44, {v(m)}")
        for e in range(8):
            a(f"v_sub_f32 {v(b+e)}, {v(b+e)}, {v(m)}")
        a(f"v_mul_f32 {v(q)}, {v(b)}, {v(b)}")
        for e in range(1, 8):
            a(f"v_fmac_f32 {v(q)}, {v(b+e)}, {v(b+e)}")
        allreduce64(a, q, 72)
        a(f"v_mul_f32 {v(q)}, s44, {v(q)}")
        bf16_round(a, q)
        a(f"v_add_f32 {v(q)}, s45, {v(q)}")
        bf16_round(a, q)
        a(f"v_sqrt_f32 {v(q)}, {v(q)}")
        a("s_nop 0")
        a(f"v_cvt_pk_bf16_f32 {v(44+k)}, {v(m)}, {v(q)}")
    a(f"v_mov_b32 v46, s{S_TAG}")
    a(f"v_mov_b32 v47, s{S_TAG}")
    a(f"s_lshl_b32 s40, s{S_RB}, 4")
    a(f"s_add_u32 s40, s40, s{S_C}")
    a("s_lshl_b32 s40, s40, 2")
    a(f"s_add_u32 s40, s40, s{S_W}")
    a("s_lshl_b32 s46, s40, 7")
    a(f"s_add_u32 s40, s46, {SY_ROW}")
    a("s_mov_b64 exec, 0xff")
    a(f"buffer_store_dwordx4 v[44:47], v9, {s(SY,4)}, s40 offen sc1")
    a("s_mov_b64 exec, -1")
    a("v_mov_b32 v27, 0")

    def rd_x(buf, ks, xb):
        return [f"ds_read_b128 {v(XF+16*xb+4*i,4)}, {v(10+5*buf+ks)} offset:{i*2048}" for i in range(4)]
    def rd_w(buf, ks, j):
        img, p = j // 3, j % 3
        addr = 10 + 5 * buf + 2 + p
        return [f"ds_read_b64_tr_b16 {v(WF+4*j+2*hf,2)}, {v(addr)} offset:{img*IMG + ks*6144 + hf*768}" for hf in range(2)]
    def mfma(j, i, xb):
        acc = v(ACC + 4 * (4 * j + i), 4)
        w = v(WF + 4 * j, 4); x = v(XF + 16 * xb + 4 * i, 4)
        if j == 2:
            return f"v_mfma_f32_16x16x32_bf16 {acc}, {x}, {w}, {acc}"
        return f"v_mfma_f32_16x16x32_bf16 {acc}, {w}, {x}, {acc}"
    lg = Counter(a, "lgkmcnt", 12)
    def q_x(step):
        buf, ks = (step // 2) % 3, step % 2
        return [(l, ("x", step, i)) for i, l in enumerate(rd_x(buf, ks, step % 2))]
    def q_w(step, j):
        buf, ks = (step // 2) % 3, step % 2
        return [(l, ("w", step, j)) for l in rd_w(buf, ks, j)]
    ts("c", lg)
    a("s_barrier")
    ts("c", lg)
    a(f"s_cmp_lg_u32 s{S_W}, 0")
    a(f"s_cbranch_scc1 {L('noat')}")
    a("v_mov_b32 v26, 1")
    a("s_mov_b64 exec, 1")
    a(f"global_atomic_add v26, v27, v26, s[{S_DBG}:{S_DBG+1}] sc0 sc1")
    a("s_mov_b64 exec, -1")
    a.label(L("noat"))
    for l, t in q_x(0): lg.issue(l, t)
    for j in range(9):
        if j == 4: lg.wait(("w", 0, 0))
        for l, t in q_w(0, j): lg.issue(l, t)
    pend = []
    for step in range(16):
        ks = step % 2
        xb = step % 2
        nstep = step + 1
        has_next = nstep < 16
        hold = []
        for j in range(9):
            while any(t in (("w", step, j),) or t[:2] == ("x", step) for _, t in pend):
                l, t = pend.pop(0); lg.issue(l, t)
            lg.wait(("w", step, j), ("x", step, 3))
            for i in range(4):
                a(mfma(j, i, xb))
                if pend:
                    l, t = pend.pop(0); lg.issue(l, t)
            new = []
            if has_next:
                new += q_w(nstep, j)
                if j in (2, 3):
                    new += q_x(nstep)[2*(j-2):2*(j-2)+2]
            if ks == 1 and j < 1:
                hold += new
                continue
            if ks == 1 and j == 1:
                assert not pend
                lg.wait_all()
                a("s_barrier")
                if step in (3, 7, 11, 15): ts("c", lg)
                pend += hold
            pend += new
    ts("c", lg)
    a(f"s_cmp_lg_u32 s{S_W}, 0")
    a(f"s_cbranch_scc1 {L('noep')}")
    a("s_waitcnt vmcnt(0)")
    a("v_readfirstlane_b32 s3, v26")
    a("s_nop 3")
    a("s_cmp_lg_u32 s3, 255")
    a(f"s_cbranch_scc1 {L('noep')}")
    a(f"s_add_u32 s3, s{S_EP}, 1")
    a("v_mov_b32 v26, s3")
    a("s_mov_b64 exec, 1")
    a(f"buffer_store_dword v26, v27, {s(SY,4)}, 0 offen sc1")
    a("s_mov_b64 exec, -1")
    a.label(L("noep"))
    srd(a, 48, S_WS, 4 << 20, WS_QK)
    srd(a, 52, S_WS, 2 << 20, WS_VT)
    srd(a, 56, S_WS, NSLAB_H * 131072, WS_H)
    a("s_lshl_b32 s40, s42, 8")
    a("v_lshl_add_u32 v3, v1, 2, s40")
    for i in range(4):
        a(f"ds_read_b32 {v(44+2*i)}, v3 offset:{ST_M + 64*i}")
        a(f"ds_read_b32 {v(45+2*i)}, v3 offset:{ST_RS + 64*i}")
    a("v_lshl_add_u32 v7, v2, 4, s40")
    a("s_lshl_b32 s40, s43, 8")
    a("v_lshl_add_u32 v4, v2, 4, s40")
    a("s_lshl_b32 s40, s43, 6")
    a("v_lshl_add_u32 v5, v2, 4, s40")
    a("v_lshl_add_u32 v6, v1, 2, s40")
    for j in range(9):
        img, p = j // 3, j % 3
        if j == 2:
            a(f"ds_read_b32 {v(WF+4*j)}, v6 offset:{ST_CS + 128}")
        elif p < 2:
            a(f"ds_read_b128 {v(WF+4*j,4)}, v4 offset:{ST_CS + img*384 + p*64}")
        else:
            a(f"ds_read_b128 {v(WF+4*j,4)}, v5 offset:{ST_CS + img*384 + 128}")
    a(f"s_cmp_lt_u32 s{S_C}, 8")
    a("s_cselect_b32 s60, 0x3eb8aa3b, 1.0")
    a(f"s_lshl_b32 s61, s{S_C}, 2")
    a("s_lshl_b32 s40, s43, 1")
    a("s_add_u32 s61, s61, s40")
    a("s_lshl_b32 s61, s61, 16")
    a(f"s_lshl_b32 s40, s{S_RB}, 12")
    a("s_add_u32 s61, s61, s40")
    a("s_lshl_b32 s62, s42, 11")
    a("s_add_u32 s61, s61, s62")
    a("s_add_u32 s62, s62, s40")
    a(f"s_lshl_b32 s40, s{S_C}, 1")
    a("s_add_u32 s40, s40, s43")
    a("s_lshl_b32 s40, s40, 16")
    a("s_add_u32 s62, s62, s40")
    a("v_and_b32 v8, 1, v2")
    a("v_lshl_add_u32 v8, v8, 4, v1")
    a("v_lshlrev_b32 v8, 5, v8")
    a("v_lshrrev_b32 v9, 1, v2")
    a("v_lshl_add_u32 v8, v9, 4, v8")
    a("s_add_u32 s63, s61, 0x10000")
    a("v_lshl_add_u32 v9, v9, 4, v1")
    a("v_lshlrev_b32 v9, 4, v9")
    a("v_and_b32 v60, 1, v2")
    a("v_lshl_add_u32 v9, v60, 10, v9")
    a(f"s_mul_i32 s64, s{S_C}, 3")
    a("s_lshl_b32 s40, s43, 1")
    a("s_add_u32 s65, s64, s40")
    a("s_add_u32 s64, s64, 1")
    a("s_lshl_b32 s65, s65, 17")
    a("s_lshl_b32 s64, s64, 17")
    a(f"s_lshl_b32 s40, s{S_RB}, 13")
    a("s_add_u32 s65, s65, s40")
    a("s_add_u32 s64, s64, s40")
    a("s_lshl_b32 s40, s42, 12")
    a("s_add_u32 s65, s65, s40")
    a("s_add_u32 s64, s64, s40")
    a("s_lshl_b32 s40, s43, 9")
    a("s_add_u32 s64, s64, s40")
    a("s_waitcnt lgkmcnt(0)")
    for i in range(4):
        a(f"ds_read_b128 {v(10+8*i,4)}, v7 offset:{ST_M + 64*i}")
        a(f"ds_read_b128 {v(14+8*i,4)}, v7 offset:{ST_RS + 64*i}")
    for i in range(4):
        a(f"v_mul_f32 {v(52+2*i)}, s60, {v(45+2*i)}")
        a(f"v_mul_f32 {v(53+2*i)}, {v(45+2*i)}, {v(45+2*i)}")
    A = lambda j, i, r: ACC + 4 * (4 * j + i) + r
    BL = "op_sel_hi:[1,0,1]"
    def corr(j, i):
        for r in (0, 2):
            a(f"v_pk_fma_f32 {v(A(j,i,r),2)}, {v(WF+4*j+r,2)}, {v(44+2*i,2)}, {v(A(j,i,r),2)} {BL}")
    vm = Counter(a, "vmcnt", 60)
    def pack_store(j, i0, vo, sr, so, off, tag):
        d = A(j, i0, 0)
        a(f"v_cvt_pk_bf16_f32 {v(d)}, {v(d)}, {v(d+1)}")
        a(f"v_cvt_pk_bf16_f32 {v(d+1)}, {v(d+2)}, {v(d+3)}")
        a(f"v_cvt_pk_bf16_f32 {v(d+2)}, {v(d+4)}, {v(d+5)}")
        a(f"v_cvt_pk_bf16_f32 {v(d+3)}, {v(d+6)}, {v(d+7)}")
        a("s_nop 0")
        a(f"v_permlane16_swap_b32 {v(d)}, {v(d+2)}")
        a(f"v_permlane16_swap_b32 {v(d+1)}, {v(d+3)}")
        vm.issue(f"buffer_store_dwordx4 {v(d,4)}, {v(vo)}, {s(sr,4)}, {s(so)} offen offset:{off} sc1", tag)
    for j in (0, 1):
        for i in range(4):
            corr(j, i)
            for r in (0, 2):
                a(f"v_pk_mul_f32 {v(A(j,i,r),2)}, {v(A(j,i,r),2)}, {v(52+2*i,2)} op_sel_hi:[1,0]")
            if i & 1:
                pack_store(j, i - 1, 8, 48, 61 if j == 0 else 63, 512 * (i - 1), "qkv")
    a("s_waitcnt lgkmcnt(0)")
    for i in range(4):
        for r in (0, 2):
            a(f"v_pk_fma_f32 {v(A(2,i,r),2)}, {v(10+8*i+r,2)}, {v(WF+8,2)}, {v(A(2,i,r),2)} {BL}")
        for r in (0, 2):
            a(f"v_pk_mul_f32 {v(A(2,i,r),2)}, {v(A(2,i,r),2)}, {v(14+8*i+r,2)}")
        if i & 1:
            pack_store(2, i - 1, 8, 52, 62, 512 * (i - 1), "qkv")
    for p in range(3):
        for i in range(4):
            corr(3 + p, i); corr(6 + p, i)
            for r in range(4):
                a(f"v_max_f32 {v(A(3+p,i,r))}, 0, {v(A(3+p,i,r))}")
            for r in (0, 2):
                a(f"v_pk_mul_f32 {v(A(6+p,i,r),2)}, {v(A(6+p,i,r),2)}, {v(52+2*i,2)} op_sel:[0,1] op_sel_hi:[1,1]")
            for r in (0, 2):
                a(f"v_pk_mul_f32 {v(A(3+p,i,r),2)}, {v(A(3+p,i,r),2)}, {v(A(6+p,i,r),2)}")
            if i & 1:
                pack_store(3 + p, i - 1, 9, 56, 65 if p < 2 else 64, 1024 * (i - 1) + (512 if p == 1 else 0), "h")
    a("s_barrier")
    ts("c")
    a("v_lshlrev_b32 v3, 4, v0")
    for r in range(4):
        a(f"v_mov_b32 {v(4+r)}, s{S_TAG}")
    a(f"s_add_u32 s40, s46, {SY_QF}")
    a(f"s_add_u32 s41, s46, {SY_HF}")
    vm.wait("qkv")
    a("s_mov_b64 exec, 0xff")
    vm.issue(f"buffer_store_dwordx4 v[4:7], v3, {s(SY,4)}, s40 offen sc1")
    vm.wait("h")
    vm.issue(f"buffer_store_dwordx4 v[4:7], v3, {s(SY,4)}, s41 offen sc1")
    a("s_mov_b64 exec, -1")
    a("s_nop 1")
    ts("c")

    KF, VF, QF = 16, 56, 136
    S = [144, 160, 176]
    NM, O, P, MK = 192, 208, 224, 240
    srd(a, 56, S_WS, 16 * 131072, WS_O)
    a(f"s_lshl_b32 s40, s{S_J}, 2")
    a(f"s_add_u32 s42, s40, s{S_W}")
    a("s_lshl_b32 s43, s42, 16")
    a("s_add_u32 s44, s43, 0x200000")
    a(f"s_lshl_b32 s45, s{S_TB}, 6")
    a("v_and_b32 v1, 31, v0")
    a("v_lshrrev_b32 v2, 5, v0")
    a("v_lshlrev_b32 v3, 4, v2")
    a("v_bfe_u32 v4, v0, 2, 3")
    a("v_min_u32 v4, 4, v4")
    a("v_and_b32 v5, 3, v0")
    a("v_cmp_eq_u32 vcc, 1, v5")
    a(f"v_cmp_eq_u32 s[60:61], 2, v5")
    a("s_nop 1")
    a("s_or_b64 s[62:63], vcc, s[60:61]")
    a("s_nop 1")
    a("v_cndmask_b32 v4, 0, v4, s[62:63]")
    a(f"v_sub_u32 v4, s{S_TB}, v4")
    a("v_max_i32 v4, 0, v4")
    a("s_bfe_u32 s40, s42, 0x10001")
    a("s_lshl_b32 s40, s40, 8")
    a(f"s_lshl_b32 s41, s{S_J}, 9")
    a("s_add_u32 s40, s40, s41")
    a("s_add_u32 s41, s40, 4096")
    a("s_lshl_b32 s47, s42, 8")
    a("v_mov_b32 v6, s40")
    a("v_mov_b32 v7, s41")
    a("v_cndmask_b32 v6, v6, v7, vcc")
    a("v_mov_b32 v7, s47")
    a("v_cndmask_b32 v6, v6, v7, s[60:61]")
    a("v_lshrrev_b32 v7, 1, v4")
    a("v_lshl_add_u32 v6, v7, 13, v6")
    a("v_and_b32 v7, 1, v4")
    a("v_lshl_add_u32 v6, v7, 7, v6")
    a(f"v_add_u32 v6, {SY_QF}, v6")
    a("v_lshlrev_b32 v8, 3, v2")
    a("v_sub_u32 v8, v1, v8")
    a("s_sub_u32 s47, s45, 256")
    a("s_mov_b32 exec_lo, 0xffff0000")
    a("s_mov_b32 exec_hi, 0xffff0000")
    for kt in range(10):
        a(f"s_cmp_ge_i32 s47, {-32*kt}")
        a("s_cselect_b32 s40, 0x3f803f80, 0")
        a("s_mov_b32 s41, s40")
        for r in range(0, 8, 2):
            a(f"v_pk_mov_b32 {v(VF+8*kt+r,2)}, s[40:41], s[40:41]")
    a("s_mov_b64 exec, -1")
    a("v_add_u32 v4, s45, v1")
    a("v_lshl_add_u32 v4, v4, 5, v3")
    a("v_and_b32 v5, 0x13, v1")
    a("v_bfe_u32 v7, v1, 2, 1")
    a("v_lshl_or_b32 v5, v7, 3, v5")
    a("v_bfe_u32 v7, v1, 3, 1")
    a("v_lshl_or_b32 v5, v7, 2, v5")
    a("v_lshl_add_u32 v7, v5, 5, v3")
    a("v_add_u32 v5, s47, v5")
    for kt in range(10):
        a(f"v_add_u32 {v(S[0]+kt)}, {32*kt}, v5")
        a(f"v_max_i32 {v(S[0]+kt)}, 0, {v(S[0]+kt)}")
        a(f"v_lshl_add_u32 {v(S[0]+kt)}, {v(S[0]+kt)}, 5, v3")
    a("v_and_b32 v12, 15, v1")
    a("v_lshl_add_u32 v12, v2, 4, v12")
    a("v_lshlrev_b32 v12, 4, v12")
    a("v_lshrrev_b32 v13, 4, v1")
    a("v_lshl_add_u32 v12, v13, 10, v12")
    a("s_and_b32 s40, s42, 1")
    a("s_lshl_b32 s40, s40, 9")
    a("v_add_u32 v12, s40, v12")
    a("s_lshr_b32 s46, s42, 1")
    a("s_lshl_b32 s46, s46, 17")
    a(f"s_lshl_b32 s40, s{S_TB}, 12")
    a("s_add_u32 s46, s46, s40")
    poll("pq", 6, 14)
    ts("c")
    vm = Counter(a, "vmcnt", 60)
    for t in range(2):
        vm.issue(f"buffer_load_dwordx4 {v(QF+4*t,4)}, v4, s[48:51], s43 offen offset:{1024*t} sc1", ("q", t))
    for kt in range(10):
        vm.issue(f"buffer_load_dwordx4 {v(KF+4*kt,4)}, {v(S[0]+kt)}, s[48:51], s44 offen sc1", ("k", kt))
    a("s_mov_b32 exec_lo, 0xffff")
    a("s_mov_b32 exec_hi, 0xffff")
    a("s_lshl_b32 s41, s47, 5")
    a("s_add_u32 s41, s41, s43")
    for kt in list(range(1, 10)) + [0]:
        a(f"s_add_u32 s40, s41, {1024*kt}")
        a(f"s_cmp_ge_i32 s47, {-32*kt}")
        a("s_cselect_b32 s40, s40, 0x7fff0000")
        for hh in range(2):
            vm.issue(f"buffer_load_dwordx4 {v(VF+8*kt+4*hh,4)}, v7, s[52:55], s40 offen offset:{512*hh} sc1", ("v", kt))
    a("s_mov_b64 exec, -1")
    if timing:
        pass
    MS = 60 if not timing else None
    if timing:
        MSL = [4, 6, 8, 10, 12, 14, 16, 18, 60, 62, 64, 66, 36, 38, 40, 44]
    else:
        MSL = [60 + 2 * r for r in range(16)]
    for r in range(16):
        a(f"v_cmp_le_i32 {s(MSL[r],2)}, {(r&7)+16*(r>>3)}, v8")
    a("v_mov_b32 v9, 0xffff")
    a("v_mov_b32 v10, 0xffff0000")
    for p in range(8):
        a(f"v_cndmask_b32 {v(MK+p)}, 0, v9, {s(MSL[2*p],2)}")
        a(f"v_cndmask_b32 v11, 0, v10, {s(MSL[2*p+1],2)}")
        a(f"v_or_b32 {v(MK+p)}, {v(MK+p)}, v11")
    def M(dst, kt, t, c):
        vm.wait(("k", kt), ("q", t))
        a(f"v_mfma_f32_32x32x16_bf16 {v(dst,16)}, {v(KF+4*kt,4)}, {v(QF+4*t,4)}, {c}")
    for t in range(2):
        far, diag = t, t + 8
        full = list(range(t + 1, t + 8))
        MX = 14
        M(O, far, t, "0")
        if t == 0: ts("c")
        M(S[0], full[0], t, "0")
        M(S[1], full[1], t, "0")
        a("s_nop 7")
        def mx(src, first=False):
            for q in range(0, 16, 4):
                if first and q == 0:
                    a(f"v_max_f32 {v(MX)}, {v(src)}, {v(src+1)}")
                    a(f"v_max_f32 {v(MX+1)}, {v(src+2)}, {v(src+3)}")
                else:
                    a(f"v_max3_f32 {v(MX)}, {v(src+q)}, {v(src+q+1)}, {v(MX)}")
                    a(f"v_max3_f32 {v(MX+1)}, {v(src+q+2)}, {v(src+q+3)}, {v(MX+1)}")
        for n in range(7):
            if n + 2 < 7:
                M(S[(n + 2) % 3], full[n + 2], t, "0")
            elif n + 2 == 7:
                M(NM, diag, t, "0")
            if n == 0:
                a("s_nop 1")
            mx(S[n % 3], first=(n == 0))
        for r in range(16):
            a(f"v_cndmask_b32 {v(O+r)}, {v(O+r)}, {v(NM+r)}, {s(MSL[r],2)}")
        mx(O)
        a(f"v_max_f32 {v(MX)}, {v(MX)}, {v(MX+1)}")
        a(f"v_mov_b32 {v(MX+1)}, {v(MX)}")
        a("s_nop 1")
        a(f"v_permlane32_swap_b32 {v(MX)}, {v(MX+1)}")
        a("s_nop 1")
        a(f"v_max_f32 {v(MX)}, {v(MX)}, {v(MX+1)}")
        a(f"v_sub_f32 {v(MX)}, 0, {v(MX)}")
        for r in range(0, 16, 2):
            a(f"v_pk_mov_b32 {v(NM+r,2)}, {v(MX,2)}, {v(MX,2)} op_sel:[0,0]")
        a("s_nop 1")
        M(S[0], full[0], t, v(NM, 16))
        M(S[2], far, t, v(NM, 16))
        a("s_nop 9")
        first_pv = [True]
        def PV(kt, hh, preg):
            vm.wait(("v", kt))
            c = "0" if first_pv[0] else v(O, 16)
            first_pv[0] = False
            a(f"v_mfma_f32_32x32x16_bf16 {v(O,16)}, {v(VF+8*kt+4*hh,4)}, {v(preg+4*hh,4)}, {c}")
        for n in range(8):
            cur = S[n % 2]
            nxt = S[(n + 1) % 2]
            if n + 1 < 7:
                M(nxt, full[n + 1], t, v(NM, 16))
            elif n + 1 == 7:
                M(nxt, diag, t, v(NM, 16))
            if n == 7:
                for r in range(16):
                    a(f"v_cndmask_b32 {v(cur+r)}, {v(S[2]+r)}, {v(cur+r)}, {s(MSL[r],2)}")
            for r in range(16):
                a(f"v_exp_f32 {v(cur+r)}, {v(cur+r)}")
                if n > 0 and r == 5: PV(full[n - 1], 0, P)
                if n > 0 and r == 11: PV(full[n - 1], 1, P)
            for p in range(8):
                a(f"v_cvt_pk_bf16_f32 {v(P+p)}, {v(cur+2*p)}, {v(cur+2*p+1)}")
        for p in range(8):
            a(f"v_bfi_b32 {v(P+8+p)}, {v(MK+p)}, 0, {v(P+p)}")
            a(f"v_and_b32 {v(P+p)}, {v(MK+p)}, {v(P+p)}")
        a("s_nop 1")
        PV(diag, 0, P); PV(diag, 1, P); PV(far, 0, P + 8); PV(far, 1, P + 8)
        a("s_nop 11")
        a(f"v_rcp_f32 v14, {v(O+8)}")
        a("s_nop 0")
        for r in range(8):
            a(f"v_mul_f32 {v(O+r)}, v14, {v(O+r)}")
        for p in range(4):
            a(f"v_cvt_pk_bf16_f32 {v(248+4*t+p)}, {v(O+2*p)}, {v(O+2*p+1)}")
        vm.issue(f"buffer_store_dwordx4 {v(248+4*t,4)}, v12, s[56:59], s46 offen offset:{2048*t} sc1")
    ts("c")
    a(f"s_lshl_b32 s40, s{S_TB}, 5")
    a("s_add_u32 s40, s40, s42")
    a("s_lshl_b32 s40, s40, 7")
    a(f"s_add_u32 s40, s40, {SY_OF}")
    a("v_lshlrev_b32 v3, 4, v0")
    for r in range(4):
        a(f"v_mov_b32 {v(4+r)}, s{S_TAG}")
    a("s_mov_b64 exec, 0xff")
    a("s_waitcnt vmcnt(0)")
    a(f"buffer_store_dwordx4 v[4:7], v3, {s(SY,4)}, s40 offen sc1")
    a("s_nop 1")
    ts_dump("c")
    a(f"s_branch {L('end')}")

    a.label(L("loader"))
    LW = 31
    a(f"s_sub_u32 s{LW}, s{S_W}, 4")
    a("s_setprio 3")
    srd(a, 40, S_WQKV, 512 * 3072)
    srd(a, 44, S_WG, 512 * 2752)
    srd(a, 48, S_WU, 512 * 2752)
    a(f"s_and_b32 s52, s{S_RB}, 1")
    a(f"s_lshr_b32 s53, s{S_RB}, 1")
    a("s_xor_b32 s10, s53, 1")
    a("v_lshrrev_b32 v1, 3, v0")
    a("v_and_b32 v2, 7, v0")
    a("s_lshl_b32 s3, s52, 2")
    a("v_xor_b32 v2, s3, v2")
    a(f"s_lshl_b32 s54, s{S_RB}, 7")
    a(f"s_lshl_b32 s55, s{LW}, 5")
    a("s_add_u32 s54, s54, s55")
    a("v_lshrrev_b32 v4, 4, v0")
    a("v_xor_b32 v4, v4, v2")
    a("v_add_u32 v3, s54, v1")
    a("v_lshlrev_b32 v3, 10, v3")
    a("v_lshl_add_u32 v10, v4, 4, v3")
    a("v_xor_b32 v11, 64, v10")
    a("v_add_u32 v11, 0x2000, v11")
    a("v_add_u32 v12, 0x4000, v10")
    a("v_add_u32 v13, 0x4000, v11")
    a(f"s_lshl_b32 s56, s{LW}, 12")
    a(f"s_add_u32 s56, s56, {SB}")
    a(f"s_mul_i32 s57, s{LW}, 3072")
    a(f"s_add_u32 s57, s57, {SB+XB}")
    vm = Counter(a, "vmcnt", 60)
    lg = Counter(a, "lgkmcnt", 12)
    def dma_soff(stage):
        a(f"s_add_u32 s58, s{10 if stage & 1 else 53}, {stage & ~1}")
        a("s_and_b32 s58, s58, 7")
        a(f"s_mul_i32 s59, s58, {64*3072}")
        a(f"s_mul_i32 s60, s58, {64*2752}")
        a("s_lshl_b32 s58, s58, 7")
    def dma_x(stage):
        buf = stage % 3
        for i in range(4):
            a(f"s_add_u32 m0, s56, {buf*STG + i*1024}")
            a("s_nop 0")
            vm.issue(f"buffer_load_dwordx4 {v(10+i)}, s[36:39], s58 offen lds", ("st", stage))
    def dma_wimg(stage, lo=0, hi=9):
        buf = stage % 3
        for n in range(lo, hi):
            img, b = n // 3, n % 3
            a(f"s_add_u32 m0, s57, {buf*STG + img*IMG + b*1024}")
            a("s_nop 0")
            if img == 0:
                vm.issue(f"buffer_load_dwordx4 {v(14+b)}, s[40:43], s59 offen lds", ("st", stage))
            else:
                vm.issue(f"buffer_load_dwordx4 {v(17+b)}, {s(40+4*img,4)}, s60 offen lds", ("st", stage))
    def dma(stage):
        dma_soff(stage); dma_x(stage); dma_wimg(stage)
    dma_soff(0); dma_x(0)
    a("s_lshl_b32 s3, s52, 1")
    a(f"s_xor_b32 s54, s{LW}, s3")
    a("s_lshl_b32 s54, s54, 4")
    a(f"s_mul_i32 s55, s{S_C}, 192")
    a(f"s_lshl_b32 s61, s{S_C}, 7")
    a(f"s_lshl_b32 s62, s{S_C}, 6")
    a("s_add_u32 s62, s62, 2048")
    a("s_movk_i32 s63, 2752")
    a("s_movk_i32 s64, 3072")
    a("v_mov_b32 v8, s61")
    a("v_mov_b32 v9, s62")
    for b in range(3):
        a(f"v_add_u32 v3, {64*b}, v0")
        a("v_mul_u32_u24 v4, 171, v3")
        a("v_lshrrev_b32 v4, 11, v4")
        a("v_mul_u32_u24 v5, 12, v4")
        a("v_sub_u32 v5, v3, v5")
        a("v_lshrrev_b32 v6, 3, v4")
        a("v_lshlrev_b32 v6, 1, v6")
        a("v_xor_b32 v5, v5, v6")
        a("v_add_u32 v4, s54, v4")
        a("v_mul_u32_u24 v6, s63, v4")
        a("v_lshl_add_u32 v6, v5, 4, v6")
        a(f"v_add_u32 {v(17+b)}, s55, v6")
        a("v_cmp_gt_u32 vcc, 4, v5")
        a("v_mul_u32_u24 v6, s64, v4")
        a("v_subrev_u32 v7, 4, v5")
        a("v_cndmask_b32 v7, v7, v5, vcc")
        a("v_lshl_add_u32 v6, v7, 4, v6")
        a("v_lshrrev_b32 v7, 2, v5")
        a("v_cmp_eq_u32 vcc, 1, v7")
        a("s_nop 1")
        a("v_cndmask_b32 v7, v8, v9, vcc")
        a(f"v_add_u32 {v(14+b)}, v6, v7")
    dma_wimg(0)
    dma_soff(1); dma_x(1); dma_wimg(1, 0, 2)
    a("v_lshrrev_b32 v2, 4, v0")
    a("v_bfe_u32 v4, v0, 2, 2")
    a("v_lshl_add_u32 v4, v2, 3, v4")
    a("v_mul_u32_u24 v4, 192, v4")
    a("v_and_b32 v5, 3, v0")
    a("v_lshl_add_u32 v4, v5, 3, v4")
    a(f"v_add_u32 v4, {SB+XB}, v4")
    a("v_and_b32 v5, 1, v2")
    a("v_lshlrev_b32 v5, 5, v5")
    for i in range(5):
        T = 61 + i
        if i < 4:
            a(f"s_add_u32 s{T}, s{LW}, {4*i}")
        else:
            a(f"s_and_b32 s{T}, s{LW}, 1")
            a(f"s_add_u32 s{T}, s{T}, 16")
        a(f"s_mul_i32 s54, s{T}, 43")
        a("s_lshr_b32 s54, s54, 8")
        a("s_mul_i32 s55, s54, 6")
        a(f"s_sub_u32 s55, s{T}, s55")
        a("s_lshl_b32 s55, s55, 5")
        a(f"s_mul_i32 s54, s54, {IMG}")
        a("v_xor_b32 v6, s55, v5")
        a(f"v_add3_u32 {v(21+i)}, v4, v6, s54")
    for r in range(4):
        a(f"v_mov_b32 {v(28+r)}, 0x3f803f80")
    a("v_and_b32 v6, 15, v0")
    a("v_cmp_gt_u32 vcc, 2, v6")
    a("v_lshlrev_b32 v26, 4, v2")
    a("v_lshl_add_u32 v26, v6, 6, v26")
    a("v_mov_b32 v6, 0x7fff0000")
    a("v_cndmask_b32 v26, v6, v26, vcc")
    a(f"s_mul_i32 s66, s{S_C}, {18*2048}")
    a(f"s_add_u32 s66, s66, {SY_CS}")
    a("s_waitcnt lgkmcnt(0)")
    a(f"s_mul_i32 s{S_TAG}, s{S_EP}, 0x01010101")
    a(f"s_add_u32 s{S_TAG}, s{S_TAG}, 0x5A3C96E1")
    ts("l")
    vm.wait(("st", 0))
    a("s_barrier")
    ts("l")
    dma_wimg(1, 2, 9)
    dma(2)
    ts("l")
    WD = 32
    for i in range(5):
        for hf in range(2):
            lg.issue(f"ds_read_b64_tr_b16 {v(WD+4*i+2*hf,2)}, {v(21+i)} offset:{hf*768}", ("c", i))
    for i in range(5):
        lg.wait(("c", i))
        a(f"v_mfma_f32_16x16x32_bf16 {v(52+4*i,4)}, {v(WD+4*i,4)}, v[28:31], 0")
    a(f"s_lshl_b32 s54, s{S_RB}, 7")
    a("s_add_u32 s54, s54, s66")
    a("v_mov_b32 v6, 0xff")
    a(f"s_lshr_b32 s67, s{S_TAG}, 8")
    a(f"s_lshr_b32 s0, s{S_TAG}, 16")
    a(f"s_lshr_b32 s1, s{S_TAG}, 24")
    TB = [S_TAG, 67, 0, 1]
    a("s_nop 2")
    for i in range(5):
        for r in range(4):
            a(f"v_bfi_b32 {v(52+4*i+r)}, v6, s{TB[r]}, {v(52+4*i+r)}")
        a(f"s_lshl_b32 s55, s{61+i}, 11")
        a("s_add_u32 s55, s55, s54")
        if "nocsst" not in opt:
            vm.issue(f"buffer_store_dwordx4 {v(52+4*i,4)}, v26, {s(SY,4)}, s55 offen sc1")
    ts("l")
    ts("l")
    vm.wait(("st", 1))
    ts("l")
    a("s_barrier")
    dma(3)
    ts("l")
    vm.wait(("st", 2))
    ts("l")
    a("s_barrier")
    dma(4)
    a("v_lshrrev_b32 v4, 2, v0")
    a("v_and_b32 v5, 3, v0")
    a("v_lshlrev_b32 v4, 7, v4")
    a("v_lshl_add_u32 v34, v5, 4, v4")
    a(f"s_lshl_b32 s54, s{S_RB}, 13")
    a(f"s_lshl_b32 s55, s{LW}, 11")
    a("s_add_u32 s54, s54, s55")
    a(f"s_add_u32 s54, s54, {SY_ROW}")
    a("v_and_b32 v33, 15, v0")
    a("v_lshlrev_b32 v33, 7, v33")
    a("v_add_u32 v33, s54, v33")
    a("v_mov_b32 v35, 0x0c0c0400")
    vm.wait(("st", 3))
    a("s_barrier")
    def gather(cnt):
        f = (lambda l: vm.issue(l, "gat")) if cnt else a
        f(f"buffer_load_dwordx4 v[40:43], v33, {s(SY,4)}, 0 offen sc1")
        for i in range(5):
            a(f"s_lshl_b32 s55, s{61+i}, 11")
            a("s_add_u32 s55, s55, s66")
            f(f"buffer_load_dwordx4 {v(52+4*i,4)}, v34, {s(SY,4)}, s55 offen sc1")
    if "nogat" not in opt:
        gather(True)
    else:
        vm.tag["gat"] = vm.n
    dma(5)
    vm.wait(("st", 4))
    a("s_barrier")
    dma(6)
    vm.wait(("st", 5), "gat")
    a(f"s_mov_b32 s3, {SPIN}")
    if "nogat" in opt:
        a(f"s_branch {L('valok')}")
    a.label(L("val"))
    a(f"v_cmp_eq_u32 vcc, s{S_TAG}, v42")
    for i in range(5):
        b = 52 + 4 * i
        a(f"v_perm_b32 v36, {v(b+1)}, {v(b)}, v35")
        a(f"v_perm_b32 v37, {v(b+3)}, {v(b+2)}, v35")
        a("v_lshl_or_b32 v36, v37, 16, v36")
        a(f"v_cmp_eq_u32 s[54:55], s{S_TAG}, v36")
        a("s_nop 1")
        a("s_and_b64 vcc, vcc, s[54:55]")
    a("s_cmp_eq_u64 vcc, -1")
    a(f"s_cbranch_scc1 {L('valok')}")
    a("s_sub_u32 s3, s3, 1")
    a("s_cmp_eq_u32 s3, 0")
    a(f"s_cbranch_scc1 {L('valok')}")
    a("s_sleep 4")
    gather(False)
    a("s_waitcnt vmcnt(0)")
    a(f"s_branch {L('val')}")
    a.label(L("valok"))
    a("s_barrier")
    dma(7)
    a("v_and_b32 v6, 15, v0")
    a(f"s_lshl_b32 s3, s{LW}, 7")
    a("v_lshl_add_u32 v6, v6, 3, s3")
    for k in range(2):
        a(f"v_lshlrev_b32 {v(44+k)}, 16, {v(40+k)}")
        a(f"v_xor_b32 {v(44+k)}, 0x80000000, {v(44+k)}")
        a(f"v_and_b32 {v(46+k)}, 0xffff0000, {v(40+k)}")
        a(f"v_rcp_f32 {v(46+k)}, {v(46+k)}")
    a("s_nop 0")
    a(f"ds_write_b64 v6, v[44:45] offset:{ST_M}")
    a(f"ds_write_b64 v6, v[46:47] offset:{ST_RS}")
    for c in ("row_ror:4", "row_ror:8"):
        for r in range(20 if "nored" not in opt else 0):
            a(f"v_add_f32_dpp {v(52+r)}, {v(52+r)}, {v(52+r)} {c} row_mask:0xf bank_mask:0xf")
    a("v_and_b32 v6, 3, v0")
    a("v_lshlrev_b32 v6, 4, v6")
    def lvl2():
        for sw in ("v_permlane16_swap_b32", "v_permlane32_swap_b32"):
            for r in range(20):
                a(f"v_mov_b32 {v(72+r)}, {v(52+r)}")
            for r in range(20):
                a(f"{sw} {v(52+r)}, {v(72+r)}")
            for r in range(0, 20, 2):
                a(f"v_pk_add_f32 {v(52+r,2)}, {v(52+r,2)}, {v(72+r,2)}")
        for i in range(5):
            a(f"s_lshl_b32 s3, s{61+i}, 6")
            a("v_add_u32 v30, s3, v29")
            a(f"ds_write_b128 v30, {v(52+4*i,4)} offset:{ST_CS}")
    a("v_mov_b32 v29, v6")
    srd(a, 40, S_WD, 1376 * 1024)
    srd(a, 44, S_WO, 512 * 1024)
    srd(a, 48, S_WS, NSLAB_H * 131072, WS_H)
    srd(a, 52, S_WS, 16 * 131072, WS_O)
    G_ACC, BF, GW, XR = 192, 128, 96, 88
    D = 4
    a(f"s_lshl_b32 s3, s{S_TB}, 12")
    a("v_lshl_add_u32 v1, v0, 4, s3")
    a("v_lshrrev_b32 v3, 3, v0")
    a("v_and_b32 v4, 7, v0")
    a("v_and_b32 v5, 6, v3")
    a("v_xor_b32 v4, v4, v5")
    a("v_lshlrev_b32 v4, 4, v4")
    a("v_and_b32 v5, 4, v3")
    a("v_add_u32 v3, v3, v5")
    a("v_lshl_add_u32 v4, v3, 10, v4")
    a(f"s_lshl_b32 s3, s{S_J}, 7")
    a("v_add_u32 v2, s3, v4")
    a(f"s_mul_i32 s56, s{LW}, 12288")
    a(f"s_add_u32 s56, s56, {SB}")
    a(f"s_lshl_b32 s57, s{LW}, 15")
    a(f"s_lshl_b32 s58, s{LW}, 17")
    NH, NO = 11, 4
    NT = NH + NO
    NS = 9
    BUFORD = [2, 0, 1]
    def slot_off(k):
        sl = k % NS
        return BUFORD[sl // 3], (sl % 3) * 4096
    def dma_w(k):
        b, o = slot_off(k)
        for q in range(4):
            a(f"s_add_u32 m0, s56, {b*STG + o + q*1024}")
            if k < NH:
                a(f"s_add_u32 s59, s57, {k*4*32768 + (16*(q&1) + 4*(q>>1))*1024}")
                vm.issue(f"buffer_load_dwordx4 v2, s[40:43], s59 offen lds", ("w", k))
            else:
                a(f"s_add_u32 s59, s57, {(k-NH)*4*32768 + (16*(q&1) + 4*(q>>1))*1024}")
                vm.issue(f"buffer_load_dwordx4 v2, s[44:47], s59 offen lds", ("w", k))
    def load_b(k):
        kk, sr = (k, 48) if k < NH else (k - NH, 52)
        a(f"s_add_u32 s60, s58, {kk*4*131072}")
        for i in range(4):
            vm.issue(f"buffer_load_dwordx4 {v(BF+16*(k%D)+4*i,4)}, v1, {s(sr,4)}, s60 offen offset:{1024*i} sc1", ("b", k))
    a("s_waitcnt lgkmcnt(0)")
    vm.wait(("st", 6))
    a("s_barrier")
    for k in range(0, 3):
        if "now2" in opt: continue
        dma_w(k)
    a("v_lshrrev_b32 v3, 4, v0")
    a("v_bfe_u32 v4, v0, 2, 2")
    a("v_lshl_add_u32 v5, v3, 2, v4")
    a("v_bfe_u32 v6, v5, 1, 2")
    a("v_and_b32 v7, 3, v0")
    a("v_lshlrev_b32 v7, 3, v7")
    a("v_lshl_add_u32 v7, v5, 7, v7")
    a("v_add_u32 v7, s56, v7")
    for u in range(4):
        a(f"v_xor_b32 v8, {u}, v6")
        a(f"v_lshl_add_u32 {v(10+u)}, v8, 5, v7")
        a(f"v_add_u32 {v(14+u)}, {STG}, {v(10+u)}")
        a(f"v_add_u32 {v(18+u)}, {2*STG}, {v(10+u)}")
    if "nored" not in opt: lvl2()
    a("s_waitcnt lgkmcnt(0)")
    vm.wait(("st", 7))
    a("s_barrier")
    for k in range(3, 6):
        if "now2" in opt: continue
        dma_w(k)
    for i in range(0, 64, 2):
        a(f"v_pk_mov_b32 {v(G_ACC+i,2)}, 0, 0")
    a("v_and_b32 v8, 15, v0")
    a("v_lshlrev_b32 v9, 10, v8")
    a("v_lshl_add_u32 v9, v3, 4, v9")
    a(f"s_lshl_b32 s3, s{S_TB}, 16")
    a(f"s_lshl_b32 s61, s{LW}, 14")
    a("s_add_u32 s3, s3, s61")
    a(f"s_lshl_b32 s61, s{S_J}, 7")
    a("s_add_u32 s3, s3, s61")
    a("v_add_u32 v9, s3, v9")
    a("v_lshrrev_b32 v4, 1, v0")
    a("v_min_u32 v4, 14, v4")
    a("v_lshlrev_b32 v4, 9, v4")
    a("v_and_b32 v5, 1, v0")
    a("v_lshl_add_u32 v4, v5, 8, v4")
    a(f"s_lshr_b32 s3, s{S_TB}, 1")
    a("s_lshl_b32 s3, s3, 13")
    a(f"s_and_b32 s61, s{S_TB}, 1")
    a("s_lshl_b32 s61, s61, 7")
    a("s_add_u32 s3, s3, s61")
    a(f"s_add_u32 s3, s3, {SY_HF}")
    a("v_add_u32 v22, s3, v4")
    a("v_bfe_u32 v4, v0, 1, 2")
    a("v_lshlrev_b32 v4, 3, v4")
    a("v_add_u32 v4, v4, v5")
    a(f"s_lshl_b32 s3, s{LW}, 1")
    a("v_add_u32 v4, s3, v4")
    a("v_lshlrev_b32 v4, 7, v4")
    a(f"s_lshl_b32 s3, s{S_TB}, 12")
    a(f"s_add_u32 s3, s3, {SY_OF}")
    a("v_add_u32 v23, s3, v4")
    a("s_barrier")
    a("s_barrier")
    a("s_setprio 0")
    for k in range(6 if "now2" not in opt else 0, 9): dma_w(k)
    vm.issue(f"buffer_load_dwordx4 {v(XR,4)}, v9, s[36:39], 0 offen", "x")
    vm.issue(f"buffer_load_dwordx4 {v(XR+4,4)}, v9, s[36:39], 0 offen offset:64", "x")
    ts("l")
    poll("ph", 22, 24)
    vm.done = vm.n
    ts("l")
    for k in range(D): load_b(k)
    lg = Counter(a, "lgkmcnt", 12)
    def rd_w2(k):
        b, o = slot_off(k)
        for u in range(4):
            for hf in range(2):
                lg.issue(f"ds_read_b64_tr_b16 {v(GW+16*(k%2)+4*u+2*hf,2)}, {v(10+4*b+u)} offset:{o + hf*2048}", ("w", k, u))
    def mm(k):
        for u in range(4):
            lg.wait(("w", k, u))
            for i in range(4):
                acc = v(G_ACC + 4 * (4 * u + i), 4)
                a(f"v_mfma_f32_16x16x32_bf16 {acc}, {v(GW+16*(k%2)+4*u,4)}, {v(BF+16*(k%D)+4*i,4)}, {acc}")
    for k in range(NH):
        vm.wait(("w", k))
        rd_w2(k)
        vm.wait(("b", k))
        mm(k)
        if k + D < NH:
            load_b(k + D)
        if k + NS < NT:
            dma_w(k + NS)
    ts("l", lg)
    poll("po", 23, 24)
    vm.done = vm.n
    ts("l", lg)
    for k in range(NH, NT):
        load_b(k)
    for k in range(NH, NT):
        rd_w2(k)
        vm.wait(("b", k))
        mm(k)
    ts("l", lg)
    a("v_lshl_add_u32 v24, v0, 4, s56")
    a(f"v_add_u32 v25, {2*STG}, v24")
    a("s_nop 6")
    for t in range(16):
        if t < 12:
            a(f"ds_write_b128 v25, {v(G_ACC+4*t,4)} offset:{t*1024}")
        else:
            a(f"ds_write_b128 v24, {v(G_ACC+4*t,4)} offset:{(t-12)*1024}")
    srd(a, 40, S_OUT, 2048 * 1024)
    a("s_waitcnt lgkmcnt(0)")
    a("s_barrier")
    a("v_lshrrev_b32 v4, 1, v3")
    a("v_and_b32 v5, 1, v3")
    a("v_lshlrev_b32 v5, 9, v5")
    a("v_lshl_add_u32 v5, v8, 4, v5")
    a(f"s_lshl_b32 s3, s{LW}, 10")
    a(f"s_add_u32 s3, s3, {SB}")
    a("v_add_u32 v5, s3, v5")
    a("v_lshl_add_u32 v6, v4, 12, v5")
    a(f"v_add_u32 v6, {2*STG}, v6")
    a("v_cmp_eq_u32 vcc, 0, v4")
    a(f"v_add_u32 v7, {2*STG + 8192}, v5")
    a("s_nop 0")
    a("v_cndmask_b32 v7, v5, v7, vcc")
    for pw in range(4):
        for h2 in range(2):
            for e in range(2):
                a(f"ds_read_b128 {v(128+16*pw+8*h2+4*e,4)}, {v(6+h2)} offset:{pw*12288 + e*256}")
    for d in range(8):
        a(f"v_lshlrev_b32 {v(96+2*d)}, 16, {v(XR+d)}")
        a(f"v_and_b32 {v(97+2*d)}, 0xffff0000, {v(XR+d)}")
    for pw in range(4):
        a(f"s_waitcnt lgkmcnt({12-4*pw})")
        for e in range(0, 16, 2):
            a(f"v_pk_add_f32 {v(96+e,2)}, {v(96+e,2)}, {v(128+16*pw+e,2)}")
    for d in range(8):
        a(f"v_cvt_pk_bf16_f32 {v(112+d)}, {v(96+2*d)}, {v(97+2*d)}")
    a(f"buffer_store_dwordx4 v[112:115], v9, s[40:43], 0 offen")
    a(f"buffer_store_dwordx4 v[116:119], v9, s[40:43], 0 offen offset:64")
    if "diag" in opt:
        a("s_waitcnt vmcnt(0)")
        a("s_memrealtime s[98:99]")
        a("s_memtime s[94:95]")
        a("s_waitcnt lgkmcnt(0)")
        a(f"s_cmp_lg_u32 s{LW}, 0")
        a(f"s_cbranch_scc1 {L('end')}")
        a("s_and_b32 s3, s2, 0x7f")
        a("s_cmp_eq_u32 s3, 0")
        a(f"s_cbranch_scc1 {L('dg')}")
        a("s_cmp_lg_u32 s2, 255")
        a(f"s_cbranch_scc1 {L('end')}")
        a.label(L("dg"))
        a("s_add_u32 s3, s2, 1")
        a("s_lshr_b32 s3, s3, 7")
        a("s_lshl_b32 s3, s3, 4")
        a("s_add_u32 s3, s3, 16")
        a("s_mov_b64 exec, 1")
        a("v_mov_b32 v1, s3")
        a("v_mov_b32 v4, s96")
        a("v_mov_b32 v5, s98")
        a("s_sub_u32 s3, s94, s100")
        a("v_mov_b32 v6, s3")
        a("s_sub_u32 s3, s98, s96")
        a("v_mov_b32 v7, s3")
        a(f"global_store_dwordx4 v1, v[4:7], s[{S_DBG}:{S_DBG+1}]")
    ts_dump("l")
    a.label(L("end"))
    a("s_endpgm")
```

```python
from asmlib import *

WS_QK = 0
WS_VT = 4 << 20
WS_H = 6 << 20
NSLAB_H = 43
WS_O = WS_H + NSLAB_H * 131072
WS_SY = 14 << 20
SY_EPOCH = 0
SY_ROW = 0x20000
SY_QF = 0x40000
SY_HF = 0x60000
SY_OF = 0x80000
SY_SIZE = 0xA0000
WS_TIM = 16 << 20

STG = 53248
XB = 16384
IMG = 12288
ST_M = 0
ST_RS = 512
ST_CS = 1024
ST_SY = 2304
SB = 4096
LDS_BYTES = SB + 3 * STG

ACC = 112
WF = 76
XF = 44
SPIN = 20000

S_X, S_WQKV, S_WO, S_WG, S_WU, S_WD, S_OUT, S_DBG, S_WS = 4, 6, 8, 12, 14, 16, 18, 20, 22
S_RB, S_C, S_W, S_TB, S_J, S_TAG, S_EP = 24, 25, 26, 27, 28, 29, 30
SY = 32
S_AB, S_HD = 10, 11
B1 = SB + STG

def bf16_round(a, r):
    a(f"v_cvt_pk_bf16_f32 {v(r)}, {v(r)}, {v(r)}")
    a(f"v_lshlrev_b32 {v(r)}, 16, {v(r)}")

def allreduce64x2(a, r0, r1, t0, t1):
    for c in ("quad_perm:[1,0,3,2]", "quad_perm:[2,3,0,1]", "row_half_mirror", "row_mirror"):
        a("s_nop 0")
        a(f"v_add_f32_dpp {v(r0)}, {v(r0)}, {v(r0)} {c} row_mask:0xf bank_mask:0xf")
        a(f"v_add_f32_dpp {v(r1)}, {v(r1)}, {v(r1)} {c} row_mask:0xf bank_mask:0xf")
    for sw in ("v_permlane16_swap_b32", "v_permlane32_swap_b32"):
        a(f"v_mov_b32 {v(t0)}, {v(r0)}")
        a(f"v_mov_b32 {v(t1)}, {v(r1)}")
        a("s_nop 0")
        a(f"{sw} {v(r0)}, {v(t0)}")
        a(f"{sw} {v(r1)}, {v(t1)}")
        a("s_nop 0")
        a(f"v_add_f32 {v(r0)}, {v(r0)}, {v(t0)}")
        a(f"v_add_f32 {v(r1)}, {v(r1)}, {v(t1)}")

def body(a, name, timing=False, opt=(), BA=1, D=8, QFP=0, QSL=4, PF=None, RF=0, THR=0, WQ=1):
    L = lambda x: f"{name}_{x}"
    TS = {}
    def ts(role, lg=None):
        if timing:
            i = TS.get(role, 0)
            assert i < 14
            a(f"s_memtime s[{68+2*i}:{69+2*i}]")
            a("s_waitcnt lgkmcnt(0)")
            if lg is not None: lg.done = lg.n
            TS[role] = i + 1
    def ts_dump(role):
        if timing:
            a("s_mov_b64 exec, -1")
            a("s_waitcnt vmcnt(0)")
            ts(role)
            a("s_memrealtime s[98:99]")
            a("s_waitcnt lgkmcnt(0)")
            srd(a, 36, S_WS, 1 << 20, WS_TIM)
            a("s_lshl_b32 s3, s2, 9")
            a(f"s_lshl_b32 s40, s{S_W}, 6")
            a("s_add_u32 s3, s3, s40")
            a("v_mov_b32 v3, s3")
            a("v_mov_b32 v4, s96")
            a("v_mov_b32 v5, s98")
            a("buffer_store_dwordx2 v[4:5], v3, s[36:39], 0 offen offset:56")
            for q in range(TS[role]):
                a("s_nop 1")
                a(f"s_sub_u32 s40, s{68+2*q}, s100")
                a("v_mov_b32 v4, s40")
                a(f"buffer_store_dword v4, v3, s[36:39], 0 offen offset:{4*q}")
    def poll(lbl, vaddr, vdst, width=1, tagreg=0, sleep=2):
        a(f"s_mov_b32 s3, {SPIN}")
        a.label(L(lbl))
        w = {1: "dword", 4: "dwordx4"}[width]
        a(f"buffer_load_{w} {v(vdst,width)}, {v(vaddr)}, {s(SY,4)}, 0 offen sc1")
        a("s_waitcnt vmcnt(0)")
        a(f"v_cmp_eq_u32 vcc, s{S_TAG}, {v(vdst+tagreg)}")
        a("s_sub_u32 s3, s3, 1")
        a("s_cmp_eq_u32 s3, 0")
        a(f"s_cbranch_scc1 {L(lbl+'_ok')}")
        a("s_cmp_eq_u64 vcc, -1")
        a(f"s_cbranch_scc1 {L(lbl+'_ok')}")
        a(f"s_sleep {sleep}")
        a(f"s_branch {L(lbl)}")
        a.label(L(lbl + "_ok"))
    def mktag():
        a(f"s_mul_i32 s{S_TAG}, s{S_EP}, 0x01010101")
        a(f"s_add_u32 s{S_TAG}, s{S_TAG}, 0x5A3C96E1")

    a("s_cmp_ge_u32 s2, 256")
    a(f"s_cbranch_scc1 {L('end')}")
    a("s_load_dwordx4 s[4:7], s[0:1], 0")
    a("s_load_dwordx4 s[12:15], s[0:1], 32")
    a("s_load_dwordx4 s[20:23], s[0:1], 64")
    a("s_load_dwordx2 s[8:9], s[0:1], 16")
    a("s_load_dwordx4 s[16:19], s[0:1], 48")
    if timing:
        a("s_memtime s[100:101]")
        a("s_memrealtime s[96:97]")
    a("s_and_b32 s3, s2, 7")
    a("s_lshr_b32 s31, s2, 3")
    if "mapB" in opt:
        a(f"s_and_b32 s{S_RB}, s3, 3")
        a(f"s_lshl_b32 s{S_RB}, s{S_RB}, 2")
        a("s_and_b32 s40, s31, 3")
        a(f"s_add_u32 s{S_RB}, s{S_RB}, s40")
        a(f"s_lshr_b32 s{S_C}, s3, 2")
        a(f"s_lshl_b32 s{S_C}, s{S_C}, 3")
        a("s_lshr_b32 s40, s31, 2")
        a(f"s_add_u32 s{S_C}, s{S_C}, s40")
    elif "mapC" in opt:
        a(f"s_lshl_b32 s{S_RB}, s3, 1")
        a("s_and_b32 s40, s31, 1")
        a(f"s_add_u32 s{S_RB}, s{S_RB}, s40")
        a(f"s_lshr_b32 s{S_C}, s31, 1")
    else:
        a(f"s_and_b32 s{S_RB}, s3, 1")
        a(f"s_lshl_b32 s{S_RB}, s{S_RB}, 3")
        a("s_and_b32 s40, s31, 7")
        a(f"s_add_u32 s{S_RB}, s{S_RB}, s40")
        a(f"s_lshr_b32 s{S_C}, s3, 1")
        a(f"s_lshl_b32 s{S_C}, s{S_C}, 2")
        a("s_lshr_b32 s40, s31, 3")
        a(f"s_add_u32 s{S_C}, s{S_C}, s40")
    a(f"s_lshl_b32 s{S_TB}, s3, 2")
    a("s_and_b32 s40, s31, 3")
    a(f"s_add_u32 s{S_TB}, s{S_TB}, s40")
    a(f"s_lshr_b32 s{S_J}, s31, 2")
    a(f"s_mov_b32 s{S_AB}, s3")
    a(f"s_mov_b32 s{S_HD}, s31")
    a("v_lshrrev_b32 v1, 6, v0")
    a("v_and_b32 v0, 63, v0")
    a("s_nop 0")
    a(f"v_readfirstlane_b32 s{S_W}, v1")
    a("s_nop 3")
    a(f"s_cmp_ge_u32 s{S_W}, 4")
    a(f"s_cbranch_scc1 {L('loader')}")

    a(f"s_lshl_b32 s40, s{S_RB}, 7")
    a(f"s_lshl_b32 s41, s{S_C}, 3")
    a("s_add_u32 s40, s40, s41")
    a(f"s_lshl_b32 s41, s{S_W}, 1")
    a("s_add_u32 s40, s40, s41")
    a("s_lshl_b32 s40, s40, 10")
    a("v_lshlrev_b32 v25, 4, v0")
    a("s_waitcnt lgkmcnt(0)")
    srd(a, 36, S_X, 2048 * 1024)
    a("buffer_load_dwordx4 v[44:47], v25, s[36:39], s40 offen")
    a("buffer_load_dwordx4 v[48:51], v25, s[36:39], s40 offen offset:1024")
    srd(a, SY, S_WS, SY_SIZE, WS_SY)
    a(f"s_load_dword s{S_EP}, s[{SY}:{SY+1}], {SY_EPOCH}")
    a(f"s_and_b32 s42, s{S_W}, 1")
    a(f"s_lshr_b32 s43, s{S_W}, 1")
    a("v_and_b32 v1, 15, v0")
    a("v_lshrrev_b32 v2, 4, v0")
    a("v_lshrrev_b32 v3, 1, v1")
    a("v_xor_b32 v3, v3, v2")
    a("v_lshlrev_b32 v3, 4, v3")
    a("s_lshl_b32 s40, s42, 13")
    a("v_lshl_add_u32 v3, v1, 7, v3")
    a(f"s_add_u32 s40, s40, {SB}")
    a("v_add_u32 v10, s40, v3")
    a("v_xor_b32 v11, 64, v10")
    a("v_bfe_u32 v4, v0, 2, 2")
    a("v_lshl_add_u32 v4, v2, 3, v4")
    a("v_mul_u32_u24 v4, 192, v4")
    a("v_and_b32 v5, 3, v0")
    a("v_lshl_add_u32 v4, v5, 3, v4")
    a(f"v_add_u32 v4, {SB+XB}, v4")
    a("v_and_b32 v5, 1, v2")
    a("v_lshlrev_b32 v5, 5, v5")
    a("s_lshl_b32 s40, s43, 7")
    a("v_add3_u32 v12, v4, v5, s40")
    a("v_xor_b32 v6, 32, v5")
    a("v_add3_u32 v13, v4, v6, s40")
    a("s_lshl_b32 s40, s43, 5")
    a("v_xor_b32 v6, s40, v5")
    a("v_add_u32 v6, 64, v6")
    a("v_add_u32 v14, v4, v6")
    for b in (1, 2):
        for i in range(5):
            a(f"v_add_u32 {v(10+5*b+i)}, {STG*b}, {v(10+i)}")
    srd(a, 48, S_WS, 4 << 20, WS_QK)
    srd(a, 52, S_WS, 2 << 20, WS_VT)
    srd(a, 56, S_WS, NSLAB_H * 131072, WS_H)
    a("s_lshl_b32 s40, s42, 8")
    a("v_lshl_add_u32 v3, v1, 2, s40")
    a("v_lshl_add_u32 v7, v2, 4, s40")
    a("s_lshl_b32 s40, s43, 8")
    a("v_lshl_add_u32 v4, v2, 4, s40")
    a("s_lshl_b32 s40, s43, 6")
    a("v_lshl_add_u32 v5, v2, 4, s40")
    a("v_lshl_add_u32 v6, v1, 2, s40")
    a(f"s_cmp_lt_u32 s{S_C}, 8")
    a("s_cselect_b32 s60, 0x3eb8aa3b, 1.0")
    a(f"s_lshl_b32 s61, s{S_C}, 2")
    a("s_lshl_b32 s40, s43, 1")
    a("s_add_u32 s61, s61, s40")
    a("s_lshl_b32 s61, s61, 16")
    a(f"s_lshl_b32 s40, s{S_RB}, 12")
    a("s_add_u32 s61, s61, s40")
    a("s_lshl_b32 s62, s42, 11")
    a("s_add_u32 s61, s61, s62")
    a("s_add_u32 s62, s62, s40")
    a(f"s_lshl_b32 s40, s{S_C}, 1")
    a("s_add_u32 s40, s40, s43")
    a("s_lshl_b32 s40, s40, 16")
    a("s_add_u32 s62, s62, s40")
    a("v_and_b32 v26, 1, v2")
    a("v_lshl_add_u32 v8, v26, 4, v1")
    a("v_lshlrev_b32 v8, 5, v8")
    a("v_lshrrev_b32 v9, 1, v2")
    a("v_lshl_add_u32 v8, v9, 4, v8")
    a("s_add_u32 s63, s61, 0x10000")
    a("v_lshl_add_u32 v9, v9, 4, v1")
    a("v_lshlrev_b32 v9, 4, v9")
    a("v_lshl_add_u32 v9, v26, 10, v9")
    a(f"s_mul_i32 s64, s{S_C}, 3")
    a("s_lshl_b32 s40, s43, 1")
    a("s_add_u32 s65, s64, s40")
    a("s_add_u32 s64, s64, 1")
    a("s_lshl_b32 s65, s65, 17")
    a("s_lshl_b32 s64, s64, 17")
    a(f"s_lshl_b32 s40, s{S_RB}, 13")
    a("s_add_u32 s65, s65, s40")
    a("s_add_u32 s64, s64, s40")
    a("s_lshl_b32 s40, s42, 12")
    a("s_add_u32 s65, s65, s40")
    a("s_add_u32 s64, s64, s40")
    a("s_lshl_b32 s40, s43, 9")
    a("s_add_u32 s64, s64, s40")
    a(f"s_lshl_b32 s40, s{S_RB}, 4")
    a(f"s_add_u32 s40, s40, s{S_C}")
    a("s_lshl_b32 s40, s40, 2")
    a(f"s_add_u32 s40, s40, s{S_W}")
    a("s_lshl_b32 s46, s40, 7")
    a("s_mov_b32 s44, 0x3b000000")
    a("s_mov_b32 s45, 0x3727c5ac")
    a("s_waitcnt vmcnt(0)")
    for k in range(2):
        for d in range(4):
            a(f"v_lshlrev_b32 {v(52+8*k+2*d)}, 16, {v(44+4*k+d)}")
            a(f"v_and_b32 {v(53+8*k+2*d)}, 0xffff0000, {v(44+4*k+d)}")
    for k in range(2):
        a(f"v_add_f32 {v(68+k)}, {v(52+8*k)}, {v(53+8*k)}")
    for e in range(2, 8):
        for k in range(2):
            a(f"v_add_f32 {v(68+k)}, {v(68+k)}, {v(52+8*k+e)}")
    allreduce64x2(a, 68, 69, 72, 73)
    for k in range(2):
        a(f"v_mul_f32 {v(68+k)}, s44, {v(68+k)}")
    for e in range(8):
        for k in range(2):
            a(f"v_sub_f32 {v(52+8*k+e)}, {v(52+8*k+e)}, {v(68+k)}")
    for k in range(2):
        a(f"v_mul_f32 {v(70+k)}, {v(52+8*k)}, {v(52+8*k)}")
    for e in range(1, 8):
        for k in range(2):
            a(f"v_fmac_f32 {v(70+k)}, {v(52+8*k+e)}, {v(52+8*k+e)}")
    allreduce64x2(a, 70, 71, 72, 73)
    for k in range(2):
        q = 70 + k
        a(f"v_mul_f32 {v(q)}, s44, {v(q)}")
        bf16_round(a, q)
        a(f"v_add_f32 {v(q)}, s45, {v(q)}")
        bf16_round(a, q)
        a(f"v_sqrt_f32 {v(q)}, {v(q)}")
    a("s_waitcnt lgkmcnt(0)")
    mktag()
    for k in range(2):
        a(f"v_cvt_pk_bf16_f32 {v(28+k)}, {v(68+k)}, {v(70+k)}")
    a(f"v_mov_b32 v30, s{S_TAG}")
    a(f"v_mov_b32 v31, s{S_TAG}")
    a(f"s_add_u32 s40, s46, {SY_ROW}")
    a("s_mov_b64 exec, 0xff")
    a(f"buffer_store_dwordx4 v[28:31], v25, {s(SY,4)}, s40 offen sc1")
    a("s_mov_b64 exec, -1")

    def rd_x(buf, ks, xb):
        return [f"ds_read_b128 {v(XF+16*xb+4*i,4)}, {v(10+5*buf+ks)} offset:{i*2048}" for i in range(4)]
    def rd_w(buf, ks, j):
        img, p = j // 3, j % 3
        addr = 10 + 5 * buf + 2 + p
        return [f"ds_read_b64_tr_b16 {v(WF+4*j+2*hf,2)}, {v(addr)} offset:{img*IMG + ks*6144 + hf*768}" for hf in range(2)]
    def mfma(j, i, xb, first=False):
        acc = v(ACC + 4 * (4 * j + i), 4)
        c = "0" if first else acc
        w = v(WF + 4 * j, 4); x = v(XF + 16 * xb + 4 * i, 4)
        if j == 2:
            return f"v_mfma_f32_16x16x32_bf16 {acc}, {x}, {w}, {c}"
        return f"v_mfma_f32_16x16x32_bf16 {acc}, {w}, {x}, {c}"
    lg = Counter(a, "lgkmcnt", 12)
    def q_x(step):
        buf, ks = (step // 2) % 3, step % 2
        return [(l, ("x", step, i)) for i, l in enumerate(rd_x(buf, ks, step % 2))]
    def q_w(step, j):
        buf, ks = (step // 2) % 3, step % 2
        return [(l, ("w", step, j)) for l in rd_w(buf, ks, j)]
    def q_cs(j):
        img, p = j // 3, j % 3
        if j == 2:
            l = f"ds_read_b32 {v(WF+4*j)}, v6 offset:{ST_CS + 128}"
        elif p < 2:
            l = f"ds_read_b128 {v(WF+4*j,4)}, v4 offset:{ST_CS + img*384 + p*64}"
        else:
            l = f"ds_read_b128 {v(WF+4*j,4)}, v5 offset:{ST_CS + img*384 + 128}"
        return [(l, ("cs", j, 0))]
    a(f"s_lshl_b32 s3, s{S_W}, 2")
    a("v_mov_b32 v33, s3")
    a(f"s_not_b32 s3, s{S_TAG}")
    a("v_mov_b32 v34, s3")
    a(f"ds_write_b32 v33, v34 offset:{ST_SY}")
    a("s_waitcnt lgkmcnt(0)")
    ts("c", lg)
    a("s_barrier")
    ts("c", lg)
    for l, t in q_x(0): lg.issue(l, t)
    for j in range(9):
        if j == 4: lg.wait(("w", 0, 0))
        for l, t in q_w(0, j): lg.issue(l, t)
    A = lambda j, i, r: ACC + 4 * (4 * j + i) + r
    BL = "op_sel_hi:[1,0,1]"
    MR = 26
    def corr(j, i):
        for r in (0, 2):
            a(f"v_pk_fma_f32 {v(A(j,i,r),2)}, {v(WF+4*j+r,2)}, {v(MR+2*i,2)}, {v(A(j,i,r),2)} {BL}")
    vm = Counter(a, "vmcnt", 60)
    def pack_store(j, i0, vo, sr, so, off, tag):
        d = A(j, i0, 0)
        a(f"v_cvt_pk_bf16_f32 {v(d)}, {v(d)}, {v(d+1)}")
        a(f"v_cvt_pk_bf16_f32 {v(d+1)}, {v(d+2)}, {v(d+3)}")
        a(f"v_cvt_pk_bf16_f32 {v(d+2)}, {v(d+4)}, {v(d+5)}")
        a(f"v_cvt_pk_bf16_f32 {v(d+3)}, {v(d+6)}, {v(d+7)}")
        a("s_nop 0")
        a(f"v_permlane16_swap_b32 {v(d)}, {v(d+2)}")
        a(f"v_permlane16_swap_b32 {v(d+1)}, {v(d+3)}")
        pol = "" if ("local" in opt and tag == "h") else "sc1"
        vm.issue(f"buffer_store_dwordx4 {v(d,4)}, {v(vo)}, {s(sr,4)}, {s(so)} offen offset:{off} {pol}", tag)
    pend = []
    def group(step, j):
        while any(t == ("w", step, j) or t[:2] == ("x", step) for _, t in pend):
            l, t = pend.pop(0); lg.issue(l, t)
        lg.wait(("w", step, j), ("x", step, 3))
        for i in range(4):
            a(mfma(j, i, step % 2, step == 0))
            if pend:
                l, t = pend.pop(0); lg.issue(l, t)
    for step in range(14):
        ks = step % 2
        nstep = step + 1
        hold = []
        for j in range(9):
            group(step, j)
            new = q_w(nstep, j)
            if j in (2, 3):
                new += q_x(nstep)[2*(j-2):2*(j-2)+2]
            if step == 12 and j in (4, 5, 6, 7):
                i = j - 4
                new.append((f"ds_read_b32 {v(MR+2*i)}, v3 offset:{ST_M + 64*i}", ("st", i, 0)))
                new.append((f"ds_read_b32 {v(MR+1+2*i)}, v3 offset:{ST_RS + 64*i}", ("st", i, 1)))
            if ks == 1 and j < BA:
                hold += new
                continue
            if ks == 1 and j == BA:
                assert not pend
                lg.wait_all()
                a("s_barrier")
                if step in (3, 7, 11): ts("c", lg)
                pend += hold
            pend += new
    pend += q_x(15)
    for i in range(4):
        a(f"v_mul_f32 {v(MR+8+2*i)}, s60, {v(MR+1+2*i)}")
        a(f"v_mul_f32 {v(MR+9+2*i)}, {v(MR+1+2*i)}, {v(MR+1+2*i)}")
    for r in range(4):
        a(f"v_mov_b32 {v(20+r)}, s{S_TAG}")
    a(f"s_add_u32 s40, s46, {SY_QF}")
    a(f"s_add_u32 s31, s46, {SY_HF}")
    def lg_group(step, j):
        group(step, j)
        if step == 14:
            pend.extend(q_w(15, j))
        else:
            pend.extend(q_cs(j))
    for j in range(4): lg_group(14, j)
    group(15, 0)
    a("s_barrier")
    ts("c", lg)
    pend.extend(q_cs(0))
    lg_group(15, 1); lg_group(15, 2); lg_group(14, 4)
    while any(t[0] == "cs" for _, t in pend):
        l, t = pend.pop(0); lg.issue(l, t)
    lg.wait(("cs", 1, 0))
    for j in (0, 1):
        for i in range(4):
            corr(j, i)
            for r in (0, 2):
                a(f"v_pk_mul_f32 {v(A(j,i,r),2)}, {v(A(j,i,r),2)}, {v(MR+8+2*i,2)} op_sel_hi:[1,0]")
            if i & 1:
                pack_store(j, i - 1, 8, 48, 61 if j == 0 else 63, 512 * (i - 1), "qkv")
    a("s_nop 1")
    for i in range(4):
        pend.append((f"ds_read_b128 {v(A(0,i,0),4)}, v7 offset:{ST_M + 64*i}", ("vs", i, 0)))
        pend.append((f"ds_read_b128 {v(A(1,i,0),4)}, v7 offset:{ST_RS + 64*i}", ("vs", i, 1)))
    for _ in range(4):
        l, t = pend.pop(0); lg.issue(l, t)
    lg_group(14, 5); lg_group(14, 6); lg_group(14, 7)
    while any(t[0] == "vs" for _, t in pend):
        l, t = pend.pop(0); lg.issue(l, t)
    lg.wait(("vs", 3, 1), ("cs", 2, 0))
    for i in range(4):
        for r in (0, 2):
            a(f"v_pk_fma_f32 {v(A(2,i,r),2)}, {v(A(0,i,r),2)}, {v(WF+8,2)}, {v(A(2,i,r),2)} {BL}")
        for r in (0, 2):
            a(f"v_pk_mul_f32 {v(A(2,i,r),2)}, {v(A(2,i,r),2)}, {v(A(1,i,r),2)}")
        if i & 1:
            pack_store(2, i - 1, 8, 52, 62, 512 * (i - 1), "qkv")
    lg_group(14, 8)
    for j in (3, 6, 4, 7, 5, 8): lg_group(15, j)
    for l, t in pend: lg.issue(l, t)
    ts("c", lg)
    def qflag():
        vm.wait("qkv")
        a("s_mov_b64 exec, 0xff")
        vm.issue(f"buffer_store_dwordx4 v[20:23], v25, {s(SY,4)}, s40 offen sc1")
        a("s_mov_b64 exec, -1")
    if QFP == -1: qflag()
    for p in range(3):
        lg.wait(("cs", 3 + p, 0), ("cs", 6 + p, 0))
        if p == 2: a("s_nop 4")
        for i in range(4):
            corr(3 + p, i); corr(6 + p, i)
            for r in range(4):
                a(f"v_max_f32 {v(A(3+p,i,r))}, 0, {v(A(3+p,i,r))}")
            for r in (0, 2):
                a(f"v_pk_mul_f32 {v(A(6+p,i,r),2)}, {v(A(6+p,i,r),2)}, {v(MR+8+2*i,2)} op_sel:[0,1] op_sel_hi:[1,1]")
            for r in (0, 2):
                a(f"v_pk_mul_f32 {v(A(3+p,i,r),2)}, {v(A(3+p,i,r),2)}, {v(A(6+p,i,r),2)}")
            if i & 1:
                pack_store(3 + p, i - 1, 9, 56, 65 if p < 2 else 64, 1024 * (i - 1) + (512 if p == 1 else 0), "h")
        if p == QFP: qflag()
    a("s_barrier")
    ts("c")
    for r in range(4):
        a(f"v_mov_b32 {v(252+r)}, s{S_TAG}")
    a("v_lshlrev_b32 v15, 4, v0")

    KF, VF, QF = 16, 56, 136
    S = [144, 160, 176]
    NM, O, P, MK = 192, 208, 224, 240
    a(f"s_lshl_b32 s36, s{S_AB}, 8")
    a(f"s_lshl_b32 s37, s{S_W}, 7")
    a("s_add_u32 s37, s37, s36")
    a("s_sub_u32 s37, s37, 256")
    a("v_and_b32 v144, 31, v0")
    a("v_lshrrev_b32 v145, 5, v0")
    a("v_lshlrev_b32 v145, 4, v145")
    a("v_and_b32 v146, 0x13, v144")
    a("v_bfe_u32 v147, v144, 2, 1")
    a("v_lshl_or_b32 v146, v147, 3, v146")
    a("v_bfe_u32 v147, v144, 3, 1")
    a("v_lshl_or_b32 v146, v147, 2, v146")
    a("v_add_u32 v146, s37, v146")
    for n in range(4):
        a(f"v_add_u32 {v(148+n)}, {32*n}, v146")
        a(f"v_max_i32 {v(148+n)}, 0, {v(148+n)}")
        a(f"v_lshl_add_u32 {v(148+n)}, {v(148+n)}, 5, v145")
    a(f"s_lshl_b32 s3, s{S_W}, 6")
    a("s_add_u32 s3, s3, s36")
    a("v_add_u32 v152, s3, v144")
    a("v_lshl_add_u32 v152, v152, 5, v145")
    a("v_lshlrev_b32 v153, 4, v0")
    a(f"s_lshl_b32 s3, s{S_AB}, 1")
    a(f"s_add_u32 s38, s3, s{S_W}")
    a("s_sub_u32 s38, s38, 2")
    a("s_max_i32 s38, s38, 0")
    a("s_lshl_b32 s38, s38, 13")
    a(f"s_lshr_b32 s39, s{S_HD}, 1")
    a("s_lshl_b32 s39, s39, 8")
    a("s_add_u32 s44, s38, s39")
    a("s_add_u32 s44, s44, 4096")
    a(f"s_lshl_b32 s47, s{S_HD}, 8")
    a("s_add_u32 s47, s47, s38")
    a(f"s_lshr_b32 s38, s{S_W}, 1")
    a("s_add_u32 s38, s38, s3")
    a("s_lshl_b32 s38, s38, 13")
    a("s_add_u32 s38, s38, s39")
    a(f"s_and_b32 s39, s{S_W}, 1")
    a("s_lshl_b32 s39, s39, 7")
    a("s_add_u32 s38, s38, s39")
    a("v_and_b32 v154, 7, v0")
    a("v_and_b32 v155, 1, v0")
    a("v_lshlrev_b32 v155, 7, v155")
    a("v_add_u32 v156, s44, v155")
    a("v_add_u32 v157, s47, v155")
    a("v_mov_b32 v158, s38")
    a("v_cmp_gt_u32 vcc, 4, v154")
    a("s_nop 1")
    a("v_cndmask_b32 v158, v158, v157, vcc")
    a("v_cmp_gt_u32 vcc, 2, v154")
    a("s_nop 1")
    a("v_cndmask_b32 v158, v158, v156, vcc")
    a(f"v_add_u32 v158, {SY_QF}, v158")
    a(f"s_lshl_b32 s38, s{S_HD}, 16")
    a("s_add_u32 s39, s38, 0x200000")
    a("s_lshl_b32 s44, s37, 5")
    a("s_add_u32 s44, s44, s38")
    a("s_cmp_ge_i32 s37, 0")
    a("s_cselect_b32 s44, s44, 0x7fff0000")
    a(f"s_lshl_b32 s47, s{S_W}, 12")
    a(f"s_add_u32 s47, s47, {B1}")
    a(f"s_lshl_b32 s36, s{S_W}, 11")
    a(f"s_add_u32 s36, s36, {B1 + 32768}")
    vm.wait("h")
    a("s_mov_b64 exec, 0xff")
    LP = "" if "local" in opt else "sc1"
    a(f"buffer_store_dwordx4 v[252:255], v15, {s(SY,4)}, s31 offen {LP}")
    a("s_mov_b64 exec, -1")
    ts("c")
    poll("pq", 158, 14, sleep=QSL)
    ts("c")
    a("s_mov_b32 m0, s36")
    a("s_nop 0")
    for n in range(2):
        a(f"buffer_load_dwordx4 v152, s[48:51], s38 offen offset:{1024*n} sc1 lds")
    for n in range(4):
        a(f"s_add_u32 m0, s47, {1024*n}")
        a("s_nop 0")
        a(f"buffer_load_dwordx4 {v(148+n)}, s[48:51], s39 offen sc1 lds")
    a("s_add_u32 m0, s47, 16384")
    a("s_nop 0")
    for n in range(4):
        a(f"buffer_load_dwordx4 v153, s[52:55], s44 offen offset:{1024*n} sc1 lds")
    a("s_setprio 2")
    srd(a, 56, S_WS, 16 * 131072, WS_O)
    a(f"s_mov_b32 s42, s{S_HD}")
    a(f"s_lshl_b32 s43, s{S_AB}, 2")
    a(f"s_add_u32 s43, s43, s{S_W}")
    a("s_lshl_b32 s45, s43, 6")
    a("v_and_b32 v1, 31, v0")
    a("v_lshrrev_b32 v2, 5, v0")
    a("v_lshlrev_b32 v3, 4, v2")
    a("v_lshlrev_b32 v8, 3, v2")
    a("v_sub_u32 v8, v1, v8")
    a("s_sub_u32 s37, s45, 256")
    a("s_mov_b32 exec_lo, 0xffff0000")
    a("s_mov_b32 exec_hi, 0xffff0000")
    for kt in range(10):
        a(f"s_cmp_ge_i32 s37, {-32*kt}")
        a("s_cselect_b32 s40, 0x3f803f80, 0")
        a("s_mov_b32 s41, s40")
        for r in range(0, 8, 2):
            a(f"v_pk_mov_b32 {v(VF+8*kt+r,2)}, s[40:41], s[40:41]")
    a("s_mov_b64 exec, -1")
    a(f"s_lshl_b32 s40, s{S_W}, 11")
    a(f"s_add_u32 s40, s40, {B1}")
    a("v_add_u32 v4, s40, v15")
    a("v_and_b32 v5, 0x13, v1")
    a("v_bfe_u32 v7, v1, 2, 1")
    a("v_lshl_or_b32 v5, v7, 3, v5")
    a("v_bfe_u32 v7, v1, 3, 1")
    a("v_lshl_or_b32 v5, v7, 2, v5")
    a("v_lshl_add_u32 v7, v5, 5, v3")
    a("v_add_u32 v7, s40, v7")
    a("v_and_b32 v12, 15, v1")
    a("v_lshl_add_u32 v12, v2, 4, v12")
    a("v_lshlrev_b32 v12, 4, v12")
    a("v_lshrrev_b32 v13, 4, v1")
    a("v_lshl_add_u32 v12, v13, 10, v12")
    a("s_and_b32 s40, s42, 1")
    a("s_lshl_b32 s40, s40, 9")
    a("v_add_u32 v12, s40, v12")
    a("s_lshr_b32 s46, s42, 1")
    a("s_lshl_b32 s46, s46, 17")
    a("s_lshl_b32 s40, s43, 12")
    a("s_add_u32 s46, s46, s40")
    if timing:
        MSL = [4, 6, 8, 10, 12, 14, 16, 18, 60, 62, 64, 66, 24, 40, 0, 20]
    else:
        MSL = [60 + 2 * r for r in range(16)]
    for r in range(16):
        a(f"v_cmp_le_i32 {s(MSL[r],2)}, {(r&7)+16*(r>>3)}, v8")
    a("v_mov_b32 v9, 0xffff")
    a("v_mov_b32 v10, 0xffff0000")
    for p in range(8):
        a(f"v_cndmask_b32 {v(MK+p)}, 0, v9, {s(MSL[2*p],2)}")
        a(f"v_cndmask_b32 v11, 0, v10, {s(MSL[2*p+1],2)}")
        a(f"v_or_b32 {v(MK+p)}, {v(MK+p)}, v11")
    a("s_waitcnt vmcnt(0)")
    a(f"s_lshl_b32 s3, s{S_W}, 2")
    a("v_mov_b32 v14, s3")
    a(f"ds_write_b32 v14, v252 offset:{ST_SY}")
    a("v_and_b32 v14, 3, v0")
    a("v_lshlrev_b32 v14, 2, v14")
    a(f"s_mov_b32 s3, {SPIN * 20}")
    a.label(L("msync"))
    a(f"ds_read_b32 v13, v14 offset:{ST_SY}")
    a("s_waitcnt lgkmcnt(0)")
    a(f"v_cmp_eq_u32 vcc, s{S_TAG}, v13")
    a("s_sub_u32 s3, s3, 1")
    a("s_cmp_eq_u32 s3, 0")
    a(f"s_cbranch_scc1 {L('msync_ok')}")
    a("s_cmp_eq_u64 vcc, -1")
    a(f"s_cbranch_scc0 {L('msync')}")
    a.label(L("msync_ok"))
    vm = Counter(a, "vmcnt", 60)
    lg = Counter(a, "lgkmcnt", 12)
    for t in range(2):
        lg.issue(f"ds_read_b128 {v(QF+4*t,4)}, v4 offset:{32768 + 1024*t}", ("q", t))
    for kt in range(10):
        lg.issue(f"ds_read_b128 {v(KF+4*kt,4)}, v4 offset:{1024*kt}", ("k", kt))
    a("s_mov_b32 exec_lo, 0xffff")
    a("s_mov_b32 exec_hi, 0xffff")
    for kt in range(10):
        lg.wait(("k", kt))
        for hh in range(2):
            lg.issue(f"ds_read_b128 {v(VF+8*kt+4*hh,4)}, v7 offset:{16384 + 1024*kt + 512*hh}", ("v", kt))
    a("s_mov_b64 exec, -1")
    def M(dst, kt, t, c):
        lg.wait(("k", kt), ("q", t))
        a(f"v_mfma_f32_32x32x16_bf16 {v(dst,16)}, {v(KF+4*kt,4)}, {v(QF+4*t,4)}, {c}")
    for t in range(2):
        far, diag = t, t + 8
        full = list(range(t + 1, t + 8))
        MX = 14
        M(O, far, t, "0")
        if t == 0: ts("c", lg)
        M(S[0], full[0], t, "0")
        M(S[1], full[1], t, "0")
        a("s_nop 7")
        def mx(src, first=False):
            for q in range(0, 16, 4):
                if first and q == 0:
                    a(f"v_max_f32 {v(MX)}, {v(src)}, {v(src+1)}")
                    a(f"v_max_f32 {v(MX+1)}, {v(src+2)}, {v(src+3)}")
                else:
                    a(f"v_max3_f32 {v(MX)}, {v(src+q)}, {v(src+q+1)}, {v(MX)}")
                    a(f"v_max3_f32 {v(MX+1)}, {v(src+q+2)}, {v(src+q+3)}, {v(MX+1)}")
        for n in range(7):
            if n + 2 < 7:
                M(S[(n + 2) % 3], full[n + 2], t, "0")
            elif n + 2 == 7:
                M(NM, diag, t, "0")
            if n == 0:
                a("s_nop 1")
            mx(S[n % 3], first=(n == 0))
        for r in range(16):
            a(f"v_cndmask_b32 {v(O+r)}, {v(O+r)}, {v(NM+r)}, {s(MSL[r],2)}")
        mx(O)
        a(f"v_max_f32 {v(MX)}, {v(MX)}, {v(MX+1)}")
        a(f"v_mov_b32 {v(MX+1)}, {v(MX)}")
        a("s_nop 1")
        a(f"v_permlane32_swap_b32 {v(MX)}, {v(MX+1)}")
        a("s_nop 1")
        a(f"v_max_f32 {v(MX)}, {v(MX)}, {v(MX+1)}")
        a(f"v_sub_f32 {v(MX)}, 0, {v(MX)}")
        for r in range(0, 16, 2):
            a(f"v_pk_mov_b32 {v(NM+r,2)}, {v(MX,2)}, {v(MX,2)} op_sel:[0,0]")
        a("s_nop 1")
        M(S[0], full[0], t, v(NM, 16))
        M(S[2], far, t, v(NM, 16))
        a("s_nop 9")
        first_pv = [True]
        def PV(kt, hh, preg):
            lg.wait(("v", kt))
            c = "0" if first_pv[0] else v(O, 16)
            first_pv[0] = False
            a(f"v_mfma_f32_32x32x16_bf16 {v(O,16)}, {v(VF+8*kt+4*hh,4)}, {v(preg+4*hh,4)}, {c}")
        for n in range(8):
            cur = S[n % 2]
            nxt = S[(n + 1) % 2]
            if n + 1 < 7:
                M(nxt, full[n + 1], t, v(NM, 16))
            elif n + 1 == 7:
                M(nxt, diag, t, v(NM, 16))
            if n == 7:
                for r in range(16):
                    a(f"v_cndmask_b32 {v(cur+r)}, {v(S[2]+r)}, {v(cur+r)}, {s(MSL[r],2)}")
            for r in range(16):
                a(f"v_exp_f32 {v(cur+r)}, {v(cur+r)}")
                if n > 0 and r == 5: PV(full[n - 1], 0, P)
                if n > 0 and r == 11: PV(full[n - 1], 1, P)
            for p in range(8):
                a(f"v_cvt_pk_bf16_f32 {v(P+p)}, {v(cur+2*p)}, {v(cur+2*p+1)}")
        for p in range(8):
            a(f"v_bfi_b32 {v(P+8+p)}, {v(MK+p)}, 0, {v(P+p)}")
            a(f"v_and_b32 {v(P+p)}, {v(MK+p)}, {v(P+p)}")
        a("s_nop 1")
        PV(diag, 0, P); PV(diag, 1, P); PV(far, 0, P + 8); PV(far, 1, P + 8)
        a("s_nop 11")
        a(f"v_rcp_f32 v14, {v(O+8)}")
        a("s_nop 0")
        for r in range(8):
            a(f"v_mul_f32 {v(O+r)}, v14, {v(O+r)}")
        for p in range(4):
            a(f"v_cvt_pk_bf16_f32 {v(248+4*t+p)}, {v(O+2*p)}, {v(O+2*p+1)}")
        vm.issue(f"buffer_store_dwordx4 {v(248+4*t,4)}, v12, s[56:59], s46 offen offset:{2048*t} {LP}")
    ts("c")
    a("s_lshl_b32 s40, s43, 5")
    a("s_add_u32 s40, s40, s42")
    a("s_lshl_b32 s40, s40, 7")
    a(f"s_add_u32 s40, s40, {SY_OF}")
    a("v_lshlrev_b32 v3, 4, v0")
    for r in range(4):
        a(f"v_mov_b32 {v(4+r)}, s{S_TAG}")
    a("s_mov_b64 exec, 0xff")
    a("s_waitcnt vmcnt(0)")
    a(f"buffer_store_dwordx4 v[4:7], v3, {s(SY,4)}, s40 offen {LP}")
    a("s_mov_b64 exec, -1")
    a(f"s_or_b32 s3, s2, s{S_W}")
    a("s_cmp_lg_u32 s3, 0")
    a(f"s_cbranch_scc1 {L('noep')}")
    a("v_lshlrev_b32 v8, 9, v0")
    a(f"v_add_u32 v8, {SY_QF}, v8")
    for q in range(4):
        poll(f"pe{q}", 8, 9)
        a("v_add_u32 v8, 0x8000, v8")
    a(f"s_add_u32 s3, s{S_EP}, 1")
    a("v_mov_b32 v9, s3")
    a("v_mov_b32 v8, 0")
    a("s_mov_b64 exec, 1")
    a(f"buffer_store_dword v9, v8, {s(SY,4)}, 0 offen sc1")
    a.label(L("noep"))
    ts_dump("c")
    a(f"s_branch {L('end')}")

    a.label(L("loader"))
    LW = 31
    a(f"s_sub_u32 s{LW}, s{S_W}, 4")
    a("s_setprio 3")
    a("v_lshrrev_b32 v1, 3, v0")
    a("v_and_b32 v2, 7, v0")
    a(f"s_lshl_b32 s54, s{S_RB}, 7")
    a(f"s_lshl_b32 s55, s{LW}, 5")
    a("s_add_u32 s54, s54, s55")
    a("v_lshrrev_b32 v4, 4, v0")
    a("v_xor_b32 v4, v4, v2")
    a("v_add_u32 v3, s54, v1")
    a("v_lshlrev_b32 v3, 10, v3")
    a("v_lshl_add_u32 v10, v4, 4, v3")
    a("v_xor_b32 v11, 64, v10")
    a("v_add_u32 v11, 0x2000, v11")
    a("v_add_u32 v12, 0x4000, v10")
    a("v_add_u32 v13, 0x4000, v11")
    a(f"s_lshl_b32 s56, s{LW}, 12")
    a(f"s_add_u32 s56, s56, {SB}")
    a(f"s_mul_i32 s57, s{LW}, 3072")
    a(f"s_add_u32 s57, s57, {SB+XB}")
    a(f"s_lshl_b32 s54, s{LW}, 4")
    a(f"s_mul_i32 s55, s{S_C}, 192")
    a(f"s_lshl_b32 s61, s{S_C}, 7")
    a(f"s_lshl_b32 s62, s{S_C}, 6")
    a("s_add_u32 s62, s62, 2048")
    a("s_movk_i32 s63, 2752")
    a("s_movk_i32 s64, 3072")
    a("v_mov_b32 v8, s61")
    a("v_mov_b32 v9, s62")
    for b in range(3):
        a(f"v_add_u32 v3, {64*b}, v0")
        a("v_mul_u32_u24 v4, 171, v3")
        a("v_lshrrev_b32 v4, 11, v4")
        a("v_mul_u32_u24 v5, 12, v4")
        a("v_sub_u32 v5, v3, v5")
        a("v_lshrrev_b32 v6, 3, v4")
        a("v_lshlrev_b32 v6, 1, v6")
        a("v_xor_b32 v5, v5, v6")
        a("v_add_u32 v4, s54, v4")
        a("v_mul_u32_u24 v6, s63, v4")
        a("v_lshl_add_u32 v6, v5, 4, v6")
        a(f"v_add_u32 {v(17+b)}, s55, v6")
        a("v_cmp_gt_u32 vcc, 4, v5")
        a("v_mul_u32_u24 v6, s64, v4")
        a("v_subrev_u32 v7, 4, v5")
        a("v_cndmask_b32 v7, v7, v5, vcc")
        a("v_lshl_add_u32 v6, v7, 4, v6")
        a("v_lshrrev_b32 v7, 2, v5")
        a("v_cmp_eq_u32 vcc, 1, v7")
        a("s_nop 1")
        a("v_cndmask_b32 v7, v8, v9, vcc")
        a(f"v_add_u32 {v(14+b)}, v6, v7")
    a("s_waitcnt lgkmcnt(0)")
    srd(a, 36, S_X, 2048 * 1024)
    srd(a, 40, S_WQKV, 512 * 3072)
    srd(a, 44, S_WG, 512 * 2752)
    srd(a, 48, S_WU, 512 * 2752)
    vm = Counter(a, "vmcnt", 60)
    lg = Counter(a, "lgkmcnt", 12)
    def dma_list(stage):
        buf = stage % 3
        out = []
        for i in range(4):
            out.append((f"s_add_u32 m0, s56, {buf*STG + i*1024}", f"s_movk_i32 s58, {stage*128}",
                        f"buffer_load_dwordx4 {v(10+i)}, s[36:39], s58 offen lds"))
        for n in range(9):
            img, b = n // 3, n % 3
            if img == 0:
                out.append((f"s_add_u32 m0, s57, {buf*STG + img*IMG + b*1024}", f"s_mov_b32 s58, {stage*64*3072}",
                            f"buffer_load_dwordx4 {v(14+b)}, s[40:43], s58 offen lds"))
            else:
                out.append((f"s_add_u32 m0, s57, {buf*STG + img*IMG + b*1024}", f"s_mov_b32 s58, {stage*64*2752}",
                            f"buffer_load_dwordx4 {v(17+b)}, {s(40+4*img,4)}, s58 offen lds"))
        return out
    def dma(stage, lo=0, hi=13):
        for m, so, ld in dma_list(stage)[lo:hi]:
            a(m); a(so); vm.issue(ld, ("st", stage))
    dma(0)
    dma(1, 0, 6)
    srd(a, SY, S_WS, SY_SIZE, WS_SY)
    a(f"s_load_dword s{S_EP}, s[{SY}:{SY+1}], {SY_EPOCH}")
    a("v_lshrrev_b32 v2, 4, v0")
    a("v_bfe_u32 v4, v0, 2, 2")
    a("v_lshl_add_u32 v4, v2, 3, v4")
    a("v_mul_u32_u24 v4, 192, v4")
    a("v_and_b32 v5, 3, v0")
    a("v_lshl_add_u32 v4, v5, 3, v4")
    a(f"v_add_u32 v4, {SB+XB}, v4")
    a("v_and_b32 v5, 1, v2")
    a("v_lshlrev_b32 v5, 5, v5")
    CA = [21, 32, 37]
    for i in range(5):
        T = 61 + i
        if i < 4:
            a(f"s_add_u32 s{T}, s{LW}, {4*i}")
        else:
            a(f"s_and_b32 s{T}, s{LW}, 1")
            a(f"s_add_u32 s{T}, s{T}, 16")
        a(f"s_mul_i32 s54, s{T}, 43")
        a("s_lshr_b32 s54, s54, 8")
        a("s_mul_i32 s55, s54, 6")
        a(f"s_sub_u32 s55, s{T}, s55")
        a("s_lshl_b32 s55, s55, 5")
        a(f"s_mul_i32 s54, s54, {IMG}")
        a("v_xor_b32 v6, s55, v5")
        a(f"v_add3_u32 {v(21+i)}, v4, v6, s54")
        a(f"v_add_u32 {v(32+i)}, {STG}, {v(21+i)}")
        a(f"v_add_u32 {v(37+i)}, {2*STG}, {v(21+i)}")
    for r in range(4):
        a(f"v_mov_b32 {v(28+r)}, 0x3f803f80")
    CS = 44
    CF = 64
    for r in range(0, 20, 2):
        a(f"v_pk_mov_b32 {v(CS+r,2)}, 0, 0")
    a(f"s_lshl_b32 s54, s{S_RB}, 13")
    a(f"s_lshl_b32 s55, s{LW}, 11")
    a("s_add_u32 s54, s54, s55")
    a(f"s_add_u32 s54, s54, {SY_ROW}")
    a("v_and_b32 v27, 15, v0")
    a("v_lshlrev_b32 v26, 7, v27")
    a("v_add_u32 v26, s54, v26")
    a(f"s_lshl_b32 s3, s{LW}, 7")
    a("v_lshl_add_u32 v27, v27, 3, s3")
    a("s_waitcnt lgkmcnt(0)")
    mktag()
    def colsum(stage, filler):
        buf = stage % 3
        if "nocs" in opt:
            for m, so, ld, tg in filler:
                a(m); a(so); vm.issue(ld, tg)
            return
        for ks in range(2):
            for i in range(5):
                for hf in range(2):
                    lg.issue(f"ds_read_b64_tr_b16 {v(CF+20*ks+4*i+2*hf,2)}, {v(CA[buf]+i)} offset:{ks*6144 + hf*768}", ("c", ks, i))
            for _ in range(2):
                if filler:
                    m, so, ld, tg = filler.pop(0)
                    a(m); a(so); vm.issue(ld, tg)
            for i in range(5):
                lg.wait(("c", ks, i))
                a(f"v_mfma_f32_16x16x32_bf16 {v(CS+4*i,4)}, {v(CF+20*ks+4*i,4)}, v[28:31], {v(CS+4*i,4)}")
        for m, so, ld, tg in filler:
            a(m); a(so); vm.issue(ld, tg)
    def dl(stage, lo=0, hi=13):
        return [(m, so, ld, ("st", stage)) for m, so, ld in dma_list(stage)[lo:hi]]
    ts("l")
    vm.wait(("st", 0))
    a("s_barrier")
    ts("l")
    dma(1, 6, 13)
    colsum(0, dl(2))
    vm.wait(("st", 1))
    a("s_barrier")
    colsum(1, dl(3))
    vm.wait(("st", 2))
    a("s_barrier")
    ts("l")
    vm.issue(f"buffer_load_dwordx4 v[104:107], v26, {s(SY,4)}, 0 offen sc1", "gat")
    colsum(2, dl(4))
    vm.wait(("st", 3))
    a("s_barrier")
    colsum(3, dl(5))
    vm.wait(("st", 4), "gat")
    a(f"v_cmp_eq_u32 vcc, s{S_TAG}, v106")
    a("s_nop 3")
    a("s_cmp_eq_u64 vcc, -1")
    a(f"s_cbranch_scc1 {L('valok')}")
    poll("pr", 26, 104, width=4, tagreg=2)
    a.label(L("valok"))
    a("s_barrier")
    colsum(4, dl(6))
    for k in range(2):
        a(f"v_lshlrev_b32 {v(108+k)}, 16, {v(104+k)}")
        a(f"v_xor_b32 {v(108+k)}, 0x80000000, {v(108+k)}")
        a(f"v_and_b32 {v(110+k)}, 0xffff0000, {v(104+k)}")
        a(f"v_rcp_f32 {v(110+k)}, {v(110+k)}")
    a("s_nop 0")
    lg.issue(f"ds_write_b64 v27, v[108:109] offset:{ST_M}")
    lg.issue(f"ds_write_b64 v27, v[110:111] offset:{ST_RS}")
    vm.wait(("st", 5))
    a("s_barrier")
    colsum(5, dl(7))
    srd(a, 40, S_WD, 1376 * 1024)
    srd(a, 44, S_WO, 512 * 1024)
    srd(a, 48, S_WS, NSLAB_H * 131072, WS_H)
    srd(a, 52, S_WS, 16 * 131072, WS_O)
    G_ACC, BF, GW, XR = 192, 192 - 16 * D, 32, 24
    a(f"s_lshl_b32 s3, s{S_TB}, 12")
    a("v_lshl_add_u32 v1, v0, 4, s3")
    a("v_lshrrev_b32 v3, 3, v0")
    a("v_and_b32 v4, 7, v0")
    a("v_and_b32 v5, 6, v3")
    a("v_xor_b32 v4, v4, v5")
    a("v_lshlrev_b32 v4, 4, v4")
    a("v_and_b32 v5, 4, v3")
    a("v_add_u32 v3, v3, v5")
    a("v_lshl_add_u32 v4, v3, 10, v4")
    a(f"s_lshl_b32 s3, s{S_J}, 7")
    a("v_add_u32 v2, s3, v4")
    a(f"s_mul_i32 s56, s{LW}, 12288")
    a(f"s_add_u32 s56, s56, {SB}")
    a(f"s_lshl_b32 s57, s{LW}, 15")
    a(f"s_lshl_b32 s59, s{LW}, 17")
    NH, NO = 11, 4
    NT = NH + NO
    NS = 9
    BUFORD = [2, 0, 1]
    def slot_off(k):
        sl = k % 6
        return BUFORD[sl // 3], (sl % 3) * 4096
    def w2_list(k):
        b, o = slot_off(k)
        out = []
        for q in range(4):
            kk, sr = (k, 40) if k < NH else (k - NH, 44)
            out.append((f"s_add_u32 m0, s56, {b*STG + o + q*1024}",
                        f"s_add_u32 s58, s57, {kk*4*32768 + (16*(q&1) + 4*(q>>1))*1024}",
                        f"buffer_load_dwordx4 v2, {s(sr,4)}, s58 offen lds", ("w", k)))
        return out
    def dma_w(k):
        for m, so, ld, tg in w2_list(k):
            a(m); a(so); vm.issue(ld, tg)
    BREG = {}
    WREG = {k: 32 + 16 * k for k in range(6)}
    POOL = [128, 144, 160, 176]
    def load_b(k):
        kk, sr = (k, 48) if k < NH else (k - NH, 52)
        BREG[k] = POOL.pop(0)
        a(f"s_add_u32 s60, s59, {kk*4*131072}")
        for i in range(4):
            vm.issue(f"buffer_load_dwordx4 {v(BREG[k]+4*i,4)}, v1, {s(sr,4)}, s60 offen offset:{1024*i} sc1", ("b", k))
    def rd_w2(k):
        b, o = slot_off(k)
        if k not in WREG:
            WREG[k] = POOL.pop(0)
        for u in range(4):
            for hf in range(2):
                lg.issue(f"ds_read_b64_tr_b16 {v(WREG[k]+4*u+2*hf,2)}, {v(10+4*b+u)} offset:{o + hf*2048}", ("w", k, u))
    lg.wait_all()
    vm.wait(("st", 6))
    a("s_barrier")
    colsum(6, w2_list(0) + w2_list(1) + w2_list(2))
    a("v_lshrrev_b32 v3, 4, v0")
    a("v_bfe_u32 v4, v0, 2, 2")
    a("v_lshl_add_u32 v5, v3, 2, v4")
    a("v_bfe_u32 v6, v5, 1, 2")
    a("v_and_b32 v7, 3, v0")
    a("v_lshlrev_b32 v7, 3, v7")
    a("v_lshl_add_u32 v7, v5, 7, v7")
    a("v_add_u32 v7, s56, v7")
    TA_ = 112
    for u in range(4):
        a(f"v_xor_b32 v8, {u}, v6")
        a(f"v_lshl_add_u32 {v(TA_+u)}, v8, 5, v7")
        a(f"v_add_u32 {v(TA_+4+u)}, {STG}, {v(TA_+u)}")
        a(f"v_add_u32 {v(TA_+8+u)}, {2*STG}, {v(TA_+u)}")
    vm.wait(("st", 7))
    a("s_barrier")
    colsum(7, [])
    a("v_lshlrev_b32 v6, 4, v3")
    a("s_nop 6")
    for i in range(5):
        a(f"s_lshl_b32 s3, s{61+i}, 6")
        a("v_add_u32 v7, s3, v6")
        lg.issue(f"ds_write_b128 v7, {v(CS+4*i,4)} offset:{ST_CS}")
    lg.wait_all()
    a("s_barrier")
    for k in range(3, 6): dma_w(k)
    for u in range(12):
        a(f"v_mov_b32 {v(10+u)}, {v(TA_+u)}")
    a("v_and_b32 v8, 15, v0")
    a("v_lshlrev_b32 v9, 10, v8")
    a("v_lshl_add_u32 v9, v3, 4, v9")
    a(f"s_lshl_b32 s3, s{S_TB}, 16")
    a(f"s_lshl_b32 s61, s{LW}, 14")
    a("s_add_u32 s3, s3, s61")
    a(f"s_lshl_b32 s61, s{S_J}, 7")
    a("s_add_u32 s3, s3, s61")
    a("v_add_u32 v9, s3, v9")
    a("v_lshrrev_b32 v4, 1, v0")
    a("v_min_u32 v4, 14, v4")
    a("v_lshlrev_b32 v4, 9, v4")
    a("v_and_b32 v5, 1, v0")
    a("v_lshl_add_u32 v4, v5, 8, v4")
    a(f"s_lshr_b32 s3, s{S_TB}, 1")
    a("s_lshl_b32 s3, s3, 13")
    a(f"s_and_b32 s61, s{S_TB}, 1")
    a("s_lshl_b32 s61, s61, 7")
    a("s_add_u32 s3, s3, s61")
    a(f"s_add_u32 s3, s3, {SY_HF}")
    a("v_add_u32 v22, s3, v4")
    a("v_bfe_u32 v4, v0, 1, 2")
    a("v_lshlrev_b32 v4, 3, v4")
    a("v_add_u32 v4, v4, v5")
    a(f"s_lshl_b32 s3, s{LW}, 1")
    a("v_add_u32 v4, s3, v4")
    a("v_lshlrev_b32 v4, 7, v4")
    a(f"s_lshl_b32 s3, s{S_TB}, 12")
    a(f"s_add_u32 s3, s3, {SY_OF}")
    a("v_add_u32 v23, s3, v4")
    for k in range(6):
        vm.wait(("w", k))
        if k >= 1:
            lg.wait(("w", k - 1, 1))
        rd_w2(k)
    lg.wait_all()
    a("s_setprio 0")
    a("s_barrier")
    for k in range(6, 6 + RF): dma_w(k)
    vm.issue(f"buffer_load_dwordx4 {v(XR,4)}, v9, s[36:39], 0 offen", "x")
    vm.issue(f"buffer_load_dwordx4 {v(XR+4,4)}, v9, s[36:39], 0 offen offset:64", "x")
    if WQ:
        a("v_and_b32 v4, 3, v0")
        a("v_lshlrev_b32 v4, 2, v4")
        a(f"s_mov_b32 s3, {SPIN * 20}")
        a.label(L("lsync"))
        a(f"ds_read_b32 v5, v4 offset:{ST_SY}")
        a("s_waitcnt lgkmcnt(0)")
        a(f"v_cmp_eq_u32 vcc, s{S_TAG}, v5")
        a("s_sub_u32 s3, s3, 1")
        a("s_cmp_eq_u32 s3, 0")
        a(f"s_cbranch_scc1 {L('lsync_ok')}")
        a("s_cmp_eq_u64 vcc, -1")
        a(f"s_cbranch_scc1 {L('lsync_ok')}")
        a("s_sleep 2")
        a(f"s_branch {L('lsync')}")
        a.label(L("lsync_ok"))
    ts("l")
    poll("ph", 22, 4, sleep=4)
    vm.done = vm.n
    ts("l")
    nb = [0]
    def more_b(limit, reserve):
        while nb[0] < limit and len(POOL) > reserve:
            load_b(nb[0]); nb[0] += 1
    more_b(NH, 0)
    for k in range(6 + RF, 12): dma_w(k)
    def mm(k):
        for u in range(4):
            lg.wait(("w", k, u))
            for i in range(4):
                acc = v(G_ACC + 4 * (4 * u + i), 4)
                a(f"v_mfma_f32_16x16x32_bf16 {acc}, {v(WREG[k]+4*u,4)}, {v(BREG[k]+4*i,4)}, {'0' if k == 0 else acc}")
        POOL.append(BREG[k]); POOL.append(WREG[k])
    for k in range(NH):
        if k + 1 >= 6 and k + 1 < NT:
            vm.wait(("w", k + 1))
            rd_w2(k + 1)
        vm.wait(("b", k))
        mm(k)
        more_b(NH, 1 if k >= 3 else 0)
        if k in (6, 7, 8):
            dma_w(k + 6)
    for k in range(NH + 1, NT):
        lg.wait(("w", k - 1, 1))
        vm.wait(("w", k))
        rd_w2(k)
    ts("l", lg)
    poll("po", 23, 4, sleep=4)
    vm.done = vm.n
    ts("l", lg)
    more_b(NT, 0)
    assert nb[0] == NT
    for k in range(NH, NT):
        vm.wait(("b", k))
        mm(k)
    ts("l", lg)
    a("v_lshl_add_u32 v10, v0, 4, s56")
    a(f"v_add_u32 v11, {2*STG}, v10")
    a("s_nop 6")
    for t in range(16):
        if t < 12:
            a(f"ds_write_b128 v11, {v(G_ACC+4*t,4)} offset:{t*1024}")
        else:
            a(f"ds_write_b128 v10, {v(G_ACC+4*t,4)} offset:{(t-12)*1024}")
    srd(a, 40, S_OUT, 2048 * 1024)
    a("v_lshrrev_b32 v4, 1, v3")
    a("v_and_b32 v5, 1, v3")
    a("v_lshlrev_b32 v5, 9, v5")
    a("v_lshl_add_u32 v5, v8, 4, v5")
    a(f"s_lshl_b32 s3, s{LW}, 10")
    a(f"s_add_u32 s3, s3, {SB}")
    a("v_add_u32 v5, s3, v5")
    a("v_lshl_add_u32 v6, v4, 12, v5")
    a(f"v_add_u32 v6, {2*STG}, v6")
    a("v_cmp_eq_u32 vcc, 0, v4")
    a(f"v_add_u32 v7, {2*STG + 8192}, v5")
    a("s_nop 0")
    a("v_cndmask_b32 v7, v5, v7, vcc")
    for d in range(8):
        a(f"v_lshlrev_b32 {v(96+2*d)}, 16, {v(XR+d)}")
        a(f"v_and_b32 {v(97+2*d)}, 0xffff0000, {v(XR+d)}")
    a("s_waitcnt lgkmcnt(0)")
    a("s_barrier")
    for pw in range(4):
        for h2 in range(2):
            for e in range(2):
                a(f"ds_read_b128 {v(128+16*pw+8*h2+4*e,4)}, {v(6+h2)} offset:{pw*12288 + e*256}")
    for pw in range(4):
        a(f"s_waitcnt lgkmcnt({12-4*pw})")
        for e in range(0, 16, 2):
            a(f"v_pk_add_f32 {v(96+e,2)}, {v(96+e,2)}, {v(128+16*pw+e,2)}")
    for d in range(8):
        a(f"v_cvt_pk_bf16_f32 {v(112+d)}, {v(96+2*d)}, {v(97+2*d)}")
    a(f"buffer_store_dwordx4 v[112:115], v9, s[40:43], 0 offen")
    a(f"buffer_store_dwordx4 v[116:119], v9, s[40:43], 0 offen offset:64")
    ts("l")
    ts_dump("l")
    a.label(L("end"))
    a("s_endpgm")
```

```python
import sys
from asmlib import *
import k1, k2
import fused5 as fused
NAME = 'parallel_sum__sliding_block__glu_gated_reglu__prompt_kernel'
HEADER = open("parallel_sum__sliding_block__glu_gated_reglu__prompt.s.ref").read().split("; Override launch")[0]
def build(kernels, path):
    a = Asm()
    a.raw(HEADER.rstrip("\n"))
    for (name, body, grid, block, lds, vg, sg) in kernels:
        if name == NAME:
            a.raw(f"; @launch grid=({grid},1,1) block=({block},1,1) lds={lds}")
        else:
            a.raw(f"; @launch kernel={name} grid=({grid},1,1) block=({block},1,1) lds={lds}")
    a.raw('.amdgcn_target "amdgcn-amd-amdhsa--gfx950"')
    a.raw(".text")
    for (name, body, grid, block, lds, vg, sg) in kernels:
        kernel_begin(a, name)
        body(a, name)
    a.raw('.section .rodata,"a"')
    for (name, body, grid, block, lds, vg, sg) in kernels:
        descriptor(a, name, vg, sg)
    open(path, "w").write(a.text())
if __name__ == "__main__":
    for timing, fn in ((True, "fz_t.s"), (False, "fz.s")):
        build([(NAME, lambda a, n: fused.body(a, "fz", timing=timing), 256, 512, fused.LDS_BYTES, 256, 102)], fn)
    for nm, kw in (("a", dict(opt=("mapC", "local"))), ("b", dict(opt=("mapC", "local"), WQ=0)), ("c", dict(opt=("mapC", "local"), WQ=0, QSL=1)), ("d", dict(opt=("mapC", "local"), RF=2))):
        build([(NAME, lambda a, n: fused.body(a, "fz", timing=True, **kw), 256, 512, fused.LDS_BYTES, 256, 102)], f"fz{nm}_t.s")
```

```python
from asmlib import *

WS_QK = 0
WS_VT = 4 << 20
WS_H = 6 << 20
NSLAB_H = 43
WS_O = WS_H + NSLAB_H * 131072
WS_SY = 14 << 20
SY_EPOCH = 0
SY_ROW = 0x20000
SY_F = 0x40000
SY_OF = 0x80000
SY_SIZE = 0xA0000
WS_TIM = 16 << 20

STG = 53248
XB = 16384
IMG = 12288
ST_M = 0
ST_RS = 512
ST_CS = 1024
ST_SY = 2304
SB = 4096
LDS_BYTES = SB + 3 * STG

ACC = 96
WF = 56
XF = 24
SPIN = 300000

S_X, S_WQKV, S_WO, S_WG, S_WU, S_WD, S_OUT, S_DBG, S_WS = 4, 6, 8, 12, 14, 16, 18, 20, 22
S_RB, S_C, S_W, S_TB, S_J, S_TAG, S_EP = 24, 25, 26, 27, 28, 29, 30
SY = 32
KNAME = 'parallel_sum__sliding_block__glu_gated_reglu__prompt_kernel'
S_AB, S_HD = 10, 11
BQ = SB + STG
WOFF = XB

def bf16_round(a, r):
    a(f"v_cvt_pk_bf16_f32 {v(r)}, {v(r)}, {v(r)}")
    a(f"v_lshlrev_b32 {v(r)}, 16, {v(r)}")

def allreduce64x2(a, r0, r1, t0, t1):
    for c in ("quad_perm:[1,0,3,2]", "quad_perm:[2,3,0,1]", "row_half_mirror", "row_mirror"):
        a("s_nop 0")
        a(f"v_add_f32_dpp {v(r0)}, {v(r0)}, {v(r0)} {c} row_mask:0xf bank_mask:0xf")
        a(f"v_add_f32_dpp {v(r1)}, {v(r1)}, {v(r1)} {c} row_mask:0xf bank_mask:0xf")
    for sw in ("v_permlane16_swap_b32", "v_permlane32_swap_b32"):
        a(f"v_mov_b32 {v(t0)}, {v(r0)}")
        a(f"v_mov_b32 {v(t1)}, {v(r1)}")
        a("s_nop 0")
        a(f"{sw} {v(r0)}, {v(t0)}")
        a(f"{sw} {v(r1)}, {v(t1)}")
        a("s_nop 0")
        a(f"v_add_f32 {v(r0)}, {v(r0)}, {v(t0)}")
        a(f"v_add_f32 {v(r1)}, {v(r1)}, {v(t1)}")

def body(a, name, timing=False, opt=(), BA=1, QSL=4, HSL=4, LP0=1, PF1=-1, PF2=4, PFSK=2, RF=0, RF2=2, EW=0, QD=1, QD3=0, OSL=2, ROT=None, HALF=1):
    L = lambda x: f"{name}_{x}"
    TS = {}
    def ts(role, lg=None):
        if timing:
            i = TS.get(role, 0)
            assert i < 14
            a(f"s_memtime s[{68+2*i}:{69+2*i}]")
            a("s_waitcnt lgkmcnt(0)")
            if lg is not None: lg.done = lg.n
            TS[role] = i + 1
    def ts_dump(role):
        if timing:
            a("s_mov_b64 exec, -1")
            a("s_waitcnt vmcnt(0)")
            ts(role)
            a("s_memrealtime s[98:99]")
            a("s_waitcnt lgkmcnt(0)")
            srd(a, 36, S_WS, 1 << 20, WS_TIM)
            a("s_lshl_b32 s3, s2, 9")
            a(f"s_lshl_b32 s40, s{S_W}, 6")
            a("s_add_u32 s3, s3, s40")
            a("v_mov_b32 v3, s3")
            a("v_mov_b32 v4, s96")
            a("v_mov_b32 v5, s98")
            a("buffer_store_dwordx2 v[4:5], v3, s[36:39], 0 offen offset:56")
            for q in range(TS[role]):
                a("s_nop 1")
                a(f"s_sub_u32 s40, s{68+2*q}, s100")
                a("v_mov_b32 v4, s40")
                a(f"buffer_store_dword v4, v3, s[36:39], 0 offen offset:{4*q}")
    def poll(lbl, vaddr, vdst, width=1, tagreg=0, sleep=2):
        a(f"s_mov_b32 s3, {SPIN}")
        a.label(L(lbl))
        w = {1: "dword", 4: "dwordx4"}[width]
        a(f"buffer_load_{w} {v(vdst,width)}, {v(vaddr)}, {s(SY,4)}, 0 offen sc1")
        a("s_waitcnt vmcnt(0)")
        a(f"v_cmp_eq_u32 vcc, s{S_TAG}, {v(vdst+tagreg)}")
        a("s_sub_u32 s3, s3, 1")
        a("s_cmp_eq_u32 s3, 0")
        a(f"s_cbranch_scc1 {L(lbl+'_ok')}")
        a("s_cmp_eq_u64 vcc, -1")
        a(f"s_cbranch_scc1 {L(lbl+'_ok')}")
        a(f"s_sleep {sleep}")
        a(f"s_branch {L(lbl)}")
        a.label(L(lbl + "_ok"))
    def mktag():
        a(f"s_mul_i32 s{S_TAG}, s{S_EP}, 0x01010101")
        a(f"s_add_u32 s{S_TAG}, s{S_TAG}, 0x5A3C96E1")

    a("s_cmp_ge_u32 s2, 256")
    a(f"s_cbranch_scc1 {L('end')}")
    a("s_load_dwordx4 s[4:7], s[0:1], 0")
    a("s_load_dwordx4 s[12:15], s[0:1], 32")
    a("s_load_dwordx4 s[20:23], s[0:1], 64")
    a("s_load_dwordx2 s[8:9], s[0:1], 16")
    a("s_load_dwordx4 s[16:19], s[0:1], 48")
    if timing:
        a("s_memtime s[100:101]")
        a("s_memrealtime s[96:97]")
    a("s_and_b32 s3, s2, 7")
    a("s_lshr_b32 s31, s2, 3")
    if "mapA" in opt:
        a(f"s_and_b32 s{S_RB}, s3, 1")
        a(f"s_lshl_b32 s{S_RB}, s{S_RB}, 3")
        a("s_and_b32 s40, s31, 7")
        a(f"s_add_u32 s{S_RB}, s{S_RB}, s40")
        a(f"s_lshr_b32 s{S_C}, s3, 1")
        a("s_lshr_b32 s40, s31, 3")
        a("s_lshl_b32 s40, s40, 2")
        a(f"s_add_u32 s{S_C}, s{S_C}, s40")
    elif "mapB" in opt:
        a(f"s_and_b32 s{S_RB}, s3, 3")
        a(f"s_lshl_b32 s{S_RB}, s{S_RB}, 2")
        a("s_and_b32 s40, s31, 3")
        a(f"s_add_u32 s{S_RB}, s{S_RB}, s40")
        a(f"s_lshr_b32 s{S_C}, s3, 2")
        a("s_lshr_b32 s40, s31, 2")
        a("s_lshl_b32 s40, s40, 1")
        a(f"s_add_u32 s{S_C}, s{S_C}, s40")
    else:
        a(f"s_lshl_b32 s{S_RB}, s3, 1")
        a("s_and_b32 s40, s31, 1")
        a(f"s_add_u32 s{S_RB}, s{S_RB}, s40")
        a(f"s_lshr_b32 s{S_C}, s31, 1")
    a(f"s_lshl_b32 s{S_TB}, s3, 2")
    a("s_and_b32 s40, s31, 3")
    a(f"s_add_u32 s{S_TB}, s{S_TB}, s40")
    a(f"s_lshr_b32 s{S_J}, s31, 2")
    a(f"s_mov_b32 s{S_AB}, s3")
    a(f"s_mov_b32 s{S_HD}, s31")
    a("v_lshrrev_b32 v1, 6, v0")
    a("v_and_b32 v0, 63, v0")
    a("s_nop 0")
    a(f"v_readfirstlane_b32 s{S_W}, v1")
    a("s_nop 3")
    a(f"s_cmp_ge_u32 s{S_W}, 4")
    a(f"s_cbranch_scc1 {L('loader')}")
    def lds_spin(lbl, base, va, vd, sleep=0):
        a(f"v_and_b32 {v(va)}, 3, v0")
        a(f"v_lshlrev_b32 {v(va)}, 2, {v(va)}")
        a(f"s_mov_b32 s3, {SPIN * 20}")
        a.label(L(lbl))
        a(f"ds_read_b32 {v(vd)}, {v(va)} offset:{base}")
        a("s_waitcnt lgkmcnt(0)")
        a(f"v_cmp_eq_u32 vcc, s{S_TAG}, {v(vd)}")
        a("s_sub_u32 s3, s3, 1")
        a("s_cmp_eq_u32 s3, 0")
        a(f"s_cbranch_scc1 {L(lbl + '_ok')}")
        a("s_cmp_eq_u64 vcc, -1")
        a(f"s_cbranch_scc1 {L(lbl + '_ok')}")
        if sleep: a(f"s_sleep {sleep}")
        a(f"s_branch {L(lbl)}")
        a.label(L(lbl + "_ok"))

    a(f"s_lshl_b32 s40, s{S_RB}, 7")
    a(f"s_lshl_b32 s41, s{S_C}, 3")
    a("s_add_u32 s40, s40, s41")
    a(f"s_lshl_b32 s41, s{S_W}, 1")
    a("s_add_u32 s40, s40, s41")
    a("s_lshl_b32 s40, s40, 10")
    a("v_lshlrev_b32 v8, 4, v0")
    a("s_waitcnt lgkmcnt(0)")
    srd(a, 36, S_X, 2048 * 1024)
    a("buffer_load_dwordx4 v[44:47], v8, s[36:39], s40 offen")
    a("buffer_load_dwordx4 v[48:51], v8, s[36:39], s40 offen offset:1024")
    if "pfc" in opt:
        a(f"s_cmp_lg_u32 s{S_W}, 0")
        a(f"s_cbranch_scc1 {L('npc')}")
        a("s_getpc_b64 s[40:41]")
        a.label(L("pcb"))
        a(f"s_sub_u32 s40, s40, {L('pcb')}-{KNAME}")
        a("s_subb_u32 s41, s41, 0")
        a("v_min_u32 v1, 19, v0")
        a("v_lshlrev_b32 v1, 7, v1")
        a("s_mul_i32 s42, s31, 2560")
        a("v_add_u32 v1, s42, v1")
        a(f"v_min_u32 v1, {L('end')}-{KNAME}, v1")
        a("global_load_dword v255, v1, s[40:41]")
        a.label(L("npc"))
    PFN = [0]
    def pf(w, ptr, nbytes, lines, skip=0):
        PFN[0] += 1
        lb = L('npd%d' % PFN[0])
        a(f"s_cmp_lg_u32 s{S_W}, {w}")
        a(f"s_cbranch_scc1 {lb}")
        srd(a, 52, ptr, nbytes)
        a(f"s_mul_i32 s67, s2, {lines * 128}")
        if skip: a(f"s_add_u32 s67, s67, {skip}")
        a("v_lshlrev_b32 v22, 7, v0")
        a(f"v_min_u32 v22, {(lines - 1) * 128}, v22")
        a("buffer_load_dword v21, v22, s[52:55], s67 offen")
        a.label(lb)
    def pf_w1():
        sk = PFSK * 64
        pf(1, S_WQKV, 512 * 3072, (512 - sk) * 24 // 256, sk * 3072)
        pf(2, S_WG, 512 * 2752, -(-(512 - sk) * 43 // 512), sk * 2752)
        pf(3, S_WU, 512 * 2752, -(-(512 - sk) * 43 // 512), sk * 2752)
    def pf_w2():
        pf(0, S_WD, 1376 * 1024, 43)
        pf(1, S_WO, 512 * 1024, 16)
    if PF1 == -1: pf_w1()
    if PF2 == -1: pf_w2()
    srd(a, SY, S_WS, SY_SIZE, WS_SY)
    a(f"s_load_dword s{S_EP}, s[{SY}:{SY+1}], {SY_EPOCH}")
    a(f"s_and_b32 s42, s{S_W}, 1")
    a(f"s_lshr_b32 s43, s{S_W}, 1")
    a("v_and_b32 v1, 15, v0")
    a("v_lshrrev_b32 v2, 4, v0")
    a("v_lshrrev_b32 v3, 1, v1")
    a("v_xor_b32 v3, v3, v2")
    a("v_lshlrev_b32 v3, 4, v3")
    a("s_lshl_b32 s40, s42, 13")
    a("v_lshl_add_u32 v3, v1, 7, v3")
    a(f"s_add_u32 s40, s40, {SB}")
    a("v_add_u32 v9, s40, v3")
    a("v_xor_b32 v10, 64, v9")
    a(f"s_cmp_lt_u32 s{S_C}, 10")
    a("s_movk_i32 s44, 544")
    a("s_movk_i32 s45, 256")
    a("s_cselect_b32 s44, 288, s44")
    a("s_cselect_b32 s45, 128, s45")
    a("s_mul_i32 s41, s43, s45")
    a("v_lshrrev_b32 v4, 2, v0")
    a("v_mul_u32_u24 v4, s44, v4")
    a("v_and_b32 v5, 3, v0")
    a("v_lshl_add_u32 v4, v5, 3, v4")
    a(f"s_add_u32 s40, s41, {SB + WOFF}")
    a("v_add_u32 v11, s40, v4")
    for b in (1, 2):
        for i in range(3):
            a(f"v_add_u32 {v(9+3*b+i)}, {STG*b}, {v(9+i)}")
    a("s_lshl_b32 s40, s42, 8")
    a("v_lshl_add_u32 v3, v1, 2, s40")
    a("v_lshl_add_u32 v6, v2, 4, s40")
    a("s_lshl_b32 s40, s41, 1")
    a("v_lshl_add_u32 v4, v2, 4, s40")
    a("v_lshl_add_u32 v5, v1, 2, s40")
    a(f"s_lshl_b32 s40, s{S_RB}, 4")
    a(f"s_add_u32 s40, s40, s{S_C}")
    a("s_lshl_b32 s40, s40, 2")
    a(f"s_add_u32 s40, s40, s{S_W}")
    a("s_lshl_b32 s46, s40, 7")
    a(f"s_add_u32 s31, s46, {SY_F}")
    a("s_mov_b32 s44, 0x3b000000")
    a("s_mov_b32 s45, 0x3727c5ac")
    a("v_and_b32 v22, 1, v2")
    a("v_lshrrev_b32 v23, 1, v2")
    a(f"s_cmp_lt_u32 s{S_C}, 10")
    a(f"s_cbranch_scc1 {L('setF')}")
    srd(a, 48, S_WS, 6 << 20, WS_QK)
    a("v_lshl_add_u32 v7, v22, 4, v1")
    a("v_lshlrev_b32 v7, 5, v7")
    a("v_lshl_add_u32 v7, v23, 4, v7")
    a(f"s_sub_u32 s60, s{S_C}, 10")
    a("s_lshl_b32 s60, s60, 1")
    a("s_add_u32 s60, s60, s43")
    a("s_lshl_b32 s60, s60, 19")
    a(f"s_lshl_b32 s40, s{S_RB}, 12")
    a("s_add_u32 s60, s60, s40")
    a("s_lshl_b32 s40, s42, 11")
    a("s_add_u32 s60, s60, s40")
    a(f"s_cmp_lt_u32 s{S_C}, 12")
    a("s_cselect_b32 s66, 0x3eb8aa3b, 1.0")
    a(f"s_branch {L('setD')}")
    a.label(L("setF"))
    srd(a, 48, S_WS, NSLAB_H * 131072, WS_H)
    a("v_lshl_add_u32 v7, v23, 4, v1")
    a("v_lshlrev_b32 v7, 4, v7")
    a("v_lshl_add_u32 v7, v22, 10, v7")
    a(f"s_mul_i32 s40, s{S_C}, 9")
    a("s_lshl_b32 s41, s43, 2")
    a("s_add_u32 s40, s40, s41")
    a(f"s_lshl_b32 s41, s{S_RB}, 13")
    a("s_lshl_b32 s3, s42, 12")
    a("s_add_u32 s41, s41, s3")
    for e in range(5):
        a(f"s_add_u32 s3, s40, {e}")
        a(f"s_lshr_b32 s{60+e}, s3, 1")
        a(f"s_lshl_b32 s{60+e}, s{60+e}, 17")
        a("s_and_b32 s3, s3, 1")
        a("s_lshl_b32 s3, s3, 9")
        a(f"s_add_u32 s{60+e}, s{60+e}, s3")
        a(f"s_add_u32 s{60+e}, s{60+e}, s41")
    a.label(L("setD"))
    a("s_waitcnt vmcnt(0)")
    for k in range(2):
        for d in range(4):
            a(f"v_lshlrev_b32 {v(52+8*k+2*d)}, 16, {v(44+4*k+d)}")
            a(f"v_and_b32 {v(53+8*k+2*d)}, 0xffff0000, {v(44+4*k+d)}")
    for k in range(2):
        a(f"v_add_f32 {v(68+k)}, {v(52+8*k)}, {v(53+8*k)}")
    for e in range(2, 8):
        for k in range(2):
            a(f"v_add_f32 {v(68+k)}, {v(68+k)}, {v(52+8*k+e)}")
    allreduce64x2(a, 68, 69, 72, 73)
    for k in range(2):
        a(f"v_mul_f32 {v(68+k)}, s44, {v(68+k)}")
    for e in range(8):
        for k in range(2):
            a(f"v_sub_f32 {v(52+8*k+e)}, {v(52+8*k+e)}, {v(68+k)}")
    for k in range(2):
        a(f"v_mul_f32 {v(70+k)}, {v(52+8*k)}, {v(52+8*k)}")
    for e in range(1, 8):
        for k in range(2):
            a(f"v_fmac_f32 {v(70+k)}, {v(52+8*k+e)}, {v(52+8*k+e)}")
    allreduce64x2(a, 70, 71, 72, 73)
    for k in range(2):
        q = 70 + k
        a(f"v_mul_f32 {v(q)}, s44, {v(q)}")
        bf16_round(a, q)
        a(f"v_add_f32 {v(q)}, s45, {v(q)}")
        bf16_round(a, q)
        a(f"v_sqrt_f32 {v(q)}, {v(q)}")
    a("s_waitcnt lgkmcnt(0)")
    mktag()
    for k in range(2):
        a(f"v_cvt_pk_bf16_f32 {v(100+k)}, {v(68+k)}, {v(70+k)}")
    a(f"v_mov_b32 v102, s{S_TAG}")
    a(f"v_mov_b32 v103, s{S_TAG}")
    a(f"s_add_u32 s40, s46, {SY_ROW}")
    a("s_mov_b64 exec, 0xff")
    a(f"buffer_store_dwordx4 v[100:103], v8, {s(SY,4)}, s40 offen sc1")
    a("s_mov_b64 exec, -1")
    a(f"s_lshl_b32 s3, s{S_W}, 2")
    a("v_mov_b32 v22, s3")
    a(f"s_not_b32 s3, s{S_TAG}")
    a("v_mov_b32 v23, s3")
    a(f"ds_write_b32 v22, v23 offset:{ST_SY}")
    a(f"ds_write_b32 v22, v23 offset:{ST_SY + 16}")
    a(f"ds_write_b32 v22, v23 offset:{ST_SY + 32}")
    a(f"ds_write_b32 v22, v23 offset:{ST_SY + 48}")
    a("s_waitcnt lgkmcnt(0)")
    ts("c")
    a("s_barrier")
    ts("c")
    a(f"s_cmp_lt_u32 s{S_C}, 10")
    a(f"s_cbranch_scc1 {L('mF')}")
    a(f"s_cmp_lt_u32 s{S_C}, 14")
    a(f"s_cbranch_scc1 {L('mQ')}")
    A = lambda j, i, r: ACC + 4 * (4 * j + i) + r
    BL = "op_sel_hi:[1,0,1]"
    MR = XF
    ts0 = TS.get("c", 0)
    for ty, fw in (("V", 0), ("Q", 0), ("F", 0), ("F", 1)):
        TS["c"] = ts0
        if ty != "V" and fw == 0: a.label(L("m" + ty))
        if ty == "F" and fw == 0:
            a("s_cmp_eq_u32 s43, 1")
            a(f"s_cbranch_scc1 {L('mF1')}")
        if ty == "F" and fw == 1: a.label(L("mF1"))
        def toks(j):
            if ty == "F" and HALF and j % 5 == (4 if fw == 0 else 0):
                return [0, 1] if fw == 0 else [2, 3]
            return [0, 1, 2, 3]
        NTL = 10 if ty == "F" else 8
        lg = Counter(a, "lgkmcnt", 12)
        vm = Counter(a, "vmcnt", 60)
        def q_x(step):
            buf, ks = (step // 2) % 3, step % 2
            return [(f"ds_read_b128 {v(XF+16*ks+4*i,4)}, {v(9+3*buf+ks)} offset:{i*2048}", ("x", step, i)) for i in range(4)]
        def q_w(step, j):
            buf, ks = (step // 2) % 3, step % 2
            out = []
            for hf in range(2):
                off = ((j // 5) * 18432 + ks * 9216 + hf * 4608 + (j % 5) * 32) if ty == "F" else ((2 * ks + hf) * 9216 + j * 32)
                out.append((f"ds_read_b64_tr_b16 {v(WF+4*j+2*hf,2)}, {v(11+3*buf)} offset:{off}", ("w", step, j)))
            return out
        def mfma(j, i, step):
            acc = v(A(j, i, 0), 4)
            c = "0" if step == 0 else acc
            w = v(WF + 4 * j, 4); x = v(XF + 16 * (step % 2) + 4 * i, 4)
            if ty == "V":
                return f"v_mfma_f32_16x16x32_bf16 {acc}, {x}, {w}, {c}"
            return f"v_mfma_f32_16x16x32_bf16 {acc}, {w}, {x}, {c}"
        def q_cs(j):
            if ty == "V":
                l = f"ds_read_b32 {v(WF+4*j)}, v5 offset:{ST_CS + j*64}"
            elif ty == "Q":
                l = f"ds_read_b128 {v(WF+4*j,4)}, v4 offset:{ST_CS + j*64}"
            else:
                l = f"ds_read_b128 {v(WF+4*j,4)}, v4 offset:{ST_CS + ((j//5)*9 + j%5)*64}"
            return [(l, ("cs", j, 0))]
        for l, t in q_x(0): lg.issue(l, t)
        for j in range(NTL):
            if j in (4, 8): lg.wait(("w", 0, j - 4))
            for l, t in q_w(0, j): lg.issue(l, t)
        pend = []
        order = list(range(NTL)) if ty != "F" else ([0, 5, 1, 6, 4, 9, 2, 7, 3, 8] if fw == 0 else [1, 6, 2, 7, 0, 5, 3, 8, 4, 9])
        for step in range(16):
            ks = step % 2
            nstep = step + 1
            hold = []
            if PF1 == step: pf_w1()
            if PF2 == step: pf_w2()
            for gi, j in enumerate(order):
                while any(t == ("w", step, j) or t[:2] == ("x", step) for _, t in pend):
                    l, t = pend.pop(0); lg.issue(l, t)
                lg.wait(("w", step, j), ("x", step, 3))
                for i in toks(j):
                    a(mfma(j, i, step))
                    if pend:
                        l, t = pend.pop(0); lg.issue(l, t)
                new = []
                if nstep < 16:
                    new += q_w(nstep, j)
                    if gi in (2, 3):
                        new += q_x(nstep)[2*(gi-2):2*(gi-2)+2]
                else:
                    new += q_cs(j)
                    if gi in (1, 2, 3, 4):
                        i = gi - 1
                        if ty == "V":
                            new.append((f"ds_read_b128 {v(224+8*i,4)}, v6 offset:{ST_M + 64*i}", ("st", i, 0)))
                            new.append((f"ds_read_b128 {v(228+8*i,4)}, v6 offset:{ST_RS + 64*i}", ("st", i, 1)))
                        else:
                            new.append((f"ds_read_b32 {v(MR+2*i)}, v3 offset:{ST_M + 64*i}", ("st", i, 0)))
                            new.append((f"ds_read_b32 {v(MR+1+2*i)}, v3 offset:{ST_RS + 64*i}", ("st", i, 1)))
                if ks == 1 and gi < BA:
                    hold += new
                    continue
                if ks == 1 and gi == BA:
                    for l, t in pend: lg.issue(l, t)
                    pend = []
                    lg.wait_all()
                    a("s_barrier")
                    if step in (3, 7, 11, 15): ts("c", lg)
                    pend += hold
                pend += new
        for l, t in pend: lg.issue(l, t)
        ts("c", lg)
        def corr(j, i):
            for r in (0, 2):
                a(f"v_pk_fma_f32 {v(A(j,i,r),2)}, {v(WF+4*j+r,2)}, {v(MR+2*i,2)}, {v(A(j,i,r),2)} {BL}")
        def pack_store(j, i0, so, off):
            d = A(j, i0, 0)
            a(f"v_cvt_pk_bf16_f32 {v(d)}, {v(d)}, {v(d+1)}")
            a(f"v_cvt_pk_bf16_f32 {v(d+1)}, {v(d+2)}, {v(d+3)}")
            a(f"v_cvt_pk_bf16_f32 {v(d+2)}, {v(d+4)}, {v(d+5)}")
            a(f"v_cvt_pk_bf16_f32 {v(d+3)}, {v(d+6)}, {v(d+7)}")
            a("s_nop 0")
            a(f"v_permlane16_swap_b32 {v(d)}, {v(d+2)}")
            a(f"v_permlane16_swap_b32 {v(d+1)}, {v(d+3)}")
            pol = "" if ("local" in opt and ty == "F") or "plainall" in opt else "sc1"
            a(f"buffer_store_dwordx4 {v(d,4)}, v7, s[48:51], {s(so)} offen offset:{off} {pol}")
        lg.wait(("st", 3, 1))
        if ty == "F":
            for i in range(4):
                a(f"v_mul_f32 {v(MR+1+2*i)}, {v(MR+1+2*i)}, {v(MR+1+2*i)}")
            for e in order[::2]:
                lg.wait(("cs", e, 0), ("cs", 5 + e, 0))
                for i in toks(e):
                    corr(e, i); corr(5 + e, i)
                    for r in range(4):
                        a(f"v_max_f32 {v(A(e,i,r))}, 0, {v(A(e,i,r))}")
                    for r in (0, 2):
                        a(f"v_pk_mul_f32 {v(A(5+e,i,r),2)}, {v(A(5+e,i,r),2)}, {v(MR+2*i,2)} op_sel:[0,1] op_sel_hi:[1,1]")
                    for r in (0, 2):
                        a(f"v_pk_mul_f32 {v(A(e,i,r),2)}, {v(A(e,i,r),2)}, {v(A(5+e,i,r),2)}")
                    if i & 1:
                        pack_store(e, i - 1, 60 + e, 1024 * (i - 1))
        else:
            if ty == "Q":
                for i in range(4):
                    a(f"v_mul_f32 {v(MR+1+2*i)}, s66, {v(MR+1+2*i)}")
            for j in range(8):
                lg.wait(("cs", j, 0))
                for i in range(4):
                    if ty == "Q":
                        corr(j, i)
                        for r in (0, 2):
                            a(f"v_pk_mul_f32 {v(A(j,i,r),2)}, {v(A(j,i,r),2)}, {v(MR+2*i,2)} op_sel:[0,1] op_sel_hi:[1,1]")
                    else:
                        for r in (0, 2):
                            a(f"v_pk_fma_f32 {v(A(j,i,r),2)}, {v(224+8*i+r,2)}, {v(WF+4*j,2)}, {v(A(j,i,r),2)} {BL}")
                        for r in (0, 2):
                            a(f"v_pk_mul_f32 {v(A(j,i,r),2)}, {v(A(j,i,r),2)}, {v(228+8*i+r,2)}")
                    if i & 1:
                        pack_store(j, i - 1, 60, 512 * (i - 1))
                a("s_add_u32 s60, s60, 0x10000")
        if not (ty == "F" and fw == 1):
            a(f"s_branch {L('mdone')}")
    a.label(L("mdone"))
    ts("c")
    KF, VF, QF = 16, 56, 136
    S = [144, 160, 176]
    NM, O, P, MK = 192, 208, 224, 240
    LP = "" if "local" in opt else "sc1"
    for r in range(4):
        a(f"v_mov_b32 {v(252+r)}, s{S_TAG}")
    a("v_mov_b32 v15, v8")
    a("s_setprio 2")
    srd(a, 56, S_WS, 16 * 131072, WS_O)
    a(f"s_mov_b32 s42, s{S_HD}")
    a(f"s_lshl_b32 s43, s{S_AB}, 2")
    a(f"s_add_u32 s43, s43, s{S_W}")
    a("s_lshl_b32 s45, s43, 6")
    a("v_and_b32 v1, 31, v0")
    a("v_lshrrev_b32 v2, 5, v0")
    a("v_lshlrev_b32 v3, 4, v2")
    a("v_lshlrev_b32 v8, 3, v2")
    a("v_sub_u32 v8, v1, v8")
    a("s_sub_u32 s37, s45, 256")
    a("s_mov_b32 exec_lo, 0xffff0000")
    a("s_mov_b32 exec_hi, 0xffff0000")
    for kt in range(10):
        a(f"s_cmp_ge_i32 s37, {-32*kt}")
        a("s_cselect_b32 s40, 0x3f803f80, 0")
        a("s_mov_b32 s41, s40")
        for r in range(0, 8, 2):
            a(f"v_pk_mov_b32 {v(VF+8*kt+r,2)}, s[40:41], s[40:41]")
    a("s_mov_b64 exec, -1")
    a(f"s_lshl_b32 s40, s{S_W}, 11")
    a(f"s_add_u32 s40, s40, {BQ}")
    a("v_add_u32 v4, s40, v15")
    a("v_and_b32 v5, 0x13, v1")
    a("v_bfe_u32 v7, v1, 2, 1")
    a("v_lshl_or_b32 v5, v7, 3, v5")
    a("v_bfe_u32 v7, v1, 3, 1")
    a("v_lshl_or_b32 v5, v7, 2, v5")
    a("v_lshl_add_u32 v7, v5, 5, v3")
    a("v_add_u32 v7, s40, v7")
    a("v_and_b32 v12, 15, v1")
    a("v_lshl_add_u32 v12, v2, 4, v12")
    a("v_lshlrev_b32 v12, 4, v12")
    a("v_lshrrev_b32 v13, 4, v1")
    a("v_lshl_add_u32 v12, v13, 10, v12")
    a("s_and_b32 s40, s42, 1")
    a("s_lshl_b32 s40, s40, 9")
    a("v_add_u32 v12, s40, v12")
    a("s_lshr_b32 s46, s42, 1")
    a("s_lshl_b32 s46, s46, 17")
    a("s_lshl_b32 s40, s43, 12")
    a("s_add_u32 s46, s46, s40")
    if timing:
        MSL = [4, 6, 8, 10, 12, 14, 16, 18, 60, 62, 64, 66, 24, 40, 0, 20]
    else:
        MSL = [60 + 2 * r for r in range(16)]
    for r in range(16):
        a(f"v_cmp_le_i32 {s(MSL[r],2)}, {(r&7)+16*(r>>3)}, v8")
    a("v_mov_b32 v9, 0xffff")
    a("v_mov_b32 v10, 0xffff0000")
    for p in range(8):
        a(f"v_cndmask_b32 {v(MK+p)}, 0, v9, {s(MSL[2*p],2)}")
        a(f"v_cndmask_b32 v11, 0, v10, {s(MSL[2*p+1],2)}")
        a(f"v_or_b32 {v(MK+p)}, {v(MK+p)}, v11")
    a("s_waitcnt vmcnt(0)")
    a("s_mov_b64 exec, 0xff")
    a(f"buffer_store_dwordx4 v[252:255], v15, {s(SY,4)}, s31 offen sc1")
    a("s_mov_b64 exec, -1")
    a(f"s_lshl_b32 s3, s{S_W}, 2")
    a("v_mov_b32 v14, s3")
    a(f"ds_write_b32 v14, v252 offset:{ST_SY + 16}")
    ts("c")
    lds_spin("msync", ST_SY, 14, 13, sleep=1)
    ts("c")
    vm = Counter(a, "vmcnt", 60)
    lg = Counter(a, "lgkmcnt", 12)
    for t in range(2):
        lg.issue(f"ds_read_b128 {v(QF+4*t,4)}, v4 offset:{32768 + 1024*t}", ("q", t))
    for kt in range(10):
        lg.issue(f"ds_read_b128 {v(KF+4*kt,4)}, v4 offset:{1024*kt}", ("k", kt))
    a("s_mov_b32 exec_lo, 0xffff")
    a("s_mov_b32 exec_hi, 0xffff")
    for kt in range(10):
        lg.wait(("k", kt))
        for hh in range(2):
            lg.issue(f"ds_read_b128 {v(VF+8*kt+4*hh,4)}, v7 offset:{16384 + 1024*kt + 512*hh}", ("v", kt))
    a("s_mov_b64 exec, -1")
    def M(dst, kt, t, c):
        lg.wait(("k", kt), ("q", t))
        a(f"v_mfma_f32_32x32x16_bf16 {v(dst,16)}, {v(KF+4*kt,4)}, {v(QF+4*t,4)}, {c}")
    for t in range(2):
        far, diag = t, t + 8
        full = list(range(t + 1, t + 8))
        MX = 14
        M(O, far, t, "0")
        if t == 0: ts("c", lg)
        M(S[0], full[0], t, "0")
        M(S[1], full[1], t, "0")
        a("s_nop 7")
        def mx(src, first=False):
            for q in range(0, 16, 4):
                if first and q == 0:
                    a(f"v_max_f32 {v(MX)}, {v(src)}, {v(src+1)}")
                    a(f"v_max_f32 {v(MX+1)}, {v(src+2)}, {v(src+3)}")
                else:
                    a(f"v_max3_f32 {v(MX)}, {v(src+q)}, {v(src+q+1)}, {v(MX)}")
                    a(f"v_max3_f32 {v(MX+1)}, {v(src+q+2)}, {v(src+q+3)}, {v(MX+1)}")
        for n in range(7):
            if n + 2 < 7:
                M(S[(n + 2) % 3], full[n + 2], t, "0")
            elif n + 2 == 7:
                M(NM, diag, t, "0")
            if n == 0:
                a("s_nop 1")
            mx(S[n % 3], first=(n == 0))
        for r in range(16):
            a(f"v_cndmask_b32 {v(O+r)}, {v(O+r)}, {v(NM+r)}, {s(MSL[r],2)}")
        mx(O)
        a(f"v_max_f32 {v(MX)}, {v(MX)}, {v(MX+1)}")
        a(f"v_mov_b32 {v(MX+1)}, {v(MX)}")
        a("s_nop 1")
        a(f"v_permlane32_swap_b32 {v(MX)}, {v(MX+1)}")
        a("s_nop 1")
        a(f"v_max_f32 {v(MX)}, {v(MX)}, {v(MX+1)}")
        a(f"v_sub_f32 {v(MX)}, 0, {v(MX)}")
        for r in range(0, 16, 2):
            a(f"v_pk_mov_b32 {v(NM+r,2)}, {v(MX,2)}, {v(MX,2)} op_sel:[0,0]")
        a("s_nop 1")
        if t == 0:
            lg.wait_all(force=False)
            a(f"s_lshl_b32 s3, s{S_W}, 2")
            a("v_mov_b32 v13, s3")
            lg.issue(f"ds_write_b32 v13, v252 offset:{ST_SY + 32}")
        M(S[0], full[0], t, v(NM, 16))
        M(S[2], far, t, v(NM, 16))
        a("s_nop 9")
        first_pv = [True]
        def PV(kt, hh, preg):
            lg.wait(("v", kt))
            c = "0" if first_pv[0] else v(O, 16)
            first_pv[0] = False
            a(f"v_mfma_f32_32x32x16_bf16 {v(O,16)}, {v(VF+8*kt+4*hh,4)}, {v(preg+4*hh,4)}, {c}")
        for n in range(8):
            cur = S[n % 2]
            nxt = S[(n + 1) % 2]
            if n + 1 < 7:
                M(nxt, full[n + 1], t, v(NM, 16))
            elif n + 1 == 7:
                M(nxt, diag, t, v(NM, 16))
            if n == 7:
                for r in range(16):
                    a(f"v_cndmask_b32 {v(cur+r)}, {v(S[2]+r)}, {v(cur+r)}, {s(MSL[r],2)}")
            for r in range(16):
                a(f"v_exp_f32 {v(cur+r)}, {v(cur+r)}")
                if n > 0 and r == 5: PV(full[n - 1], 0, P)
                if n > 0 and r == 11: PV(full[n - 1], 1, P)
            for p in range(8):
                a(f"v_cvt_pk_bf16_f32 {v(P+p)}, {v(cur+2*p)}, {v(cur+2*p+1)}")
        for p in range(8):
            a(f"v_bfi_b32 {v(P+8+p)}, {v(MK+p)}, 0, {v(P+p)}")
            a(f"v_and_b32 {v(P+p)}, {v(MK+p)}, {v(P+p)}")
        a("s_nop 1")
        PV(diag, 0, P); PV(diag, 1, P); PV(far, 0, P + 8); PV(far, 1, P + 8)
        a("s_nop 11")
        a(f"v_rcp_f32 v14, {v(O+8)}")
        a("s_nop 0")
        for r in range(8):
            a(f"v_mul_f32 {v(O+r)}, v14, {v(O+r)}")
        for p in range(4):
            a(f"v_cvt_pk_bf16_f32 {v(248+4*t+p)}, {v(O+2*p)}, {v(O+2*p+1)}")
        vm.issue(f"buffer_store_dwordx4 {v(248+4*t,4)}, v12, s[56:59], s46 offen offset:{2048*t} {LP}")
    ts("c")
    a("s_lshl_b32 s40, s43, 5")
    a("s_add_u32 s40, s40, s42")
    a("s_lshl_b32 s40, s40, 7")
    a(f"s_add_u32 s40, s40, {SY_OF}")
    a("v_lshlrev_b32 v3, 4, v0")
    for r in range(4):
        a(f"v_mov_b32 {v(4+r)}, s{S_TAG}")
    a("s_mov_b64 exec, 0xff")
    a("s_waitcnt vmcnt(0)")
    a(f"buffer_store_dwordx4 v[4:7], v3, {s(SY,4)}, s40 offen {LP}")
    a("s_mov_b64 exec, -1")
    a(f"s_or_b32 s3, s2, s{S_W}")
    a("s_cmp_lg_u32 s3, 0")
    a(f"s_cbranch_scc1 {L('noep')}")
    a("v_lshlrev_b32 v8, 9, v0")
    a(f"v_add_u32 v8, {SY_F}, v8")
    for q in range(4):
        poll(f"pe{q}", 8, 9)
        a("v_add_u32 v8, 0x8000, v8")
    a(f"s_add_u32 s3, s{S_EP}, 1")
    a("v_mov_b32 v9, s3")
    a("v_mov_b32 v8, 0")
    a("s_mov_b64 exec, 1")
    a(f"buffer_store_dword v9, v8, {s(SY,4)}, 0 offen sc1")
    a.label(L("noep"))
    ts_dump("c")
    a(f"s_branch {L('end')}")

    a.label(L("loader"))
    LW = 31
    a(f"s_sub_u32 s{LW}, s{S_W}, 4")
    a("s_setprio 3")
    a("v_lshrrev_b32 v1, 3, v0")
    a("v_and_b32 v2, 7, v0")
    a(f"s_lshl_b32 s54, s{S_RB}, 7")
    a(f"s_lshl_b32 s55, s{LW}, 5")
    a("s_add_u32 s54, s54, s55")
    a("v_lshrrev_b32 v4, 4, v0")
    a("v_xor_b32 v4, v4, v2")
    a("v_add_u32 v3, s54, v1")
    a("v_lshlrev_b32 v3, 10, v3")
    a("v_lshl_add_u32 v10, v4, 4, v3")
    a("v_xor_b32 v11, 64, v10")
    a("v_add_u32 v11, 0x2000, v11")
    a("v_add_u32 v12, 0x4000, v10")
    a("v_add_u32 v13, 0x4000, v11")
    a(f"s_lshl_b32 s56, s{LW}, 12")
    a(f"s_add_u32 s56, s56, {SB}")
    a(f"s_mul_i32 s57, s{LW}, 9216")
    a(f"s_add_u32 s57, s57, {SB+WOFF}")
    a(f"s_cmp_lt_u32 s{S_C}, 10")
    a(f"s_cbranch_scc1 {L('lF')}")
    CA = [112, 117, 122]
    CS = 44
    CF = 64
    G_ACC, XR = 192, 24
    NH, NO = 11, 4
    NT = NH + NO
    BUFORD = [2, 0]
    def slot_off(k):
        sl = k % 6
        return BUFORD[sl // 3], (sl % 3) * 4096
    def w2_list(k):
        b, o = slot_off(k)
        out = []
        for q in range(4):
            kk, sr = (k, 40) if k < NH else (k - NH, 44)
            if ROT and k < NH:
                pre = ""
                if q == 0:
                    pre = (f"s_add_u32 s66, s67, {kk}\ns_cmp_ge_u32 s66, 11\ns_cselect_b32 s58, 11, 0\ns_sub_u32 s66, s66, s58\n"
                           f"s_lshl_b32 s66, s66, 17\ns_add_u32 s66, s66, s57\n")
                out.append((pre + f"s_add_u32 m0, s56, {b*STG + o + q*1024}",
                            f"s_add_u32 s58, s66, {(16*(q&1) + 4*(q>>1))*1024}",
                            f"buffer_load_dwordx4 v2, {s(sr,4)}, s58 offen lds", ("w", k)))
                continue
            out.append((f"s_add_u32 m0, s56, {b*STG + o + q*1024}",
                        f"s_add_u32 s58, s57, {kk*4*32768 + (16*(q&1) + 4*(q>>1))*1024}",
                        f"buffer_load_dwordx4 v2, {s(sr,4)}, s58 offen lds", ("w", k)))
        return out
    def p2_setup():
        srd(a, 40, S_WD, 1376 * 1024)
        srd(a, 44, S_WO, 512 * 1024)
        a("v_lshrrev_b32 v3, 3, v0")
        a("v_and_b32 v4, 7, v0")
        a("v_and_b32 v5, 6, v3")
        a("v_xor_b32 v4, v4, v5")
        a("v_lshlrev_b32 v4, 4, v4")
        a("v_and_b32 v5, 4, v3")
        a("v_add_u32 v3, v3, v5")
        a("v_lshl_add_u32 v4, v3, 10, v4")
        a(f"s_lshl_b32 s3, s{S_J}, 7")
        a("v_add_u32 v2, s3, v4")
        a(f"s_mul_i32 s56, s{LW}, 12288")
        a(f"s_add_u32 s56, s56, {SB}")
        a(f"s_lshl_b32 s57, s{LW}, 15")
        a(f"s_lshl_b32 s59, s{LW}, 17")
        if ROT:
            a(f"s_and_b32 s67, s{S_TB}, 3")
            a(f"s_mul_i32 s67, s67, {ROT[1]}")
            a(f"s_mul_i32 s66, s{S_J}, {ROT[0]}")
            a("s_add_u32 s67, s67, s66")
            for _ in range(4):
                a("s_cmp_ge_u32 s67, 11")
                a("s_cselect_b32 s66, 11, 0")
                a("s_sub_u32 s67, s67, s66")
    ts0 = TS.get("l", 0)
    for ty in ("Q", "F"):
        TS["l"] = ts0
        if ty == "F": a.label(L("lF"))
        stride = 2752 if ty == "F" else 3072
        vm = Counter(a, "vmcnt", 60)
        lg = Counter(a, "lgkmcnt", 12)
        a(f"s_movk_i32 s63, {stride}")
        if ty == "F":
            a(f"s_and_b32 s54, s{LW}, 1")
            a("s_lshl_b32 s54, s54, 5")
            a(f"s_mul_i32 s55, s{S_C}, 288")
            a("s_movk_i32 s64, 3641")
        else:
            a(f"s_lshr_b32 s54, s{LW}, 1")
            a("s_lshl_b32 s54, s54, 5")
            a(f"s_and_b32 s55, s{LW}, 1")
            a("s_lshl_b32 s55, s55, 2")
            a("s_add_u32 s54, s54, s55")
            a(f"s_sub_u32 s55, s{S_C}, 10")
            a("s_lshl_b32 s55, s55, 9")
            a("s_movk_i32 s64, 1928")
            a("v_mov_b32 v9, 0x7fff0000")
        a("s_waitcnt lgkmcnt(0)")
        srd(a, 36, S_X, 2048 * 1024)
        if ty == "F":
            a(f"s_cmp_lt_u32 s{LW}, 2")
            a(f"s_cselect_b32 s40, s{S_WG}, s{S_WU}")
            a(f"s_cselect_b32 s41, s{S_WG+1}, s{S_WU+1}")
            a(f"s_mov_b32 s42, {hex(512*2752)}")
            a("s_mov_b32 s43, 0x00020000")
        else:
            srd(a, 40, S_WQKV, 512 * 3072)
        def dma_list(stage):
            buf = stage % 3
            out = []
            for i in range(4):
                out.append((f"s_add_u32 m0, s56, {buf*STG + i*1024}", f"s_movk_i32 s58, {stage*128}",
                            f"buffer_load_dwordx4 {v(10+i)}, s[36:39], s58 offen lds", ("st", stage)))
            for b in range(9):
                out.append((f"s_add_u32 m0, s57, {buf*STG + b*1024}", f"s_mov_b32 s58, {stage*64*stride}",
                            f"buffer_load_dwordx4 {v(14+b)}, s[40:43], s58 offen lds", ("st", stage)))
            return out
        def run(lst):
            for m, so, ld, tg in lst:
                a(m); a(so); vm.issue(ld, tg)
        run(dma_list(0)[:4])
        for b in range(9):
            a(f"v_add_u32 v3, {64*b}, v0")
            a("v_mul_u32_u24 v4, s64, v3")
            a("v_lshrrev_b32 v4, 16, v4")
            a(f"v_mul_u32_u24 v5, {18 if ty == 'F' else 34}, v4")
            a("v_sub_u32 v5, v3, v5")
            a("v_and_b32 v6, 3, v4")
            a("v_bfe_u32 v7, v4, 2, 2")
            a("v_lshl_add_u32 v6, v7, 3, v6")
            if ty == "F":
                a("v_lshrrev_b32 v7, 4, v4")
                a("v_lshl_add_u32 v6, v7, 2, v6")
            a("v_add_u32 v6, s54, v6")
            a("v_mul_u32_u24 v6, s63, v6")
            a("v_lshl_add_u32 v6, v5, 4, v6")
            if ty == "F":
                a(f"v_add_u32 {v(14+b)}, s55, v6")
            else:
                a("v_cmp_gt_u32 vcc, 32, v5")
                a("v_add_u32 v6, s55, v6")
                a("v_cmp_gt_u32 s[60:61], 16, v4")
                a(f"v_cndmask_b32 v6, v9, v6, vcc")
                a("s_nop 0")
                a(f"v_cndmask_b32 {v(14+b)}, v9, v6, s[60:61]")
            run(dma_list(0)[4+b:5+b])
        run(dma_list(1)[:6])
        srd(a, SY, S_WS, SY_SIZE, WS_SY)
        a(f"s_load_dword s{S_EP}, s[{SY}:{SY+1}], {SY_EPOCH}")
        NC = 5 if ty == "F" else 4
        a("v_lshrrev_b32 v4, 2, v0")
        a(f"v_mul_u32_u24 v4, {288 if ty == 'F' else 544}, v4")
        a("v_and_b32 v5, 3, v0")
        a("v_lshl_add_u32 v4, v5, 3, v4")
        a(f"v_add_u32 v4, {SB+WOFF}, v4")
        for i in range(NC):
            T = 61 + i
            if i < 4:
                a(f"s_add_u32 s{T}, s{LW}, {4*i}")
            else:
                a(f"s_and_b32 s{T}, s{LW}, 1")
                a(f"s_add_u32 s{T}, s{T}, 16")
            a(f"s_lshl_b32 s54, s{T}, 5")
            if ty == "F":
                a(f"s_cmp_ge_u32 s{T}, 9")
                a(f"s_cselect_b32 s55, {18432 - 288}, 0")
                a("s_add_u32 s54, s54, s55")
            a(f"v_add_u32 {v(CA[0]+i)}, s54, v4")
            a(f"v_add_u32 {v(CA[1]+i)}, {STG}, {v(CA[0]+i)}")
            a(f"v_add_u32 {v(CA[2]+i)}, {2*STG}, {v(CA[0]+i)}")
        for r in range(4):
            a(f"v_mov_b32 {v(28+r)}, 0x3f803f80")
        a(f"s_lshl_b32 s54, s{S_RB}, 13")
        a(f"s_lshl_b32 s55, s{LW}, 11")
        a("s_add_u32 s54, s54, s55")
        a(f"s_add_u32 s54, s54, {SY_ROW}")
        a("v_and_b32 v27, 15, v0")
        a("v_lshlrev_b32 v26, 7, v27")
        a("v_add_u32 v26, s54, v26")
        a(f"s_lshl_b32 s3, s{LW}, 7")
        a("v_lshl_add_u32 v27, v27, 3, s3")
        a("s_waitcnt lgkmcnt(0)")
        mktag()
        def colsum(stage, filler):
            buf = stage % 3
            for ks in range(2):
                for i in range(NC):
                    for hf in range(2):
                        off = (ks * 9216 + hf * 4608) if ty == "F" else (2 * ks + hf) * 9216
                        lg.issue(f"ds_read_b64_tr_b16 {v(CF+20*ks+4*i+2*hf,2)}, {v(CA[buf]+i)} offset:{off}", ("c", ks, i))
                run(filler[:2]); filler = filler[2:]
                for i in range(NC):
                    lg.wait(("c", ks, i))
                    acc = v(CS + 4 * i, 4)
                    a(f"v_mfma_f32_16x16x32_bf16 {acc}, {v(CF+20*ks+4*i,4)}, v[28:31], {'0' if stage == 0 and ks == 0 else acc}")
            run(filler)
        ts("l")
        vm.wait(("st", 0))
        a("s_barrier")
        ts("l")
        run(dma_list(1)[6:])
        colsum(0, dma_list(2))
        vm.wait(("st", 1))
        a("s_barrier")
        colsum(1, dma_list(3))
        vm.wait(("st", 2))
        a("s_barrier")
        vm.issue(f"buffer_load_dwordx4 v[104:107], v26, {s(SY,4)}, 0 offen sc1", "gat")
        colsum(2, dma_list(4))
        vm.wait(("st", 3))
        a("s_barrier")
        colsum(3, dma_list(5))
        vm.wait(("st", 4), "gat")
        a(f"v_cmp_eq_u32 vcc, s{S_TAG}, v106")
        a("s_nop 3")
        a("s_cmp_eq_u64 vcc, -1")
        a(f"s_cbranch_scc1 {L('valok' + ty)}")
        poll("pr" + ty, 26, 104, width=4, tagreg=2)
        a.label(L("valok" + ty))
        a("s_barrier")
        colsum(4, dma_list(6))
        for k in range(2):
            a(f"v_lshlrev_b32 {v(108+k)}, 16, {v(104+k)}")
            a(f"v_xor_b32 {v(108+k)}, 0x80000000, {v(108+k)}")
            a(f"v_and_b32 {v(110+k)}, 0xffff0000, {v(104+k)}")
            a(f"v_rcp_f32 {v(110+k)}, {v(110+k)}")
        a("s_nop 0")
        lg.issue(f"ds_write_b64 v27, v[108:109] offset:{ST_M}")
        lg.issue(f"ds_write_b64 v27, v[110:111] offset:{ST_RS}")
        vm.wait(("st", 5))
        a("s_barrier")
        colsum(5, dma_list(7))
        p2_setup()
        lg.wait_all()
        vm.wait(("st", 6))
        a("s_barrier")
        colsum(6, (w2_list(0) + w2_list(1) + w2_list(2)) if (ty == "F" or QD < 2) else [])
        vm.wait(("st", 7))
        a("s_barrier")
        colsum(7, [])
        a("v_lshrrev_b32 v3, 4, v0")
        a("v_lshlrev_b32 v6, 4, v3")
        a("s_nop 5")
        for i in range(NC):
            a(f"s_lshl_b32 s3, s{61+i}, 6")
            a("v_add_u32 v7, s3, v6")
            lg.issue(f"ds_write_b128 v7, {v(CS+4*i,4)} offset:{ST_CS}")
        if ty == "F" or QD < 1:
            run(w2_list(3) + w2_list(4) + w2_list(5))
        if ty == "Q":
            a(f"s_branch {L('ldone')}")
    a.label(L("ldone"))
    vm = Counter(a, "vmcnt", 60)
    lg = Counter(a, "lgkmcnt", 12)
    def dma_w(k):
        for m, so, ld, tg in w2_list(k):
            a(m); a(so); vm.issue(ld, tg)
    BREG = {}
    WREG = {k: 32 + 16 * k for k in range(6)}
    POOL = [128, 144, 160, 176]
    def load_b(k):
        kk, sr = (k, 48) if k < NH else (k - NH, 52)
        BREG[k] = POOL.pop(0)
        if ROT:
            a(f"s_add_u32 s60, s67, {kk}")
            a("s_cmp_ge_u32 s60, 11")
            a("s_cselect_b32 s58, 11, 0")
            a("s_sub_u32 s60, s60, s58")
            a("s_lshl_b32 s60, s60, 19")
            a("s_add_u32 s60, s60, s59")
        else:
            a(f"s_add_u32 s60, s59, {kk*4*131072}")
        for i in range(4):
            vm.issue(f"buffer_load_dwordx4 {v(BREG[k]+4*i,4)}, v1, {s(sr,4)}, s60 offen offset:{1024*i} sc1", ("b", k))
    def rd_w2(k):
        b, o = slot_off(k)
        if k not in WREG:
            WREG[k] = POOL.pop(0)
        for u in range(4):
            for hf in range(2):
                lg.issue(f"ds_read_b64_tr_b16 {v(WREG[k]+4*u+2*hf,2)}, {v(10+4*b+u)} offset:{o + hf*2048}", ("w", k, u))
    for k in range(6): vm.tag[("w", k)] = 0
    assert EW == 0
    a("v_lshrrev_b32 v3, 4, v0")
    a("v_lshrrev_b32 v5, 2, v0")
    a("v_bfe_u32 v6, v5, 1, 2")
    a("v_and_b32 v7, 3, v0")
    a("v_lshlrev_b32 v7, 3, v7")
    a("v_lshl_add_u32 v7, v5, 7, v7")
    a("v_add_u32 v7, s56, v7")
    for u in range(4):
        a(f"v_xor_b32 v8, {u}, v6")
        a(f"v_lshl_add_u32 {v(10+u)}, v8, 5, v7")
        a(f"v_add_u32 {v(18+u)}, {2*STG}, {v(10+u)}")
    a("s_waitcnt lgkmcnt(0)")
    if EW:
        a("s_waitcnt vmcnt(12)")
        for k in range(3):
            if k >= 1:
                lg.wait(("w", k - 1, 1))
            rd_w2(k)
    a("s_barrier")
    if LP0: a("s_setprio 0")
    ts("l", lg)
    if QD:
        a(f"s_cmp_lt_u32 s{S_C}, 10")
        a(f"s_cbranch_scc1 {L('nqd')}")
        lds_spin("qd", ST_SY + 16, 4, 5, sleep=2)
        for k in range(0 if QD == 2 else 3, 6 - QD3): dma_w(k)
        a.label(L("nqd"))
    if EW:
        lg.wait_all()
        for k in range(6, 9): dma_w(k)
        for k in range(3, 6):
            vm.wait(("w", k))
            if k > 3: lg.wait(("w", k - 1, 1))
            rd_w2(k)
        lg.wait_all()
        for k in range(9, 6 + EW): dma_w(k)
    srd(a, 48, S_WS, 6 << 20, WS_QK)
    a(f"s_lshl_b32 s0, s{S_AB}, 8")
    a(f"s_lshl_b32 s1, s{LW}, 7")
    a("s_add_u32 s1, s1, s0")
    a("s_sub_u32 s1, s1, 256")
    a("v_and_b32 v128, 31, v0")
    a("v_lshrrev_b32 v129, 5, v0")
    a("v_lshlrev_b32 v129, 4, v129")
    a("v_and_b32 v130, 0x13, v128")
    a("v_bfe_u32 v131, v128, 2, 1")
    a("v_lshl_or_b32 v130, v131, 3, v130")
    a("v_bfe_u32 v131, v128, 3, 1")
    a("v_lshl_or_b32 v130, v131, 2, v130")
    a("v_add_u32 v130, s1, v130")
    for n in range(4):
        a(f"v_add_u32 {v(132+n)}, {32*n}, v130")
        a(f"v_max_i32 {v(132+n)}, 0, {v(132+n)}")
        a(f"v_lshl_add_u32 {v(132+n)}, {v(132+n)}, 5, v129")
    a(f"s_lshl_b32 s3, s{LW}, 6")
    a("s_add_u32 s3, s3, s0")
    a("v_add_u32 v136, s3, v128")
    a("v_lshl_add_u32 v136, v136, 5, v129")
    a("v_lshlrev_b32 v137, 4, v0")
    a(f"s_lshr_b32 s5, s{S_HD}, 3")
    a("s_lshl_b32 s5, s5, 8")
    a(f"s_add_u32 s5, s5, {SY_F + 10*512}")
    a(f"s_lshl_b32 s3, s{S_AB}, 1")
    a(f"s_add_u32 s4, s3, s{LW}")
    a("s_sub_u32 s4, s4, 2")
    a("s_max_i32 s4, s4, 0")
    a("s_lshl_b32 s4, s4, 13")
    a("s_add_u32 s6, s4, s5")
    a("s_add_u32 s6, s6, 1024")
    a(f"s_lshr_b32 s4, s{LW}, 1")
    a("s_add_u32 s4, s4, s3")
    a("s_lshl_b32 s4, s4, 13")
    a("s_add_u32 s4, s4, s5")
    a(f"s_and_b32 s5, s{LW}, 1")
    a("s_lshl_b32 s5, s5, 7")
    a("s_add_u32 s4, s4, s5")
    a("v_and_b32 v138, 1, v0")
    a("v_lshlrev_b32 v138, 7, v138")
    a("v_bfe_u32 v139, v0, 1, 1")
    a("v_lshl_add_u32 v138, v139, 10, v138")
    a("v_add_u32 v138, s6, v138")
    a("v_mov_b32 v139, s4")
    a("v_and_b32 v140, 4, v0")
    a("v_cmp_eq_u32 vcc, 0, v140")
    a("s_nop 1")
    a("v_cndmask_b32 v138, v139, v138, vcc")
    a(f"s_lshl_b32 s4, s{S_HD}, 16")
    a("s_add_u32 s5, s4, 0x200000")
    a("s_lshl_b32 s6, s1, 5")
    a("s_add_u32 s6, s6, s4")
    a("s_add_u32 s6, s6, 0x400000")
    a("s_cmp_ge_i32 s1, 0")
    a("s_cselect_b32 s6, s6, 0x7fff0000")
    a(f"s_lshl_b32 s7, s{LW}, 12")
    a(f"s_add_u32 s7, s7, {BQ}")
    a(f"s_lshl_b32 s0, s{LW}, 11")
    a(f"s_add_u32 s0, s0, {BQ + 32768}")
    poll("pq", 138, 4, sleep=QSL)
    vm.done = vm.n
    ts("l")
    a("s_mov_b32 m0, s0")
    a("s_nop 0")
    for n in range(2):
        a(f"buffer_load_dwordx4 v136, s[48:51], s4 offen offset:{1024*n} sc1 lds")
    for n in range(4):
        a(f"s_add_u32 m0, s7, {1024*n}")
        a("s_nop 0")
        a(f"buffer_load_dwordx4 {v(132+n)}, s[48:51], s5 offen sc1 lds")
    a("s_add_u32 m0, s7, 16384")
    a("s_nop 0")
    for n in range(4):
        a(f"buffer_load_dwordx4 v137, s[48:51], s6 offen offset:{1024*n} sc1 lds")
    if not EW:
        for k in range(6):
            if k >= 1:
                lg.wait(("w", k - 1, 1))
            rd_w2(k)
    a(f"s_lshl_b32 s3, s{LW}, 2")
    a("v_mov_b32 v4, s3")
    a(f"v_mov_b32 v5, s{S_TAG}")
    a("s_waitcnt vmcnt(0)")
    a(f"ds_write_b32 v4, v5 offset:{ST_SY}")
    ts("l", lg)
    srd(a, 48, S_WS, NSLAB_H * 131072, WS_H)
    srd(a, 52, S_WS, 16 * 131072, WS_O)
    a(f"s_lshl_b32 s3, s{S_TB}, 12")
    a("v_lshl_add_u32 v1, v0, 4, s3")
    a("v_and_b32 v8, 15, v0")
    a("v_lshlrev_b32 v9, 10, v8")
    a(f"s_lshl_b32 s3, s{S_TB}, 16")
    a(f"s_lshl_b32 s61, s{LW}, 14")
    a("s_add_u32 s3, s3, s61")
    a(f"s_lshl_b32 s61, s{S_J}, 7")
    a("s_add_u32 s3, s3, s61")
    a("v_add_u32 v9, s3, v9")
    a("v_and_b32 v4, 1, v3")
    a("v_lshl_add_u32 v8, v4, 5, v9")
    a("v_lshrrev_b32 v4, 1, v3")
    a("v_lshl_add_u32 v8, v4, 4, v8")
    a("v_lshl_add_u32 v9, v3, 3, v9")
    a("v_lshrrev_b32 v4, 1, v0")
    a("v_min_u32 v4, 9, v4")
    a("v_lshlrev_b32 v4, 9, v4")
    a("v_and_b32 v5, 1, v0")
    a("v_lshl_add_u32 v4, v5, 8, v4")
    a(f"s_lshr_b32 s3, s{S_TB}, 1")
    a("s_lshl_b32 s3, s3, 13")
    a(f"s_and_b32 s61, s{S_TB}, 1")
    a("s_lshl_b32 s61, s61, 7")
    a("s_add_u32 s3, s3, s61")
    a(f"s_add_u32 s3, s3, {SY_F}")
    a("v_add_u32 v22, s3, v4")
    a("v_and_b32 v4, 31, v0")
    a("v_lshlrev_b32 v4, 7, v4")
    a(f"s_lshl_b32 s3, s{S_TB}, 12")
    a(f"s_add_u32 s3, s3, {SY_OF}")
    a("v_add_u32 v23, s3, v4")
    a("s_setprio 0")
    lds_spin("lsync0", ST_SY, 4, 5, sleep=2)
    lds_spin("lsync", ST_SY + 16, 4, 5, sleep=2)
    lg.done = lg.n
    for k in range(6 + EW, 6 + max(RF, EW)): dma_w(k)
    ts("l", lg)
    poll("ph", 22, 4, sleep=HSL)
    vm.done = vm.n
    ts("l", lg)
    nb = [0]
    def more_b(limit, reserve):
        while nb[0] < limit and len(POOL) > reserve:
            load_b(nb[0]); nb[0] += 1
    more_b(NH, 0)
    RQ = list(range(6 + max(RF, EW), 12))
    for _ in range(RF2):
        if RQ: dma_w(RQ.pop(0))
    def mm(k):
        for u in range(4):
            lg.wait(("w", k, u))
            for i in range(4):
                acc = v(G_ACC + 4 * (4 * u + i), 4)
                a(f"v_mfma_f32_16x16x32_bf16 {acc}, {v(WREG[k]+4*u,4)}, {v(BREG[k]+4*i,4)}, {'0' if k == 0 else acc}")
        POOL.append(BREG[k]); POOL.append(WREG[k])
    for k in range(NH):
        if k + 1 >= 6 and k + 1 < NH:
            vm.wait(("w", k + 1))
            rd_w2(k + 1)
        vm.wait(("b", k))
        mm(k)
        more_b(NH, 1 if k >= 3 else 0)
        if RQ: dma_w(RQ.pop(0))
        if k == 5:
            for u in range(4):
                vm.issue(f"buffer_load_dwordx2 {v(XR+2*u,2)}, v9, s[36:39], 0 offen offset:{32*u}", "x")
        if k in (6, 7, 8):
            dma_w(k + 6)
    lds_spin("msr", ST_SY + 32, 4, 5)
    lg.done = lg.n
    a("v_lshlrev_b32 v4, 4, v0")
    for i in range(4):
        a(f"s_sub_u32 s3, s{LW}, {i + 1}")
        a("s_and_b32 s3, s3, 3")
        a("s_cmp_eq_u32 s3, 3")
        a(f"s_cbranch_scc1 {L('skw%d' % i)}")
        a(f"s_add_u32 s3, s3, {3*i}")
        a("s_lshl_b32 s3, s3, 12")
        a(f"s_add_u32 s3, s3, {BQ}")
        a("v_add_u32 v5, s3, v4")
        for u in range(4):
            a(f"ds_write_b128 v5, {v(G_ACC+4*(4*u+i),4)} offset:{u*1024}")
        a(f"s_branch {L('dnw%d' % i)}")
        a.label(L('skw%d' % i))
        for u in range(4):
            for r in (0, 2):
                a(f"v_pk_mov_b32 {v(32+4*u+r,2)}, {v(G_ACC+4*(4*u+i)+r,2)}, {v(G_ACC+4*(4*u+i)+r,2)} op_sel:[0,1]")
        a.label(L('dnw%d' % i))
    a(f"s_lshl_b32 s3, s{LW}, 2")
    a("v_mov_b32 v5, s3")
    a(f"v_mov_b32 v6, s{S_TAG}")
    a("s_waitcnt vmcnt(0) lgkmcnt(0)")
    a(f"ds_write_b32 v5, v6 offset:{ST_SY + 48}")
    for u in range(4):
        for d in range(2):
            a(f"v_lshlrev_b32 v6, 16, {v(XR+2*u+d)}")
            a(f"v_and_b32 v7, 0xffff0000, {v(XR+2*u+d)}")
            a(f"v_pk_add_f32 {v(32+4*u+2*d,2)}, {v(32+4*u+2*d,2)}, v[6:7]")
    a(f"s_mul_i32 s3, s{LW}, 12288")
    a(f"s_add_u32 s0, s3, {BQ}")
    a("v_add_u32 v14, s0, v4")
    for u in range(4):
        a(f"v_subrev_u32 {v(10+u)}, s3, {v(10+u)}")
        a(f"v_subrev_u32 {v(18+u)}, s3, {v(18+u)}")
    a(f"s_lshl_b32 s3, s{LW}, 10")
    a("v_add_u32 v1, s3, v1")
    srd(a, 40, S_OUT, 2048 * 1024)
    ts("l")
    poll("po", 23, 4, sleep=OSL)
    ts("l")
    lg = Counter(a, "lgkmcnt", 12)
    vm = Counter(a, "vmcnt", 60)
    for n in range(16):
        a(f"s_mov_b32 s60, {n*131072}")
        vm.issue(f"buffer_load_dwordx4 {v(128+4*n,4)}, v1, s[52:55], s60 offen sc1", ("o", n))
    lds_spin("lsr", ST_SY + 48, 5, 6)
    for sl in range(3):
        for u in range(4):
            lg.issue(f"ds_read_b128 {v(192+16*sl+4*u,4)}, v14 offset:{sl*4096 + u*1024}", ("p", sl))
    WBL = [48, 64, 80, 96, 112]
    NPRE = len(WBL)
    def rd_wo(n):
        b, o = slot_off(NH + (n >> 2))
        for u in range(4):
            for hf in range(2):
                lg.issue(f"ds_read_b64_tr_b16 {v(WBL[n % NPRE]+4*u+2*hf,2)}, {v(10+4*b+u)} offset:{(n&3)*12288 + o + hf*2048}", ("wo", n, u))
    for sl in range(3):
        lg.wait(("p", sl))
        for e in range(0, 16, 2):
            a(f"v_pk_add_f32 {v(32+e,2)}, {v(32+e,2)}, {v(192+16*sl+e,2)}")
        rd_wo(sl)
    for n in range(16):
        if n + 3 < 16:
            lg.wait(("wo", n + 2, 1))
            rd_wo(n + 3)
        vm.wait(("o", n))
        for u in range(4):
            lg.wait(("wo", n, u))
            a(f"v_mfma_f32_16x16x32_bf16 {v(32+4*u,4)}, {v(WBL[n % NPRE]+4*u,4)}, {v(128+4*n,4)}, {v(32+4*u,4)}")
    ts("l", lg)
    a("s_nop 7")
    for h2 in range(2):
        d = 32 + 8 * h2
        a(f"v_cvt_pk_bf16_f32 {v(d)}, {v(d)}, {v(d+1)}")
        a(f"v_cvt_pk_bf16_f32 {v(d+1)}, {v(d+2)}, {v(d+3)}")
        a(f"v_cvt_pk_bf16_f32 {v(d+2)}, {v(d+4)}, {v(d+5)}")
        a(f"v_cvt_pk_bf16_f32 {v(d+3)}, {v(d+6)}, {v(d+7)}")
        a("s_nop 0")
        a(f"v_permlane16_swap_b32 {v(d)}, {v(d+2)}")
        a(f"v_permlane16_swap_b32 {v(d+1)}, {v(d+3)}")
        a(f"buffer_store_dwordx4 {v(d,4)}, v8, s[40:43], 0 offen offset:{64*h2}")
    ts_dump("l")
    a.label(L("end"))
    a("s_endpgm")
```

```python
import sys
from asmlib import *
import k1, k2
import fused6 as fused
NAME = 'parallel_sum__sliding_block__glu_gated_reglu__prompt_kernel'
HEADER = open("parallel_sum__sliding_block__glu_gated_reglu__prompt.s.ref").read().split("; Override launch")[0]
def build(kernels, path):
    a = Asm()
    a.raw(HEADER.rstrip("\n"))
    for (name, body, grid, block, lds, vg, sg) in kernels:
        if name == NAME:
            a.raw(f"; @launch grid=({grid},1,1) block=({block},1,1) lds={lds}")
        else:
            a.raw(f"; @launch kernel={name} grid=({grid},1,1) block=({block},1,1) lds={lds}")
    a.raw('.amdgcn_target "amdgcn-amd-amdhsa--gfx950"')
    a.raw(".text")
    for (name, body, grid, block, lds, vg, sg) in kernels:
        kernel_begin(a, name)
        body(a, name)
    a.raw('.section .rodata,"a"')
    for (name, body, grid, block, lds, vg, sg) in kernels:
        descriptor(a, name, vg, sg)
    open(path, "w").write(a.text())
if __name__ == "__main__":
    for timing, fn in ((True, "fz_t.s"), (False, "fz.s")):
        build([(NAME, lambda a, n: fused.body(a, "fz", timing=timing, opt=("pfc",)), 256, 512, fused.LDS_BYTES, 256, 102)], fn)
    for nm, kw in (("a", dict(opt=("pfc",), EO=10)), ("b", dict(opt=("pfc",), EO=9))):
        build([(NAME, lambda a, n: fused.body(a, "fz", timing=True, **kw), 256, 512, fused.LDS_BYTES, 256, 102)], f"fz{nm}_t.s")
        build([(NAME, lambda a, n: fused.body(a, "fz", **kw), 256, 512, fused.LDS_BYTES, 256, 102)], f"fz{nm}.s")
```

```python
from asmlib import *

WS_QK = 0
WS_VT = 4 << 20
WS_H = 18 << 20
NSLAB_H = 43
WS_O = 26 << 20
WS_SY = 14 << 20
SY_EPOCH = 0
SY_ROW = 0x20000
SY_F = 0x40000
SY_OF = 0x80000
SY_SIZE = 0xA0000
WS_TIM = 16 << 20

STG = 53248
XB = 16384
IMG = 12288
ST_M = 0
ST_RS = 512
ST_CS = 1024
ST_SY = 2304
SB = 4096
LDS_BYTES = SB + 3 * STG

ACC = 96
WF = 56
XF = 24
SPIN = 300000

S_X, S_WQKV, S_WO, S_WG, S_WU, S_WD, S_OUT, S_DBG, S_WS = 4, 6, 8, 12, 14, 16, 18, 20, 22
S_RB, S_C, S_W, S_TB, S_J, S_TAG, S_EP = 24, 25, 26, 27, 28, 29, 30
SY = 32
KNAME = 'parallel_sum__sliding_block__glu_gated_reglu__prompt_kernel'
S_AB, S_HD = 10, 11
BQ = SB + STG
WOFF = XB

def bf16_round(a, r):
    a(f"v_cvt_pk_bf16_f32 {v(r)}, {v(r)}, {v(r)}")
    a(f"v_lshlrev_b32 {v(r)}, 16, {v(r)}")

def allreduce64x2(a, r0, r1, t0, t1):
    for c in ("quad_perm:[1,0,3,2]", "quad_perm:[2,3,0,1]", "row_half_mirror", "row_mirror"):
        a("s_nop 0")
        a(f"v_add_f32_dpp {v(r0)}, {v(r0)}, {v(r0)} {c} row_mask:0xf bank_mask:0xf")
        a(f"v_add_f32_dpp {v(r1)}, {v(r1)}, {v(r1)} {c} row_mask:0xf bank_mask:0xf")
    for sw in ("v_permlane16_swap_b32", "v_permlane32_swap_b32"):
        a(f"v_mov_b32 {v(t0)}, {v(r0)}")
        a(f"v_mov_b32 {v(t1)}, {v(r1)}")
        a("s_nop 0")
        a(f"{sw} {v(r0)}, {v(t0)}")
        a(f"{sw} {v(r1)}, {v(t1)}")
        a("s_nop 0")
        a(f"v_add_f32 {v(r0)}, {v(r0)}, {v(t0)}")
        a(f"v_add_f32 {v(r1)}, {v(r1)}, {v(t1)}")

def body(a, name, timing=False, opt=(), BA=1, QSL=2, HSL=2, LP0=1, PF1=-1, PF2=4, PFSK=2, RF=6, RF2=2, EW=0, QD=1, QD3=0, OSL=2, ROT=None, HALF=1, OP='', RDE=6, QS=65536, HS=131072):
    L = lambda x: f"{name}_{x}"
    TS = {}
    def ts(role, lg=None):
        if timing:
            i = TS.get(role, 0)
            assert i < 14
            a(f"s_memtime s[{68+2*i}:{69+2*i}]")
            a("s_waitcnt lgkmcnt(0)")
            if lg is not None: lg.done = lg.n
            TS[role] = i + 1
    def ts_dump(role):
        if timing:
            a("s_mov_b64 exec, -1")
            a("s_waitcnt vmcnt(0)")
            ts(role)
            a("s_memrealtime s[98:99]")
            a("s_waitcnt lgkmcnt(0)")
            srd(a, 36, S_WS, 1 << 20, WS_TIM)
            a("s_lshl_b32 s3, s2, 9")
            a(f"s_lshl_b32 s40, s{S_W}, 6")
            a("s_add_u32 s3, s3, s40")
            a("v_mov_b32 v3, s3")
            a("v_mov_b32 v4, s96")
            a("v_mov_b32 v5, s98")
            a("buffer_store_dwordx2 v[4:5], v3, s[36:39], 0 offen offset:56")
            for q in range(TS[role]):
                a("s_nop 1")
                a(f"s_sub_u32 s40, s{68+2*q}, s100")
                a("v_mov_b32 v4, s40")
                a(f"buffer_store_dword v4, v3, s[36:39], 0 offen offset:{4*q}")
    def poll(lbl, vaddr, vdst, width=1, tagreg=0, sleep=2):
        a(f"s_mov_b32 s3, {SPIN}")
        a.label(L(lbl))
        w = {1: "dword", 4: "dwordx4"}[width]
        a(f"buffer_load_{w} {v(vdst,width)}, {v(vaddr)}, {s(SY,4)}, 0 offen sc1")
        a("s_waitcnt vmcnt(0)")
        a(f"v_cmp_eq_u32 vcc, s{S_TAG}, {v(vdst+tagreg)}")
        a("s_sub_u32 s3, s3, 1")
        a("s_cmp_eq_u32 s3, 0")
        a(f"s_cbranch_scc1 {L(lbl+'_ok')}")
        a("s_cmp_eq_u64 vcc, -1")
        a(f"s_cbranch_scc1 {L(lbl+'_ok')}")
        a(f"s_sleep {sleep}")
        a(f"s_branch {L(lbl)}")
        a.label(L(lbl + "_ok"))
    def mktag():
        a(f"s_mul_i32 s{S_TAG}, s{S_EP}, 0x01010101")
        a(f"s_add_u32 s{S_TAG}, s{S_TAG}, 0x5A3C96E1")

    a("s_cmp_ge_u32 s2, 256")
    a(f"s_cbranch_scc1 {L('end')}")
    a("s_load_dwordx4 s[4:7], s[0:1], 0")
    a("s_load_dwordx4 s[12:15], s[0:1], 32")
    a("s_load_dwordx4 s[20:23], s[0:1], 64")
    a("s_load_dwordx2 s[8:9], s[0:1], 16")
    a("s_load_dwordx4 s[16:19], s[0:1], 48")
    if timing:
        a("s_memtime s[100:101]")
        a("s_memrealtime s[96:97]")
    a("s_and_b32 s3, s2, 7")
    a("s_lshr_b32 s31, s2, 3")
    if "mapA" in opt:
        a(f"s_and_b32 s{S_RB}, s3, 1")
        a(f"s_lshl_b32 s{S_RB}, s{S_RB}, 3")
        a("s_and_b32 s40, s31, 7")
        a(f"s_add_u32 s{S_RB}, s{S_RB}, s40")
        a(f"s_lshr_b32 s{S_C}, s3, 1")
        a("s_lshr_b32 s40, s31, 3")
        a("s_lshl_b32 s40, s40, 2")
        a(f"s_add_u32 s{S_C}, s{S_C}, s40")
    elif "mapB" in opt:
        a(f"s_and_b32 s{S_RB}, s3, 3")
        a(f"s_lshl_b32 s{S_RB}, s{S_RB}, 2")
        a("s_and_b32 s40, s31, 3")
        a(f"s_add_u32 s{S_RB}, s{S_RB}, s40")
        a(f"s_lshr_b32 s{S_C}, s3, 2")
        a("s_lshr_b32 s40, s31, 2")
        a("s_lshl_b32 s40, s40, 1")
        a(f"s_add_u32 s{S_C}, s{S_C}, s40")
    else:
        a(f"s_lshl_b32 s{S_RB}, s3, 1")
        a("s_and_b32 s40, s31, 1")
        a(f"s_add_u32 s{S_RB}, s{S_RB}, s40")
        a(f"s_lshr_b32 s{S_C}, s31, 1")
    a(f"s_lshl_b32 s{S_TB}, s3, 2")
    a("s_and_b32 s40, s31, 3")
    a(f"s_add_u32 s{S_TB}, s{S_TB}, s40")
    a(f"s_lshr_b32 s{S_J}, s31, 2")
    a(f"s_mov_b32 s{S_AB}, s3")
    a(f"s_mov_b32 s{S_HD}, s31")
    a("v_lshrrev_b32 v1, 6, v0")
    a("v_and_b32 v0, 63, v0")
    a("s_nop 0")
    a(f"v_readfirstlane_b32 s{S_W}, v1")
    a("s_nop 3")
    a(f"s_cmp_ge_u32 s{S_W}, 4")
    a(f"s_cbranch_scc1 {L('loader')}")
    def lds_spin(lbl, base, va, vd, sleep=0):
        a(f"v_and_b32 {v(va)}, 3, v0")
        a(f"v_lshlrev_b32 {v(va)}, 2, {v(va)}")
        a(f"s_mov_b32 s3, {SPIN * 20}")
        a.label(L(lbl))
        a(f"ds_read_b32 {v(vd)}, {v(va)} offset:{base}")
        a("s_waitcnt lgkmcnt(0)")
        a(f"v_cmp_eq_u32 vcc, s{S_TAG}, {v(vd)}")
        a("s_sub_u32 s3, s3, 1")
        a("s_cmp_eq_u32 s3, 0")
        a(f"s_cbranch_scc1 {L(lbl + '_ok')}")
        a("s_cmp_eq_u64 vcc, -1")
        a(f"s_cbranch_scc1 {L(lbl + '_ok')}")
        if sleep: a(f"s_sleep {sleep}")
        a(f"s_branch {L(lbl)}")
        a.label(L(lbl + "_ok"))

    a(f"s_lshl_b32 s40, s{S_RB}, 7")
    a(f"s_lshl_b32 s41, s{S_C}, 3")
    a("s_add_u32 s40, s40, s41")
    a(f"s_lshl_b32 s41, s{S_W}, 1")
    a("s_add_u32 s40, s40, s41")
    a("s_lshl_b32 s40, s40, 10")
    a("v_lshlrev_b32 v8, 4, v0")
    a("s_waitcnt lgkmcnt(0)")
    srd(a, 36, S_X, 2048 * 1024)
    a("buffer_load_dwordx4 v[44:47], v8, s[36:39], s40 offen")
    a("buffer_load_dwordx4 v[48:51], v8, s[36:39], s40 offen offset:1024")
    if "pfc" in opt:
        a(f"s_cmp_lg_u32 s{S_W}, 0")
        a(f"s_cbranch_scc1 {L('npc')}")
        a("s_getpc_b64 s[40:41]")
        a.label(L("pcb"))
        a(f"s_sub_u32 s40, s40, {L('pcb')}-{KNAME}")
        a("s_subb_u32 s41, s41, 0")
        a("v_min_u32 v1, 19, v0")
        a("v_lshlrev_b32 v1, 7, v1")
        a("s_mul_i32 s42, s31, 2560")
        a("v_add_u32 v1, s42, v1")
        a(f"v_min_u32 v1, {L('end')}-{KNAME}, v1")
        a("global_load_dword v255, v1, s[40:41]")
        a.label(L("npc"))
    PFN = [0]
    def pf(w, ptr, nbytes, lines, skip=0):
        PFN[0] += 1
        lb = L('npd%d' % PFN[0])
        a(f"s_cmp_lg_u32 s{S_W}, {w}")
        a(f"s_cbranch_scc1 {lb}")
        srd(a, 52, ptr, nbytes)
        a(f"s_mul_i32 s67, s2, {lines * 128}")
        if skip: a(f"s_add_u32 s67, s67, {skip}")
        a("v_lshlrev_b32 v22, 7, v0")
        a(f"v_min_u32 v22, {(lines - 1) * 128}, v22")
        a("buffer_load_dword v21, v22, s[52:55], s67 offen")
        a.label(lb)
    def pf_w1():
        sk = PFSK * 64
        pf(1, S_WQKV, 512 * 3072, (512 - sk) * 24 // 256, sk * 3072)
        pf(2, S_WG, 512 * 2752, -(-(512 - sk) * 43 // 512), sk * 2752)
        pf(3, S_WU, 512 * 2752, -(-(512 - sk) * 43 // 512), sk * 2752)
    def pf_w2():
        pf(0, S_WD, 1376 * 1024, 43)
        pf(1, S_WO, 512 * 1024, 16)
    if PF1 == -1: pf_w1()
    if PF2 == -1: pf_w2()
    srd(a, SY, S_WS, SY_SIZE, WS_SY)
    a(f"s_load_dword s{S_EP}, s[{SY}:{SY+1}], {SY_EPOCH}")
    a(f"s_and_b32 s42, s{S_W}, 1")
    a(f"s_lshr_b32 s43, s{S_W}, 1")
    a("v_and_b32 v1, 15, v0")
    a("v_lshrrev_b32 v2, 4, v0")
    a("v_lshrrev_b32 v3, 1, v1")
    a("v_xor_b32 v3, v3, v2")
    a("v_lshlrev_b32 v3, 4, v3")
    a("s_lshl_b32 s40, s42, 13")
    a("v_lshl_add_u32 v3, v1, 7, v3")
    a(f"s_add_u32 s40, s40, {SB}")
    a("v_add_u32 v9, s40, v3")
    a("v_xor_b32 v10, 64, v9")
    a(f"s_cmp_lt_u32 s{S_C}, 10")
    a("s_movk_i32 s44, 544")
    a("s_movk_i32 s45, 256")
    a("s_cselect_b32 s44, 288, s44")
    a("s_cselect_b32 s45, 128, s45")
    a("s_mul_i32 s41, s43, s45")
    a("v_lshrrev_b32 v4, 2, v0")
    a("v_mul_u32_u24 v4, s44, v4")
    a("v_and_b32 v5, 3, v0")
    a("v_lshl_add_u32 v4, v5, 3, v4")
    a(f"s_add_u32 s40, s41, {SB + WOFF}")
    a("v_add_u32 v11, s40, v4")
    for b in (1, 2):
        for i in range(3):
            a(f"v_add_u32 {v(9+3*b+i)}, {STG*b}, {v(9+i)}")
    a("s_lshl_b32 s40, s42, 8")
    a("v_lshl_add_u32 v3, v1, 2, s40")
    a("v_lshl_add_u32 v6, v2, 4, s40")
    a("s_lshl_b32 s40, s41, 1")
    a("v_lshl_add_u32 v4, v2, 4, s40")
    a("v_lshl_add_u32 v5, v1, 2, s40")
    a(f"s_lshl_b32 s40, s{S_RB}, 4")
    a(f"s_add_u32 s40, s40, s{S_C}")
    a("s_lshl_b32 s40, s40, 2")
    a(f"s_add_u32 s40, s40, s{S_W}")
    a("s_lshl_b32 s46, s40, 7")
    a(f"s_add_u32 s31, s46, {SY_F}")
    a("s_mov_b32 s44, 0x3b000000")
    a("s_mov_b32 s45, 0x3727c5ac")
    a("v_and_b32 v22, 1, v2")
    a("v_lshrrev_b32 v23, 1, v2")
    a(f"s_cmp_lt_u32 s{S_C}, 10")
    a(f"s_cbranch_scc1 {L('setF')}")
    srd(a, 48, S_WS, 96 * QS, WS_QK)
    a("v_lshl_add_u32 v7, v22, 4, v1")
    a("v_lshlrev_b32 v7, 5, v7")
    a("v_lshl_add_u32 v7, v23, 4, v7")
    a(f"s_sub_u32 s60, s{S_C}, 10")
    a("s_lshl_b32 s60, s60, 1")
    a("s_add_u32 s60, s60, s43")
    a(f"s_mul_i32 s60, s60, {8 * QS}")
    a(f"s_lshl_b32 s40, s{S_RB}, 12")
    a("s_add_u32 s60, s60, s40")
    a("s_lshl_b32 s40, s42, 11")
    a("s_add_u32 s60, s60, s40")
    a(f"s_cmp_lt_u32 s{S_C}, 12")
    a("s_cselect_b32 s66, 0x3eb8aa3b, 1.0")
    a(f"s_branch {L('setD')}")
    a.label(L("setF"))
    srd(a, 48, S_WS, NSLAB_H * HS, WS_H)
    a("v_lshl_add_u32 v7, v23, 4, v1")
    a("v_lshlrev_b32 v7, 4, v7")
    a("v_lshl_add_u32 v7, v22, 10, v7")
    a(f"s_mul_i32 s40, s{S_C}, 9")
    a("s_lshl_b32 s41, s43, 2")
    a("s_add_u32 s40, s40, s41")
    a(f"s_lshl_b32 s41, s{S_RB}, 13")
    a("s_lshl_b32 s3, s42, 12")
    a("s_add_u32 s41, s41, s3")
    for e in range(5):
        a(f"s_add_u32 s3, s40, {e}")
        a(f"s_lshr_b32 s{60+e}, s3, 1")
        a(f"s_mul_i32 s{60+e}, s{60+e}, {HS}")
        a("s_and_b32 s3, s3, 1")
        a("s_lshl_b32 s3, s3, 9")
        a(f"s_add_u32 s{60+e}, s{60+e}, s3")
        a(f"s_add_u32 s{60+e}, s{60+e}, s41")
    a.label(L("setD"))
    a("s_waitcnt vmcnt(0)")
    for k in range(2):
        for d in range(4):
            a(f"v_lshlrev_b32 {v(52+8*k+2*d)}, 16, {v(44+4*k+d)}")
            a(f"v_and_b32 {v(53+8*k+2*d)}, 0xffff0000, {v(44+4*k+d)}")
    for k in range(2):
        a(f"v_add_f32 {v(68+k)}, {v(52+8*k)}, {v(53+8*k)}")
    for e in range(2, 8):
        for k in range(2):
            a(f"v_add_f32 {v(68+k)}, {v(68+k)}, {v(52+8*k+e)}")
    allreduce64x2(a, 68, 69, 72, 73)
    for k in range(2):
        a(f"v_mul_f32 {v(68+k)}, s44, {v(68+k)}")
    for e in range(8):
        for k in range(2):
            a(f"v_sub_f32 {v(52+8*k+e)}, {v(52+8*k+e)}, {v(68+k)}")
    for k in range(2):
        a(f"v_mul_f32 {v(70+k)}, {v(52+8*k)}, {v(52+8*k)}")
    for e in range(1, 8):
        for k in range(2):
            a(f"v_fmac_f32 {v(70+k)}, {v(52+8*k+e)}, {v(52+8*k+e)}")
    allreduce64x2(a, 70, 71, 72, 73)
    for k in range(2):
        q = 70 + k
        a(f"v_mul_f32 {v(q)}, s44, {v(q)}")
        bf16_round(a, q)
        a(f"v_add_f32 {v(q)}, s45, {v(q)}")
        bf16_round(a, q)
        a(f"v_sqrt_f32 {v(q)}, {v(q)}")
    a("s_waitcnt lgkmcnt(0)")
    mktag()
    for k in range(2):
        a(f"v_cvt_pk_bf16_f32 {v(100+k)}, {v(68+k)}, {v(70+k)}")
    a(f"v_mov_b32 v102, s{S_TAG}")
    a(f"v_mov_b32 v103, s{S_TAG}")
    a(f"s_add_u32 s40, s46, {SY_ROW}")
    a("s_mov_b64 exec, 0xff")
    a(f"buffer_store_dwordx4 v[100:103], v8, {s(SY,4)}, s40 offen sc1")
    a("s_mov_b64 exec, -1")
    a(f"s_lshl_b32 s3, s{S_W}, 2")
    a("v_mov_b32 v22, s3")
    a(f"s_not_b32 s3, s{S_TAG}")
    a("v_mov_b32 v23, s3")
    a(f"ds_write_b32 v22, v23 offset:{ST_SY}")
    a(f"ds_write_b32 v22, v23 offset:{ST_SY + 16}")
    a(f"ds_write_b32 v22, v23 offset:{ST_SY + 32}")
    a(f"ds_write_b32 v22, v23 offset:{ST_SY + 48}")
    a("s_waitcnt lgkmcnt(0)")
    ts("c")
    a("s_barrier")
    ts("c")
    a(f"s_cmp_lt_u32 s{S_C}, 10")
    a(f"s_cbranch_scc1 {L('mF')}")
    a(f"s_cmp_lt_u32 s{S_C}, 14")
    a(f"s_cbranch_scc1 {L('mQ')}")
    A = lambda j, i, r: ACC + 4 * (4 * j + i) + r
    BL = "op_sel_hi:[1,0,1]"
    MR = XF
    ts0 = TS.get("c", 0)
    for ty, fw in (("V", 0), ("Q", 0), ("F", 0), ("F", 1)):
        TS["c"] = ts0
        if ty != "V" and fw == 0: a.label(L("m" + ty))
        if ty == "F" and fw == 0:
            a("s_cmp_eq_u32 s43, 1")
            a(f"s_cbranch_scc1 {L('mF1')}")
        if ty == "F" and fw == 1: a.label(L("mF1"))
        def toks(j):
            if ty == "F" and HALF and j % 5 == (4 if fw == 0 else 0):
                return [0, 1] if fw == 0 else [2, 3]
            return [0, 1, 2, 3]
        NTL = 10 if ty == "F" else 8
        lg = Counter(a, "lgkmcnt", 12)
        vm = Counter(a, "vmcnt", 60)
        def q_x(step):
            buf, ks = (step // 2) % 3, step % 2
            return [(f"ds_read_b128 {v(XF+16*ks+4*i,4)}, {v(9+3*buf+ks)} offset:{i*2048}", ("x", step, i)) for i in range(4)]
        def q_w(step, j):
            buf, ks = (step // 2) % 3, step % 2
            out = []
            for hf in range(2):
                off = ((j // 5) * 18432 + ks * 9216 + hf * 4608 + (j % 5) * 32) if ty == "F" else ((2 * ks + hf) * 9216 + j * 32)
                out.append((f"ds_read_b64_tr_b16 {v(WF+4*j+2*hf,2)}, {v(11+3*buf)} offset:{off}", ("w", step, j)))
            return out
        def mfma(j, i, step):
            acc = v(A(j, i, 0), 4)
            c = "0" if step == 0 else acc
            w = v(WF + 4 * j, 4); x = v(XF + 16 * (step % 2) + 4 * i, 4)
            if ty == "V":
                return f"v_mfma_f32_16x16x32_bf16 {acc}, {x}, {w}, {c}"
            return f"v_mfma_f32_16x16x32_bf16 {acc}, {w}, {x}, {c}"
        def q_cs(j):
            if ty == "V":
                l = f"ds_read_b32 {v(WF+4*j)}, v5 offset:{ST_CS + j*64}"
            elif ty == "Q":
                l = f"ds_read_b128 {v(WF+4*j,4)}, v4 offset:{ST_CS + j*64}"
            else:
                l = f"ds_read_b128 {v(WF+4*j,4)}, v4 offset:{ST_CS + ((j//5)*9 + j%5)*64}"
            return [(l, ("cs", j, 0))]
        for l, t in q_x(0): lg.issue(l, t)
        for j in range(NTL):
            if j in (4, 8): lg.wait(("w", 0, j - 4))
            for l, t in q_w(0, j): lg.issue(l, t)
        pend = []
        order = list(range(NTL)) if ty != "F" else ([0, 5, 1, 6, 4, 9, 2, 7, 3, 8] if fw == 0 else [1, 6, 2, 7, 0, 5, 3, 8, 4, 9])
        for step in range(16):
            ks = step % 2
            nstep = step + 1
            hold = []
            if PF1 == step: pf_w1()
            if PF2 == step: pf_w2()
            for gi, j in enumerate(order):
                while any(t == ("w", step, j) or t[:2] == ("x", step) for _, t in pend):
                    l, t = pend.pop(0); lg.issue(l, t)
                lg.wait(("w", step, j), ("x", step, 3))
                for i in toks(j):
                    a(mfma(j, i, step))
                    if pend:
                        l, t = pend.pop(0); lg.issue(l, t)
                new = []
                if nstep < 16:
                    new += q_w(nstep, j)
                    if gi in (2, 3):
                        new += q_x(nstep)[2*(gi-2):2*(gi-2)+2]
                else:
                    new += q_cs(j)
                    if gi in (1, 2, 3, 4):
                        i = gi - 1
                        if ty == "V":
                            new.append((f"ds_read_b128 {v(224+8*i,4)}, v6 offset:{ST_M + 64*i}", ("st", i, 0)))
                            new.append((f"ds_read_b128 {v(228+8*i,4)}, v6 offset:{ST_RS + 64*i}", ("st", i, 1)))
                        else:
                            new.append((f"ds_read_b32 {v(MR+2*i)}, v3 offset:{ST_M + 64*i}", ("st", i, 0)))
                            new.append((f"ds_read_b32 {v(MR+1+2*i)}, v3 offset:{ST_RS + 64*i}", ("st", i, 1)))
                if ks == 1 and gi < BA:
                    hold += new
                    continue
                if ks == 1 and gi == BA:
                    for l, t in pend: lg.issue(l, t)
                    pend = []
                    lg.wait_all()
                    a("s_barrier")
                    if step in (3, 7, 11, 15): ts("c", lg)
                    pend += hold
                pend += new
        for l, t in pend: lg.issue(l, t)
        ts("c", lg)
        def corr(j, i):
            for r in (0, 2):
                a(f"v_pk_fma_f32 {v(A(j,i,r),2)}, {v(WF+4*j+r,2)}, {v(MR+2*i,2)}, {v(A(j,i,r),2)} {BL}")
        def pack_store(j, i0, so, off):
            d = A(j, i0, 0)
            a(f"v_cvt_pk_bf16_f32 {v(d)}, {v(d)}, {v(d+1)}")
            a(f"v_cvt_pk_bf16_f32 {v(d+1)}, {v(d+2)}, {v(d+3)}")
            a(f"v_cvt_pk_bf16_f32 {v(d+2)}, {v(d+4)}, {v(d+5)}")
            a(f"v_cvt_pk_bf16_f32 {v(d+3)}, {v(d+6)}, {v(d+7)}")
            a("s_nop 0")
            a(f"v_permlane16_swap_b32 {v(d)}, {v(d+2)}")
            a(f"v_permlane16_swap_b32 {v(d+1)}, {v(d+3)}")
            pol = "" if ("local" in opt and ty == "F") or "plainall" in opt else "sc1"
            a(f"buffer_store_dwordx4 {v(d,4)}, v7, s[48:51], {s(so)} offen offset:{off} {pol}")
        lg.wait(("st", 3, 1))
        if ty == "F":
            for i in range(4):
                a(f"v_mul_f32 {v(MR+1+2*i)}, {v(MR+1+2*i)}, {v(MR+1+2*i)}")
            for e in order[::2]:
                lg.wait(("cs", e, 0), ("cs", 5 + e, 0))
                for i in toks(e):
                    corr(e, i); corr(5 + e, i)
                    for r in range(4):
                        a(f"v_max_f32 {v(A(e,i,r))}, 0, {v(A(e,i,r))}")
                    for r in (0, 2):
                        a(f"v_pk_mul_f32 {v(A(5+e,i,r),2)}, {v(A(5+e,i,r),2)}, {v(MR+2*i,2)} op_sel:[0,1] op_sel_hi:[1,1]")
                    for r in (0, 2):
                        a(f"v_pk_mul_f32 {v(A(e,i,r),2)}, {v(A(e,i,r),2)}, {v(A(5+e,i,r),2)}")
                    if i & 1:
                        pack_store(e, i - 1, 60 + e, 1024 * (i - 1))
        else:
            if ty == "Q":
                for i in range(4):
                    a(f"v_mul_f32 {v(MR+1+2*i)}, s66, {v(MR+1+2*i)}")
            for j in range(8):
                lg.wait(("cs", j, 0))
                for i in range(4):
                    if ty == "Q":
                        corr(j, i)
                        for r in (0, 2):
                            a(f"v_pk_mul_f32 {v(A(j,i,r),2)}, {v(A(j,i,r),2)}, {v(MR+2*i,2)} op_sel:[0,1] op_sel_hi:[1,1]")
                    else:
                        for r in (0, 2):
                            a(f"v_pk_fma_f32 {v(A(j,i,r),2)}, {v(224+8*i+r,2)}, {v(WF+4*j,2)}, {v(A(j,i,r),2)} {BL}")
                        for r in (0, 2):
                            a(f"v_pk_mul_f32 {v(A(j,i,r),2)}, {v(A(j,i,r),2)}, {v(228+8*i+r,2)}")
                    if i & 1:
                        pack_store(j, i - 1, 60, 512 * (i - 1))
                a(f"s_add_u32 s60, s60, {QS}")
        if not (ty == "F" and fw == 1):
            a(f"s_branch {L('mdone')}")
    a.label(L("mdone"))
    ts("c")
    KF, VF, QF = 16, 56, 136
    S = [144, 160, 176]
    NM, O, P, MK = 192, 208, 224, 240
    LP = "" if "local" in opt else "sc1"
    for r in range(4):
        a(f"v_mov_b32 {v(252+r)}, s{S_TAG}")
    a("v_mov_b32 v15, v8")
    a("s_setprio 2")
    srd(a, 56, S_WS, 16 * HS, WS_O)
    a(f"s_mov_b32 s42, s{S_HD}")
    a(f"s_lshl_b32 s43, s{S_AB}, 2")
    a(f"s_add_u32 s43, s43, s{S_W}")
    a("s_lshl_b32 s45, s43, 6")
    a("v_and_b32 v1, 31, v0")
    a("v_lshrrev_b32 v2, 5, v0")
    a("v_lshlrev_b32 v3, 4, v2")
    a("v_lshlrev_b32 v8, 3, v2")
    a("v_sub_u32 v8, v1, v8")
    a("s_sub_u32 s37, s45, 256")
    a("s_mov_b32 exec_lo, 0xffff0000")
    a("s_mov_b32 exec_hi, 0xffff0000")
    for kt in range(10):
        a(f"s_cmp_ge_i32 s37, {-32*kt}")
        a("s_cselect_b32 s40, 0x3f803f80, 0")
        a("s_mov_b32 s41, s40")
        for r in range(0, 8, 2):
            a(f"v_pk_mov_b32 {v(VF+8*kt+r,2)}, s[40:41], s[40:41]")
    a("s_mov_b64 exec, -1")
    a(f"s_lshl_b32 s40, s{S_W}, 11")
    a(f"s_add_u32 s40, s40, {BQ}")
    a("v_add_u32 v4, s40, v15")
    a("v_and_b32 v5, 0x13, v1")
    a("v_bfe_u32 v7, v1, 2, 1")
    a("v_lshl_or_b32 v5, v7, 3, v5")
    a("v_bfe_u32 v7, v1, 3, 1")
    a("v_lshl_or_b32 v5, v7, 2, v5")
    a("v_lshl_add_u32 v7, v5, 5, v3")
    a("v_add_u32 v7, s40, v7")
    a("v_and_b32 v12, 15, v1")
    a("v_lshl_add_u32 v12, v2, 4, v12")
    a("v_lshlrev_b32 v12, 4, v12")
    a("v_lshrrev_b32 v13, 4, v1")
    a("v_lshl_add_u32 v12, v13, 10, v12")
    a("s_and_b32 s40, s42, 1")
    a("s_lshl_b32 s40, s40, 9")
    a("v_add_u32 v12, s40, v12")
    a("s_lshr_b32 s46, s42, 1")
    a(f"s_mul_i32 s46, s46, {HS}")
    a("s_lshl_b32 s40, s43, 12")
    a("s_add_u32 s46, s46, s40")
    if timing:
        MSL = [4, 6, 8, 10, 12, 14, 16, 18, 60, 62, 64, 66, 24, 40, 0, 20]
    else:
        MSL = [60 + 2 * r for r in range(16)]
    for r in range(16):
        a(f"v_cmp_le_i32 {s(MSL[r],2)}, {(r&7)+16*(r>>3)}, v8")
    a("v_mov_b32 v9, 0xffff")
    a("v_mov_b32 v10, 0xffff0000")
    for p in range(8):
        a(f"v_cndmask_b32 {v(MK+p)}, 0, v9, {s(MSL[2*p],2)}")
        a(f"v_cndmask_b32 v11, 0, v10, {s(MSL[2*p+1],2)}")
        a(f"v_or_b32 {v(MK+p)}, {v(MK+p)}, v11")
    a("s_waitcnt vmcnt(0)")
    a("s_mov_b64 exec, 0xff")
    a(f"buffer_store_dwordx4 v[252:255], v15, {s(SY,4)}, s31 offen sc1")
    a("s_mov_b64 exec, -1")
    a(f"s_lshl_b32 s3, s{S_W}, 2")
    a("v_mov_b32 v14, s3")
    a(f"ds_write_b32 v14, v252 offset:{ST_SY + 16}")
    ts("c")
    lds_spin("msync", ST_SY, 14, 13, sleep=1)
    ts("c")
    vm = Counter(a, "vmcnt", 60)
    lg = Counter(a, "lgkmcnt", 12)
    for t in range(2):
        lg.issue(f"ds_read_b128 {v(QF+4*t,4)}, v4 offset:{32768 + 1024*t}", ("q", t))
    for kt in range(10):
        lg.issue(f"ds_read_b128 {v(KF+4*kt,4)}, v4 offset:{1024*kt}", ("k", kt))
    a("s_mov_b32 exec_lo, 0xffff")
    a("s_mov_b32 exec_hi, 0xffff")
    for kt in range(10):
        lg.wait(("k", kt))
        for hh in range(2):
            lg.issue(f"ds_read_b128 {v(VF+8*kt+4*hh,4)}, v7 offset:{16384 + 1024*kt + 512*hh}", ("v", kt))
    a("s_mov_b64 exec, -1")
    def M(dst, kt, t, c):
        lg.wait(("k", kt), ("q", t))
        a(f"v_mfma_f32_32x32x16_bf16 {v(dst,16)}, {v(KF+4*kt,4)}, {v(QF+4*t,4)}, {c}")
    for t in range(2):
        far, diag = t, t + 8
        full = list(range(t + 1, t + 8))
        MX = 14
        M(O, far, t, "0")
        if t == 0: ts("c", lg)
        M(S[0], full[0], t, "0")
        M(S[1], full[1], t, "0")
        a("s_nop 7")
        def mx(src, first=False):
            for q in range(0, 16, 4):
                if first and q == 0:
                    a(f"v_max_f32 {v(MX)}, {v(src)}, {v(src+1)}")
                    a(f"v_max_f32 {v(MX+1)}, {v(src+2)}, {v(src+3)}")
                else:
                    a(f"v_max3_f32 {v(MX)}, {v(src+q)}, {v(src+q+1)}, {v(MX)}")
                    a(f"v_max3_f32 {v(MX+1)}, {v(src+q+2)}, {v(src+q+3)}, {v(MX+1)}")
        for n in range(7):
            if n + 2 < 7:
                M(S[(n + 2) % 3], full[n + 2], t, "0")
            elif n + 2 == 7:
                M(NM, diag, t, "0")
            if n == 0:
                a("s_nop 1")
            mx(S[n % 3], first=(n == 0))
        for r in range(16):
            a(f"v_cndmask_b32 {v(O+r)}, {v(O+r)}, {v(NM+r)}, {s(MSL[r],2)}")
        mx(O)
        a(f"v_max_f32 {v(MX)}, {v(MX)}, {v(MX+1)}")
        a(f"v_mov_b32 {v(MX+1)}, {v(MX)}")
        a("s_nop 1")
        a(f"v_permlane32_swap_b32 {v(MX)}, {v(MX+1)}")
        a("s_nop 1")
        a(f"v_max_f32 {v(MX)}, {v(MX)}, {v(MX+1)}")
        a(f"v_sub_f32 {v(MX)}, 0, {v(MX)}")
        for r in range(0, 16, 2):
            a(f"v_pk_mov_b32 {v(NM+r,2)}, {v(MX,2)}, {v(MX,2)} op_sel:[0,0]")
        a("s_nop 1")
        if t == 0:
            lg.wait_all(force=False)
            a(f"s_lshl_b32 s3, s{S_W}, 2")
            a("v_mov_b32 v13, s3")
            lg.issue(f"ds_write_b32 v13, v252 offset:{ST_SY + 32}")
        M(S[0], full[0], t, v(NM, 16))
        M(S[2], far, t, v(NM, 16))
        a("s_nop 9")
        first_pv = [True]
        def PV(kt, hh, preg):
            lg.wait(("v", kt))
            c = "0" if first_pv[0] else v(O, 16)
            first_pv[0] = False
            a(f"v_mfma_f32_32x32x16_bf16 {v(O,16)}, {v(VF+8*kt+4*hh,4)}, {v(preg+4*hh,4)}, {c}")
        for n in range(8):
            cur = S[n % 2]
            nxt = S[(n + 1) % 2]
            if n + 1 < 7:
                M(nxt, full[n + 1], t, v(NM, 16))
            elif n + 1 == 7:
                M(nxt, diag, t, v(NM, 16))
            if n == 7:
                for r in range(16):
                    a(f"v_cndmask_b32 {v(cur+r)}, {v(S[2]+r)}, {v(cur+r)}, {s(MSL[r],2)}")
            for r in range(16):
                a(f"v_exp_f32 {v(cur+r)}, {v(cur+r)}")
                if n > 0 and r == 5: PV(full[n - 1], 0, P)
                if n > 0 and r == 11: PV(full[n - 1], 1, P)
            for p in range(8):
                a(f"v_cvt_pk_bf16_f32 {v(P+p)}, {v(cur+2*p)}, {v(cur+2*p+1)}")
        for p in range(8):
            a(f"v_bfi_b32 {v(P+8+p)}, {v(MK+p)}, 0, {v(P+p)}")
            a(f"v_and_b32 {v(P+p)}, {v(MK+p)}, {v(P+p)}")
        a("s_nop 1")
        PV(diag, 0, P); PV(diag, 1, P); PV(far, 0, P + 8); PV(far, 1, P + 8)
        a("s_nop 11")
        a(f"v_rcp_f32 v14, {v(O+8)}")
        a("s_nop 0")
        for r in range(8):
            a(f"v_mul_f32 {v(O+r)}, v14, {v(O+r)}")
        for p in range(4):
            a(f"v_cvt_pk_bf16_f32 {v(248+4*t+p)}, {v(O+2*p)}, {v(O+2*p+1)}")
        vm.issue(f"buffer_store_dwordx4 {v(248+4*t,4)}, v12, s[56:59], s46 offen offset:{2048*t} {LP}")
    ts("c")
    a("s_lshl_b32 s40, s43, 5")
    a("s_add_u32 s40, s40, s42")
    a("s_lshl_b32 s40, s40, 7")
    a(f"s_add_u32 s40, s40, {SY_OF}")
    a("v_lshlrev_b32 v3, 4, v0")
    for r in range(4):
        a(f"v_mov_b32 {v(4+r)}, s{S_TAG}")
    a("s_mov_b64 exec, 0xff")
    a("s_waitcnt vmcnt(0)")
    a(f"buffer_store_dwordx4 v[4:7], v3, {s(SY,4)}, s40 offen {LP}")
    a("s_mov_b64 exec, -1")
    a(f"s_or_b32 s3, s2, s{S_W}")
    a("s_cmp_lg_u32 s3, 0")
    a(f"s_cbranch_scc1 {L('noep')}")
    a("v_lshlrev_b32 v8, 9, v0")
    a(f"v_add_u32 v8, {SY_F}, v8")
    for q in range(4):
        poll(f"pe{q}", 8, 9)
        a("v_add_u32 v8, 0x8000, v8")
    a(f"s_add_u32 s3, s{S_EP}, 1")
    a("v_mov_b32 v9, s3")
    a("v_mov_b32 v8, 0")
    a("s_mov_b64 exec, 1")
    a(f"buffer_store_dword v9, v8, {s(SY,4)}, 0 offen sc1")
    a.label(L("noep"))
    ts_dump("c")
    a(f"s_branch {L('end')}")

    a.label(L("loader"))
    LW = 31
    a(f"s_sub_u32 s{LW}, s{S_W}, 4")
    a("s_setprio 3")
    a("v_lshrrev_b32 v1, 3, v0")
    a("v_and_b32 v2, 7, v0")
    a(f"s_lshl_b32 s54, s{S_RB}, 7")
    a(f"s_lshl_b32 s55, s{LW}, 5")
    a("s_add_u32 s54, s54, s55")
    a("v_lshrrev_b32 v4, 4, v0")
    a("v_xor_b32 v4, v4, v2")
    a("v_add_u32 v3, s54, v1")
    a("v_lshlrev_b32 v3, 10, v3")
    a("v_lshl_add_u32 v10, v4, 4, v3")
    a("v_xor_b32 v11, 64, v10")
    a("v_add_u32 v11, 0x2000, v11")
    a("v_add_u32 v12, 0x4000, v10")
    a("v_add_u32 v13, 0x4000, v11")
    a(f"s_lshl_b32 s56, s{LW}, 12")
    a(f"s_add_u32 s56, s56, {SB}")
    a(f"s_mul_i32 s57, s{LW}, 9216")
    a(f"s_add_u32 s57, s57, {SB+WOFF}")
    a(f"s_cmp_lt_u32 s{S_C}, 10")
    a(f"s_cbranch_scc1 {L('lF')}")
    CA = [112, 117, 122]
    CS = 44
    CF = 64
    G_ACC, XR = 192, 24
    NH, NO = 11, 4
    NT = NH + NO
    BUFORD = [2, 0]
    def slot_off(k):
        sl = k % 6
        return BUFORD[sl // 3], (sl % 3) * 4096
    def w2_list(k):
        b, o = slot_off(k)
        out = []
        for q in range(4):
            kk, sr = (k, 40) if k < NH else (k - NH, 44)
            if ROT and k < NH:
                pre = ""
                if q == 0:
                    pre = (f"s_add_u32 s66, s67, {kk}\ns_cmp_ge_u32 s66, 11\ns_cselect_b32 s58, 11, 0\ns_sub_u32 s66, s66, s58\n"
                           f"s_lshl_b32 s66, s66, 17\ns_add_u32 s66, s66, s57\n")
                out.append((pre + f"s_add_u32 m0, s56, {b*STG + o + q*1024}",
                            f"s_add_u32 s58, s66, {(16*(q&1) + 4*(q>>1))*1024}",
                            f"buffer_load_dwordx4 v2, {s(sr,4)}, s58 offen lds", ("w", k)))
                continue
            out.append((f"s_add_u32 m0, s56, {b*STG + o + q*1024}",
                        f"s_add_u32 s58, s57, {kk*4*32768 + (16*(q&1) + 4*(q>>1))*1024}",
                        f"buffer_load_dwordx4 v2, {s(sr,4)}, s58 offen lds", ("w", k)))
        return out
    def p2_setup():
        srd(a, 40, S_WD, 1376 * 1024)
        srd(a, 44, S_WO, 512 * 1024)
        a("v_lshrrev_b32 v3, 3, v0")
        a("v_and_b32 v4, 7, v0")
        a("v_and_b32 v5, 6, v3")
        a("v_xor_b32 v4, v4, v5")
        a("v_lshlrev_b32 v4, 4, v4")
        a("v_and_b32 v5, 4, v3")
        a("v_add_u32 v3, v3, v5")
        a("v_lshl_add_u32 v4, v3, 10, v4")
        a(f"s_lshl_b32 s3, s{S_J}, 7")
        a("v_add_u32 v2, s3, v4")
        a(f"s_mul_i32 s56, s{LW}, 12288")
        a(f"s_add_u32 s56, s56, {SB}")
        a(f"s_lshl_b32 s57, s{LW}, 15")
        a(f"s_mul_i32 s59, s{LW}, {HS}")
        if ROT:
            a(f"s_and_b32 s67, s{S_TB}, 3")
            a(f"s_mul_i32 s67, s67, {ROT[1]}")
            a(f"s_mul_i32 s66, s{S_J}, {ROT[0]}")
            a("s_add_u32 s67, s67, s66")
            for _ in range(4):
                a("s_cmp_ge_u32 s67, 11")
                a("s_cselect_b32 s66, 11, 0")
                a("s_sub_u32 s67, s67, s66")
    ts0 = TS.get("l", 0)
    for ty in ("Q", "F"):
        TS["l"] = ts0
        if ty == "F": a.label(L("lF"))
        stride = 2752 if ty == "F" else 3072
        vm = Counter(a, "vmcnt", 60)
        lg = Counter(a, "lgkmcnt", 12)
        a(f"s_movk_i32 s63, {stride}")
        if ty == "F":
            a(f"s_and_b32 s54, s{LW}, 1")
            a("s_lshl_b32 s54, s54, 5")
            a(f"s_mul_i32 s55, s{S_C}, 288")
            a("s_movk_i32 s64, 3641")
        else:
            a(f"s_lshr_b32 s54, s{LW}, 1")
            a("s_lshl_b32 s54, s54, 5")
            a(f"s_and_b32 s55, s{LW}, 1")
            a("s_lshl_b32 s55, s55, 2")
            a("s_add_u32 s54, s54, s55")
            a(f"s_sub_u32 s55, s{S_C}, 10")
            a("s_lshl_b32 s55, s55, 9")
            a("s_movk_i32 s64, 1928")
            a("v_mov_b32 v9, 0x7fff0000")
        a("s_waitcnt lgkmcnt(0)")
        srd(a, 36, S_X, 2048 * 1024)
        if ty == "F":
            a(f"s_cmp_lt_u32 s{LW}, 2")
            a(f"s_cselect_b32 s40, s{S_WG}, s{S_WU}")
            a(f"s_cselect_b32 s41, s{S_WG+1}, s{S_WU+1}")
            a(f"s_mov_b32 s42, {hex(512*2752)}")
            a("s_mov_b32 s43, 0x00020000")
        else:
            srd(a, 40, S_WQKV, 512 * 3072)
        def dma_list(stage):
            buf = stage % 3
            out = []
            for i in range(4):
                out.append((f"s_add_u32 m0, s56, {buf*STG + i*1024}", f"s_movk_i32 s58, {stage*128}",
                            f"buffer_load_dwordx4 {v(10+i)}, s[36:39], s58 offen lds", ("st", stage)))
            for b in range(9):
                out.append((f"s_add_u32 m0, s57, {buf*STG + b*1024}", f"s_mov_b32 s58, {stage*64*stride}",
                            f"buffer_load_dwordx4 {v(14+b)}, s[40:43], s58 offen lds", ("st", stage)))
            return out
        def run(lst):
            for m, so, ld, tg in lst:
                a(m); a(so); vm.issue(ld, tg)
        run(dma_list(0)[:4])
        for b in range(9):
            a(f"v_add_u32 v3, {64*b}, v0")
            a("v_mul_u32_u24 v4, s64, v3")
            a("v_lshrrev_b32 v4, 16, v4")
            a(f"v_mul_u32_u24 v5, {18 if ty == 'F' else 34}, v4")
            a("v_sub_u32 v5, v3, v5")
            a("v_and_b32 v6, 3, v4")
            a("v_bfe_u32 v7, v4, 2, 2")
            a("v_lshl_add_u32 v6, v7, 3, v6")
            if ty == "F":
                a("v_lshrrev_b32 v7, 4, v4")
                a("v_lshl_add_u32 v6, v7, 2, v6")
            a("v_add_u32 v6, s54, v6")
            a("v_mul_u32_u24 v6, s63, v6")
            a("v_lshl_add_u32 v6, v5, 4, v6")
            if ty == "F":
                a(f"v_add_u32 {v(14+b)}, s55, v6")
            else:
                a("v_cmp_gt_u32 vcc, 32, v5")
                a("v_add_u32 v6, s55, v6")
                a("v_cmp_gt_u32 s[60:61], 16, v4")
                a(f"v_cndmask_b32 v6, v9, v6, vcc")
                a("s_nop 0")
                a(f"v_cndmask_b32 {v(14+b)}, v9, v6, s[60:61]")
            run(dma_list(0)[4+b:5+b])
        run(dma_list(1)[:6])
        srd(a, SY, S_WS, SY_SIZE, WS_SY)
        a(f"s_load_dword s{S_EP}, s[{SY}:{SY+1}], {SY_EPOCH}")
        NC = 5 if ty == "F" else 4
        a("v_lshrrev_b32 v4, 2, v0")
        a(f"v_mul_u32_u24 v4, {288 if ty == 'F' else 544}, v4")
        a("v_and_b32 v5, 3, v0")
        a("v_lshl_add_u32 v4, v5, 3, v4")
        a(f"v_add_u32 v4, {SB+WOFF}, v4")
        for i in range(NC):
            T = 61 + i
            if i < 4:
                a(f"s_add_u32 s{T}, s{LW}, {4*i}")
            else:
                a(f"s_and_b32 s{T}, s{LW}, 1")
                a(f"s_add_u32 s{T}, s{T}, 16")
            a(f"s_lshl_b32 s54, s{T}, 5")
            if ty == "F":
                a(f"s_cmp_ge_u32 s{T}, 9")
                a(f"s_cselect_b32 s55, {18432 - 288}, 0")
                a("s_add_u32 s54, s54, s55")
            a(f"v_add_u32 {v(CA[0]+i)}, s54, v4")
            a(f"v_add_u32 {v(CA[1]+i)}, {STG}, {v(CA[0]+i)}")
            a(f"v_add_u32 {v(CA[2]+i)}, {2*STG}, {v(CA[0]+i)}")
        for r in range(4):
            a(f"v_mov_b32 {v(28+r)}, 0x3f803f80")
        a(f"s_lshl_b32 s54, s{S_RB}, 13")
        a(f"s_lshl_b32 s55, s{LW}, 11")
        a("s_add_u32 s54, s54, s55")
        a(f"s_add_u32 s54, s54, {SY_ROW}")
        a("v_and_b32 v27, 15, v0")
        a("v_lshlrev_b32 v26, 7, v27")
        a("v_add_u32 v26, s54, v26")
        a(f"s_lshl_b32 s3, s{LW}, 7")
        a("v_lshl_add_u32 v27, v27, 3, s3")
        a("s_waitcnt lgkmcnt(0)")
        mktag()
        def colsum(stage, filler):
            buf = stage % 3
            for ks in range(2):
                for i in range(NC):
                    for hf in range(2):
                        off = (ks * 9216 + hf * 4608) if ty == "F" else (2 * ks + hf) * 9216
                        lg.issue(f"ds_read_b64_tr_b16 {v(CF+20*ks+4*i+2*hf,2)}, {v(CA[buf]+i)} offset:{off}", ("c", ks, i))
                run(filler[:2]); filler = filler[2:]
                for i in range(NC):
                    lg.wait(("c", ks, i))
                    acc = v(CS + 4 * i, 4)
                    a(f"v_mfma_f32_16x16x32_bf16 {acc}, {v(CF+20*ks+4*i,4)}, v[28:31], {'0' if stage == 0 and ks == 0 else acc}")
            run(filler)
        ts("l")
        vm.wait(("st", 0))
        a("s_barrier")
        ts("l")
        run(dma_list(1)[6:])
        colsum(0, dma_list(2))
        vm.wait(("st", 1))
        a("s_barrier")
        colsum(1, dma_list(3))
        vm.wait(("st", 2))
        a("s_barrier")
        vm.issue(f"buffer_load_dwordx4 v[104:107], v26, {s(SY,4)}, 0 offen sc1", "gat")
        colsum(2, dma_list(4))
        vm.wait(("st", 3))
        a("s_barrier")
        colsum(3, dma_list(5))
        vm.wait(("st", 4), "gat")
        a(f"v_cmp_eq_u32 vcc, s{S_TAG}, v106")
        a("s_nop 3")
        a("s_cmp_eq_u64 vcc, -1")
        a(f"s_cbranch_scc1 {L('valok' + ty)}")
        poll("pr" + ty, 26, 104, width=4, tagreg=2)
        a.label(L("valok" + ty))
        a("s_barrier")
        colsum(4, dma_list(6))
        for k in range(2):
            a(f"v_lshlrev_b32 {v(108+k)}, 16, {v(104+k)}")
            a(f"v_xor_b32 {v(108+k)}, 0x80000000, {v(108+k)}")
            a(f"v_and_b32 {v(110+k)}, 0xffff0000, {v(104+k)}")
            a(f"v_rcp_f32 {v(110+k)}, {v(110+k)}")
        a("s_nop 0")
        lg.issue(f"ds_write_b64 v27, v[108:109] offset:{ST_M}")
        lg.issue(f"ds_write_b64 v27, v[110:111] offset:{ST_RS}")
        vm.wait(("st", 5))
        a("s_barrier")
        colsum(5, dma_list(7))
        p2_setup()
        lg.wait_all()
        vm.wait(("st", 6))
        a("s_barrier")
        colsum(6, (w2_list(0) + w2_list(1) + w2_list(2)) if (ty == "F" or QD < 2) else [])
        vm.wait(("st", 7))
        a("s_barrier")
        colsum(7, [])
        a("v_lshrrev_b32 v3, 4, v0")
        a("v_lshlrev_b32 v6, 4, v3")
        a("s_nop 5")
        for i in range(NC):
            a(f"s_lshl_b32 s3, s{61+i}, 6")
            a("v_add_u32 v7, s3, v6")
            lg.issue(f"ds_write_b128 v7, {v(CS+4*i,4)} offset:{ST_CS}")
        if ty == "F" or QD < 1:
            run(w2_list(3) + w2_list(4) + w2_list(5))
        if ty == "Q":
            a(f"s_branch {L('ldone')}")
    a.label(L("ldone"))
    vm = Counter(a, "vmcnt", 60)
    lg = Counter(a, "lgkmcnt", 12)
    def dma_w(k):
        for m, so, ld, tg in w2_list(k):
            a(m); a(so); vm.issue(ld, tg)
    BREG = {}
    WREG = {k: 32 + 16 * k for k in range(6)}
    POOL = [128, 144, 160, 176]
    def load_b(k):
        kk, sr = (k, 48) if k < NH else (k - NH, 52)
        BREG[k] = POOL.pop(0)
        if ROT:
            a(f"s_add_u32 s60, s67, {kk}")
            a("s_cmp_ge_u32 s60, 11")
            a("s_cselect_b32 s58, 11, 0")
            a("s_sub_u32 s60, s60, s58")
            a("s_lshl_b32 s60, s60, 19")
            a("s_add_u32 s60, s60, s59")
        else:
            a(f"s_add_u32 s60, s59, {kk*4*HS}")
        for i in range(4):
            vm.issue(f"buffer_load_dwordx4 {v(BREG[k]+4*i,4)}, v1, {s(sr,4)}, s60 offen offset:{1024*i} sc1", ("b", k))
    def rd_w2(k):
        b, o = slot_off(k)
        if k not in WREG:
            WREG[k] = POOL.pop(0)
        for u in range(4):
            for hf in range(2):
                lg.issue(f"ds_read_b64_tr_b16 {v(WREG[k]+4*u+2*hf,2)}, {v(10+4*b+u)} offset:{o + hf*2048}", ("w", k, u))
    for k in range(6): vm.tag[("w", k)] = 0
    assert EW == 0
    a("v_lshrrev_b32 v3, 4, v0")
    a("v_lshrrev_b32 v5, 2, v0")
    a("v_bfe_u32 v6, v5, 1, 2")
    a("v_and_b32 v7, 3, v0")
    a("v_lshlrev_b32 v7, 3, v7")
    a("v_lshl_add_u32 v7, v5, 7, v7")
    a("v_add_u32 v7, s56, v7")
    for u in range(4):
        a(f"v_xor_b32 v8, {u}, v6")
        a(f"v_lshl_add_u32 {v(10+u)}, v8, 5, v7")
        a(f"v_add_u32 {v(18+u)}, {2*STG}, {v(10+u)}")
    a("s_waitcnt lgkmcnt(0)")
    if EW:
        a("s_waitcnt vmcnt(12)")
        for k in range(3):
            if k >= 1:
                lg.wait(("w", k - 1, 1))
            rd_w2(k)
    a("s_barrier")
    if LP0: a("s_setprio 0")
    ts("l", lg)
    if QD:
        a(f"s_cmp_lt_u32 s{S_C}, 10")
        a(f"s_cbranch_scc1 {L('nqd')}")
        lds_spin("qd", ST_SY + 16, 4, 5, sleep=2)
        for k in range(0 if QD == 2 else 3, 6 - QD3): dma_w(k)
        a.label(L("nqd"))
    if EW:
        lg.wait_all()
        for k in range(6, 9): dma_w(k)
        for k in range(3, 6):
            vm.wait(("w", k))
            if k > 3: lg.wait(("w", k - 1, 1))
            rd_w2(k)
        lg.wait_all()
        for k in range(9, 6 + EW): dma_w(k)
    srd(a, 48, S_WS, 96 * QS, WS_QK)
    a(f"s_lshl_b32 s0, s{S_AB}, 8")
    a(f"s_lshl_b32 s1, s{LW}, 7")
    a("s_add_u32 s1, s1, s0")
    a("s_sub_u32 s1, s1, 256")
    a("v_and_b32 v128, 31, v0")
    a("v_lshrrev_b32 v129, 5, v0")
    a("v_lshlrev_b32 v129, 4, v129")
    a("v_and_b32 v130, 0x13, v128")
    a("v_bfe_u32 v131, v128, 2, 1")
    a("v_lshl_or_b32 v130, v131, 3, v130")
    a("v_bfe_u32 v131, v128, 3, 1")
    a("v_lshl_or_b32 v130, v131, 2, v130")
    a("v_add_u32 v130, s1, v130")
    for n in range(4):
        a(f"v_add_u32 {v(132+n)}, {32*n}, v130")
        a(f"v_max_i32 {v(132+n)}, 0, {v(132+n)}")
        a(f"v_lshl_add_u32 {v(132+n)}, {v(132+n)}, 5, v129")
    a(f"s_lshl_b32 s3, s{LW}, 6")
    a("s_add_u32 s3, s3, s0")
    a("v_add_u32 v136, s3, v128")
    a("v_lshl_add_u32 v136, v136, 5, v129")
    a("v_lshlrev_b32 v137, 4, v0")
    a(f"s_lshr_b32 s5, s{S_HD}, 3")
    a("s_lshl_b32 s5, s5, 8")
    a(f"s_add_u32 s5, s5, {SY_F + 10*512}")
    a(f"s_lshl_b32 s3, s{S_AB}, 1")
    a(f"s_add_u32 s4, s3, s{LW}")
    a("s_sub_u32 s4, s4, 2")
    a("s_max_i32 s4, s4, 0")
    a("s_lshl_b32 s4, s4, 13")
    a("s_add_u32 s6, s4, s5")
    a("s_add_u32 s6, s6, 1024")
    a(f"s_lshr_b32 s4, s{LW}, 1")
    a("s_add_u32 s4, s4, s3")
    a("s_lshl_b32 s4, s4, 13")
    a("s_add_u32 s4, s4, s5")
    a(f"s_and_b32 s5, s{LW}, 1")
    a("s_lshl_b32 s5, s5, 7")
    a("s_add_u32 s4, s4, s5")
    a("v_and_b32 v138, 1, v0")
    a("v_lshlrev_b32 v138, 7, v138")
    a("v_bfe_u32 v139, v0, 1, 1")
    a("v_lshl_add_u32 v138, v139, 10, v138")
    a("v_add_u32 v138, s6, v138")
    a("v_mov_b32 v139, s4")
    a("v_and_b32 v140, 4, v0")
    a("v_cmp_eq_u32 vcc, 0, v140")
    a("s_nop 1")
    a("v_cndmask_b32 v138, v139, v138, vcc")
    a(f"s_mul_i32 s4, s{S_HD}, {QS}")
    a(f"s_add_u32 s5, s4, {32 * QS}")
    a("s_lshl_b32 s6, s1, 5")
    a("s_add_u32 s6, s6, s4")
    a(f"s_add_u32 s6, s6, {64 * QS}")
    a("s_cmp_ge_i32 s1, 0")
    a("s_cselect_b32 s6, s6, 0x7fff0000")
    a(f"s_lshl_b32 s7, s{LW}, 12")
    a(f"s_add_u32 s7, s7, {BQ}")
    a(f"s_lshl_b32 s0, s{LW}, 11")
    a(f"s_add_u32 s0, s0, {BQ + 32768}")
    poll("pq", 138, 4, sleep=QSL)
    vm.done = vm.n
    ts("l")
    a("s_mov_b32 m0, s0")
    a("s_nop 0")
    for n in range(2):
        a(f"buffer_load_dwordx4 v136, s[48:51], s4 offen offset:{1024*n} sc1 lds")
    for n in range(4):
        a(f"s_add_u32 m0, s7, {1024*n}")
        a("s_nop 0")
        a(f"buffer_load_dwordx4 {v(132+n)}, s[48:51], s5 offen sc1 lds")
    a("s_add_u32 m0, s7, 16384")
    a("s_nop 0")
    for n in range(4):
        a(f"buffer_load_dwordx4 v137, s[48:51], s6 offen offset:{1024*n} sc1 lds")
    for k in range(RDE):
        if k >= 1:
            lg.wait(("w", k - 1, 1))
        rd_w2(k)
    a(f"s_lshl_b32 s3, s{LW}, 2")
    a("v_mov_b32 v4, s3")
    a(f"v_mov_b32 v5, s{S_TAG}")
    a("s_waitcnt vmcnt(0)")
    lg.issue(f"ds_write_b32 v4, v5 offset:{ST_SY}")
    ts("l", lg)
    for k in range(RDE, 6):
        if k >= 1:
            lg.wait(("w", k - 1, 1))
        rd_w2(k)
    srd(a, 48, S_WS, NSLAB_H * HS, WS_H)
    srd(a, 52, S_WS, 16 * HS, WS_O)
    a(f"s_lshl_b32 s3, s{S_TB}, 12")
    a("v_lshl_add_u32 v1, v0, 4, s3")
    a("v_and_b32 v8, 15, v0")
    a("v_lshlrev_b32 v9, 10, v8")
    a(f"s_lshl_b32 s3, s{S_TB}, 16")
    a(f"s_lshl_b32 s61, s{LW}, 14")
    a("s_add_u32 s3, s3, s61")
    a(f"s_lshl_b32 s61, s{S_J}, 7")
    a("s_add_u32 s3, s3, s61")
    a("v_add_u32 v9, s3, v9")
    a("v_and_b32 v4, 1, v3")
    a("v_lshl_add_u32 v8, v4, 5, v9")
    a("v_lshrrev_b32 v4, 1, v3")
    a("v_lshl_add_u32 v8, v4, 4, v8")
    a("v_lshl_add_u32 v9, v3, 3, v9")
    a("v_lshrrev_b32 v4, 1, v0")
    a("v_min_u32 v4, 9, v4")
    a("v_lshlrev_b32 v4, 9, v4")
    a("v_and_b32 v5, 1, v0")
    a("v_lshl_add_u32 v4, v5, 8, v4")
    a(f"s_lshr_b32 s3, s{S_TB}, 1")
    a("s_lshl_b32 s3, s3, 13")
    a(f"s_and_b32 s61, s{S_TB}, 1")
    a("s_lshl_b32 s61, s61, 7")
    a("s_add_u32 s3, s3, s61")
    a(f"s_add_u32 s3, s3, {SY_F}")
    a("v_add_u32 v22, s3, v4")
    a("v_and_b32 v4, 31, v0")
    a("v_lshlrev_b32 v4, 7, v4")
    a(f"s_lshl_b32 s3, s{S_TB}, 12")
    a(f"s_add_u32 s3, s3, {SY_OF}")
    a("v_add_u32 v23, s3, v4")
    a("s_setprio 0")
    lds_spin("lsync0", ST_SY, 4, 5, sleep=2)
    lds_spin("lsync", ST_SY + 16, 4, 5, sleep=2)
    lg.done = lg.n
    for k in range(6 + EW, 6 + max(RF, EW)): dma_w(k)
    ts("l", lg)
    poll("ph", 22, 4, sleep=HSL)
    vm.done = vm.n
    ts("l", lg)
    nb = [0]
    def more_b(limit, reserve):
        while nb[0] < limit and len(POOL) > reserve:
            load_b(nb[0]); nb[0] += 1
    more_b(NH, 0)
    RQ = list(range(6 + max(RF, EW), 12))
    for _ in range(RF2):
        if RQ: dma_w(RQ.pop(0))
    def mm(k):
        for u in range(4):
            lg.wait(("w", k, u))
            for i in range(4):
                acc = v(G_ACC + 4 * (4 * u + i), 4)
                a(f"v_mfma_f32_16x16x32_bf16 {acc}, {v(WREG[k]+4*u,4)}, {v(BREG[k]+4*i,4)}, {'0' if k == 0 else acc}")
        POOL.append(BREG[k]); POOL.append(WREG[k])
    for k in range(NH):
        if k + 1 >= 6 and k + 1 < NH:
            vm.wait(("w", k + 1))
            rd_w2(k + 1)
        vm.wait(("b", k))
        mm(k)
        more_b(NH, 1 if k >= 3 else 0)
        if RQ: dma_w(RQ.pop(0))
        if k == 5:
            for u in range(4):
                vm.issue(f"buffer_load_dwordx2 {v(XR+2*u,2)}, v9, s[36:39], 0 offen offset:{32*u}", "x")
        if k in (6, 7, 8):
            dma_w(k + 6)
    lds_spin("msr", ST_SY + 32, 4, 5)
    lg.done = lg.n
    a("v_lshlrev_b32 v4, 4, v0")
    for i in range(4):
        a(f"s_sub_u32 s3, s{LW}, {i + 1}")
        a("s_and_b32 s3, s3, 3")
        a("s_cmp_eq_u32 s3, 3")
        a(f"s_cbranch_scc1 {L('skw%d' % i)}")
        a(f"s_add_u32 s3, s3, {3*i}")
        a("s_lshl_b32 s3, s3, 12")
        a(f"s_add_u32 s3, s3, {BQ}")
        a("v_add_u32 v5, s3, v4")
        for u in range(4):
            a(f"ds_write_b128 v5, {v(G_ACC+4*(4*u+i),4)} offset:{u*1024}")
        a(f"s_branch {L('dnw%d' % i)}")
        a.label(L('skw%d' % i))
        for u in range(4):
            for r in (0, 2):
                a(f"v_pk_mov_b32 {v(32+4*u+r,2)}, {v(G_ACC+4*(4*u+i)+r,2)}, {v(G_ACC+4*(4*u+i)+r,2)} op_sel:[0,1]")
        a.label(L('dnw%d' % i))
    a(f"s_lshl_b32 s3, s{LW}, 2")
    a("v_mov_b32 v5, s3")
    a(f"v_mov_b32 v6, s{S_TAG}")
    a("s_waitcnt vmcnt(0) lgkmcnt(0)")
    a(f"ds_write_b32 v5, v6 offset:{ST_SY + 48}")
    for u in range(4):
        for d in range(2):
            a(f"v_lshlrev_b32 v6, 16, {v(XR+2*u+d)}")
            a(f"v_and_b32 v7, 0xffff0000, {v(XR+2*u+d)}")
            a(f"v_pk_add_f32 {v(32+4*u+2*d,2)}, {v(32+4*u+2*d,2)}, v[6:7]")
    a(f"s_mul_i32 s3, s{LW}, 12288")
    a(f"s_add_u32 s0, s3, {BQ}")
    a("v_add_u32 v14, s0, v4")
    for u in range(4):
        a(f"v_subrev_u32 {v(10+u)}, s3, {v(10+u)}")
        a(f"v_subrev_u32 {v(18+u)}, s3, {v(18+u)}")
    a(f"s_lshl_b32 s3, s{LW}, 10")
    a("v_add_u32 v1, s3, v1")
    srd(a, 40, S_OUT, 2048 * 1024)
    ts("l")
    poll("po", 23, 4, sleep=OSL)
    ts("l")
    lg = Counter(a, "lgkmcnt", 12)
    vm = Counter(a, "vmcnt", 60)
    for n in range(16):
        a(f"s_mov_b32 s60, {n*HS}")
        vm.issue(f"buffer_load_dwordx4 {v(128+4*n,4)}, v1, s[52:55], s60 offen sc1", ("o", n))
    lds_spin("lsr", ST_SY + 48, 5, 6)
    for sl in range(3):
        for u in range(4):
            lg.issue(f"ds_read_b128 {v(192+16*sl+4*u,4)}, v14 offset:{sl*4096 + u*1024}", ("p", sl))
    WBL = [48, 64, 80, 96, 112]
    NPRE = len(WBL)
    def rd_wo(n):
        b, o = slot_off(NH + (n >> 2))
        for u in range(4):
            for hf in range(2):
                lg.issue(f"ds_read_b64_tr_b16 {v(WBL[n % NPRE]+4*u+2*hf,2)}, {v(10+4*b+u)} offset:{(n&3)*12288 + o + hf*2048}", ("wo", n, u))
    for sl in range(3):
        lg.wait(("p", sl))
        for e in range(0, 16, 2):
            a(f"v_pk_add_f32 {v(32+e,2)}, {v(32+e,2)}, {v(192+16*sl+e,2)}")
        rd_wo(sl)
    for n in range(16):
        if n + 3 < 16:
            lg.wait(("wo", n + 2, 1))
            rd_wo(n + 3)
        vm.wait(("o", n))
        for u in range(4):
            lg.wait(("wo", n, u))
            a(f"v_mfma_f32_16x16x32_bf16 {v(32+4*u,4)}, {v(WBL[n % NPRE]+4*u,4)}, {v(128+4*n,4)}, {v(32+4*u,4)}")
    ts("l", lg)
    a("s_nop 7")
    for h2 in range(2):
        d = 32 + 8 * h2
        a(f"v_cvt_pk_bf16_f32 {v(d)}, {v(d)}, {v(d+1)}")
        a(f"v_cvt_pk_bf16_f32 {v(d+1)}, {v(d+2)}, {v(d+3)}")
        a(f"v_cvt_pk_bf16_f32 {v(d+2)}, {v(d+4)}, {v(d+5)}")
        a(f"v_cvt_pk_bf16_f32 {v(d+3)}, {v(d+6)}, {v(d+7)}")
        a("s_nop 0")
        a(f"v_permlane16_swap_b32 {v(d)}, {v(d+2)}")
        a(f"v_permlane16_swap_b32 {v(d+1)}, {v(d+3)}")
        a(f"buffer_store_dwordx4 {v(d,4)}, v8, s[40:43], 0 offen offset:{64*h2} {OP}")
    ts_dump("l")
    a.label(L("end"))
    a("s_endpgm")
```

```python
from asmlib import *

WS_QK = 0
WS_VT = 4 << 20
WS_H = 6 << 20
NSLAB_H = 43
WS_O = WS_H + NSLAB_H * 131072
WS_SY = 14 << 20
SY_EPOCH = 0
SY_ROW = 0x20000
SY_F = 0x40000
SY_OF = 0x80000
SY_SIZE = 0xA0000
WS_TIM = 16 << 20

STG = 53248
XB = 16384
IMG = 12288
ST_M = 0
ST_RS = 512
ST_CS = 1024
ST_SY = 2304
SB = 4096
LDS_BYTES = SB + 3 * STG

ACC = 96
WF = 56
XF = 24
SPIN = 300000

S_X, S_WQKV, S_WO, S_WG, S_WU, S_WD, S_OUT, S_DBG, S_WS = 4, 6, 8, 12, 14, 16, 18, 20, 22
S_RB, S_C, S_W, S_TB, S_J, S_TAG, S_EP = 24, 25, 26, 27, 28, 29, 30
SY = 32
KNAME = 'parallel_sum__sliding_block__glu_gated_reglu__prompt_kernel'
S_AB, S_HD = 10, 11
BQ = SB + STG
WOFF = XB

def bf16_round(a, r):
    a(f"v_cvt_pk_bf16_f32 {v(r)}, {v(r)}, {v(r)}")
    a(f"v_lshlrev_b32 {v(r)}, 16, {v(r)}")

def allreduce64x2(a, r0, r1, t0, t1):
    for c in ("quad_perm:[1,0,3,2]", "quad_perm:[2,3,0,1]", "row_half_mirror", "row_mirror"):
        a("s_nop 0")
        a(f"v_add_f32_dpp {v(r0)}, {v(r0)}, {v(r0)} {c} row_mask:0xf bank_mask:0xf")
        a(f"v_add_f32_dpp {v(r1)}, {v(r1)}, {v(r1)} {c} row_mask:0xf bank_mask:0xf")
    for sw in ("v_permlane16_swap_b32", "v_permlane32_swap_b32"):
        a(f"v_mov_b32 {v(t0)}, {v(r0)}")
        a(f"v_mov_b32 {v(t1)}, {v(r1)}")
        a("s_nop 0")
        a(f"{sw} {v(r0)}, {v(t0)}")
        a(f"{sw} {v(r1)}, {v(t1)}")
        a("s_nop 0")
        a(f"v_add_f32 {v(r0)}, {v(r0)}, {v(t0)}")
        a(f"v_add_f32 {v(r1)}, {v(r1)}, {v(t1)}")

def body(a, name, timing=False, opt=(), BA=1, QSL=2, HSL=2, LP0=1, PF1=-1, PF2=4, PFSK=2, RF=6, RF2=2, EW=0, QD=1, QD3=0, OSL=2, ROT=None, HALF=1, OP=''):
    L = lambda x: f"{name}_{x}"
    TS = {}
    def ts(role, lg=None):
        if timing:
            i = TS.get(role, 0)
            assert i < 14
            a(f"s_memtime s[{68+2*i}:{69+2*i}]")
            a("s_waitcnt lgkmcnt(0)")
            if lg is not None: lg.done = lg.n
            TS[role] = i + 1
    def ts_dump(role):
        if timing:
            a("s_mov_b64 exec, -1")
            a("s_waitcnt vmcnt(0)")
            ts(role)
            a("s_memrealtime s[98:99]")
            a("s_waitcnt lgkmcnt(0)")
            srd(a, 36, S_WS, 1 << 20, WS_TIM)
            a("s_lshl_b32 s3, s2, 9")
            a(f"s_lshl_b32 s40, s{S_W}, 6")
            a("s_add_u32 s3, s3, s40")
            a("v_mov_b32 v3, s3")
            a("v_mov_b32 v4, s96")
            a("v_mov_b32 v5, s98")
            a("buffer_store_dwordx2 v[4:5], v3, s[36:39], 0 offen offset:56")
            for q in range(TS[role]):
                a("s_nop 1")
                a(f"s_sub_u32 s40, s{68+2*q}, s100")
                a("v_mov_b32 v4, s40")
                a(f"buffer_store_dword v4, v3, s[36:39], 0 offen offset:{4*q}")
    def poll(lbl, vaddr, vdst, width=1, tagreg=0, sleep=2):
        a(f"s_mov_b32 s3, {SPIN}")
        a.label(L(lbl))
        w = {1: "dword", 4: "dwordx4"}[width]
        a(f"buffer_load_{w} {v(vdst,width)}, {v(vaddr)}, {s(SY,4)}, 0 offen sc1")
        a("s_waitcnt vmcnt(0)")
        a(f"v_cmp_eq_u32 vcc, s{S_TAG}, {v(vdst+tagreg)}")
        a("s_sub_u32 s3, s3, 1")
        a("s_cmp_eq_u32 s3, 0")
        a(f"s_cbranch_scc1 {L(lbl+'_ok')}")
        a("s_cmp_eq_u64 vcc, -1")
        a(f"s_cbranch_scc1 {L(lbl+'_ok')}")
        a(f"s_sleep {sleep}")
        a(f"s_branch {L(lbl)}")
        a.label(L(lbl + "_ok"))
    def mktag():
        a(f"s_mul_i32 s{S_TAG}, s{S_EP}, 0x01010101")
        a(f"s_add_u32 s{S_TAG}, s{S_TAG}, 0x5A3C96E1")

    a("s_cmp_ge_u32 s2, 256")
    a(f"s_cbranch_scc1 {L('end')}")
    a("s_load_dwordx4 s[4:7], s[0:1], 0")
    a("s_load_dwordx4 s[12:15], s[0:1], 32")
    a("s_load_dwordx4 s[20:23], s[0:1], 64")
    a("s_load_dwordx2 s[8:9], s[0:1], 16")
    a("s_load_dwordx4 s[16:19], s[0:1], 48")
    if timing:
        a("s_memtime s[100:101]")
        a("s_memrealtime s[96:97]")
    a("s_and_b32 s3, s2, 7")
    a("s_lshr_b32 s31, s2, 3")
    if "mapA" in opt:
        a(f"s_and_b32 s{S_RB}, s3, 1")
        a(f"s_lshl_b32 s{S_RB}, s{S_RB}, 3")
        a("s_and_b32 s40, s31, 7")
        a(f"s_add_u32 s{S_RB}, s{S_RB}, s40")
        a(f"s_lshr_b32 s{S_C}, s3, 1")
        a("s_lshr_b32 s40, s31, 3")
        a("s_lshl_b32 s40, s40, 2")
        a(f"s_add_u32 s{S_C}, s{S_C}, s40")
    elif "mapB" in opt:
        a(f"s_and_b32 s{S_RB}, s3, 3")
        a(f"s_lshl_b32 s{S_RB}, s{S_RB}, 2")
        a("s_and_b32 s40, s31, 3")
        a(f"s_add_u32 s{S_RB}, s{S_RB}, s40")
        a(f"s_lshr_b32 s{S_C}, s3, 2")
        a("s_lshr_b32 s40, s31, 2")
        a("s_lshl_b32 s40, s40, 1")
        a(f"s_add_u32 s{S_C}, s{S_C}, s40")
    else:
        a(f"s_lshl_b32 s{S_RB}, s3, 1")
        a("s_and_b32 s40, s31, 1")
        a(f"s_add_u32 s{S_RB}, s{S_RB}, s40")
        a(f"s_lshr_b32 s{S_C}, s31, 1")
    a(f"s_lshl_b32 s{S_TB}, s3, 2")
    a("s_and_b32 s40, s31, 3")
    a(f"s_add_u32 s{S_TB}, s{S_TB}, s40")
    a(f"s_lshr_b32 s{S_J}, s31, 2")
    a(f"s_mov_b32 s{S_AB}, s3")
    a(f"s_mov_b32 s{S_HD}, s31")
    a("v_lshrrev_b32 v1, 6, v0")
    a("v_and_b32 v0, 63, v0")
    a("s_nop 0")
    a(f"v_readfirstlane_b32 s{S_W}, v1")
    a("s_nop 3")
    a(f"s_cmp_ge_u32 s{S_W}, 4")
    a(f"s_cbranch_scc1 {L('loader')}")
    def lds_spin(lbl, base, va, vd, sleep=0):
        a(f"v_and_b32 {v(va)}, 3, v0")
        a(f"v_lshlrev_b32 {v(va)}, 2, {v(va)}")
        a(f"s_mov_b32 s3, {SPIN * 20}")
        a.label(L(lbl))
        a(f"ds_read_b32 {v(vd)}, {v(va)} offset:{base}")
        a("s_waitcnt lgkmcnt(0)")
        a(f"v_cmp_eq_u32 vcc, s{S_TAG}, {v(vd)}")
        a("s_sub_u32 s3, s3, 1")
        a("s_cmp_eq_u32 s3, 0")
        a(f"s_cbranch_scc1 {L(lbl + '_ok')}")
        a("s_cmp_eq_u64 vcc, -1")
        a(f"s_cbranch_scc1 {L(lbl + '_ok')}")
        if sleep: a(f"s_sleep {sleep}")
        a(f"s_branch {L(lbl)}")
        a.label(L(lbl + "_ok"))

    a(f"s_lshl_b32 s40, s{S_RB}, 7")
    a(f"s_lshl_b32 s41, s{S_C}, 3")
    a("s_add_u32 s40, s40, s41")
    a(f"s_lshl_b32 s41, s{S_W}, 1")
    a("s_add_u32 s40, s40, s41")
    a("s_lshl_b32 s40, s40, 10")
    a("v_lshlrev_b32 v8, 4, v0")
    a("s_waitcnt lgkmcnt(0)")
    srd(a, 36, S_X, 2048 * 1024)
    a("buffer_load_dwordx4 v[44:47], v8, s[36:39], s40 offen")
    a("buffer_load_dwordx4 v[48:51], v8, s[36:39], s40 offen offset:1024")
    if "pfc" in opt:
        a(f"s_cmp_lg_u32 s{S_W}, 0")
        a(f"s_cbranch_scc1 {L('npc')}")
        a("s_getpc_b64 s[40:41]")
        a.label(L("pcb"))
        a(f"s_sub_u32 s40, s40, {L('pcb')}-{KNAME}")
        a("s_subb_u32 s41, s41, 0")
        a("v_min_u32 v1, 19, v0")
        a("v_lshlrev_b32 v1, 7, v1")
        a("s_mul_i32 s42, s31, 2560")
        a("v_add_u32 v1, s42, v1")
        a(f"v_min_u32 v1, {L('end')}-{KNAME}, v1")
        a("global_load_dword v255, v1, s[40:41]")
        a.label(L("npc"))
    PFN = [0]
    def pf(w, ptr, nbytes, lines, skip=0):
        PFN[0] += 1
        lb = L('npd%d' % PFN[0])
        a(f"s_cmp_lg_u32 s{S_W}, {w}")
        a(f"s_cbranch_scc1 {lb}")
        srd(a, 52, ptr, nbytes)
        a(f"s_mul_i32 s67, s2, {lines * 128}")
        if skip: a(f"s_add_u32 s67, s67, {skip}")
        a("v_lshlrev_b32 v22, 7, v0")
        a(f"v_min_u32 v22, {(lines - 1) * 128}, v22")
        a("buffer_load_dword v21, v22, s[52:55], s67 offen")
        a.label(lb)
    def pf_w1():
        sk = PFSK * 64
        pf(1, S_WQKV, 512 * 3072, (512 - sk) * 24 // 256, sk * 3072)
        pf(2, S_WG, 512 * 2752, -(-(512 - sk) * 43 // 512), sk * 2752)
        pf(3, S_WU, 512 * 2752, -(-(512 - sk) * 43 // 512), sk * 2752)
    def pf_w2():
        pf(0, S_WD, 1376 * 1024, 43)
        pf(1, S_WO, 512 * 1024, 16)
    if PF1 == -1: pf_w1()
    if PF2 == -1: pf_w2()
    srd(a, SY, S_WS, SY_SIZE, WS_SY)
    a(f"s_load_dword s{S_EP}, s[{SY}:{SY+1}], {SY_EPOCH}")
    a(f"s_and_b32 s42, s{S_W}, 1")
    a(f"s_lshr_b32 s43, s{S_W}, 1")
    a("v_and_b32 v1, 15, v0")
    a("v_lshrrev_b32 v2, 4, v0")
    a("v_lshrrev_b32 v3, 1, v1")
    a("v_xor_b32 v3, v3, v2")
    a("v_lshlrev_b32 v3, 4, v3")
    a("s_lshl_b32 s40, s42, 13")
    a("v_lshl_add_u32 v3, v1, 7, v3")
    a(f"s_add_u32 s40, s40, {SB}")
    a("v_add_u32 v9, s40, v3")
    a("v_xor_b32 v10, 64, v9")
    a(f"s_cmp_lt_u32 s{S_C}, 10")
    a("s_movk_i32 s44, 544")
    a("s_movk_i32 s45, 256")
    a("s_cselect_b32 s44, 288, s44")
    a("s_cselect_b32 s45, 128, s45")
    a("s_mul_i32 s41, s43, s45")
    a("v_lshrrev_b32 v4, 2, v0")
    a("v_mul_u32_u24 v4, s44, v4")
    a("v_and_b32 v5, 3, v0")
    a("v_lshl_add_u32 v4, v5, 3, v4")
    a(f"s_add_u32 s40, s41, {SB + WOFF}")
    a("v_add_u32 v11, s40, v4")
    for b in (1, 2):
        for i in range(3):
            a(f"v_add_u32 {v(9+3*b+i)}, {STG*b}, {v(9+i)}")
    a("s_lshl_b32 s40, s42, 8")
    a("v_lshl_add_u32 v3, v1, 2, s40")
    a("v_lshl_add_u32 v6, v2, 4, s40")
    a("s_lshl_b32 s40, s41, 1")
    a("v_lshl_add_u32 v4, v2, 4, s40")
    a("v_lshl_add_u32 v5, v1, 2, s40")
    a(f"s_lshl_b32 s40, s{S_RB}, 4")
    a(f"s_add_u32 s40, s40, s{S_C}")
    a("s_lshl_b32 s40, s40, 2")
    a(f"s_add_u32 s40, s40, s{S_W}")
    a("s_lshl_b32 s46, s40, 7")
    a(f"s_add_u32 s31, s46, {SY_F}")
    a("s_mov_b32 s44, 0x3b000000")
    a("s_mov_b32 s45, 0x3727c5ac")
    a("v_and_b32 v22, 1, v2")
    a("v_lshrrev_b32 v23, 1, v2")
    a(f"s_cmp_lt_u32 s{S_C}, 10")
    a(f"s_cbranch_scc1 {L('setF')}")
    srd(a, 48, S_WS, 6 << 20, WS_QK)
    a("v_lshl_add_u32 v7, v22, 4, v1")
    a("v_lshlrev_b32 v7, 5, v7")
    a("v_lshl_add_u32 v7, v23, 4, v7")
    a(f"s_sub_u32 s60, s{S_C}, 10")
    a("s_lshl_b32 s60, s60, 1")
    a("s_add_u32 s60, s60, s43")
    a("s_lshl_b32 s60, s60, 19")
    a(f"s_lshl_b32 s40, s{S_RB}, 12")
    a("s_add_u32 s60, s60, s40")
    a("s_lshl_b32 s40, s42, 11")
    a("s_add_u32 s60, s60, s40")
    a(f"s_cmp_lt_u32 s{S_C}, 12")
    a("s_cselect_b32 s66, 0x3eb8aa3b, 1.0")
    a(f"s_branch {L('setD')}")
    a.label(L("setF"))
    srd(a, 48, S_WS, NSLAB_H * 131072, WS_H)
    a("v_lshl_add_u32 v7, v23, 4, v1")
    a("v_lshlrev_b32 v7, 4, v7")
    a("v_lshl_add_u32 v7, v22, 10, v7")
    a(f"s_mul_i32 s40, s{S_C}, 9")
    a("s_lshl_b32 s41, s43, 2")
    a("s_add_u32 s40, s40, s41")
    a(f"s_lshl_b32 s41, s{S_RB}, 13")
    a("s_lshl_b32 s3, s42, 12")
    a("s_add_u32 s41, s41, s3")
    for e in range(5):
        a(f"s_add_u32 s3, s40, {e}")
        a(f"s_lshr_b32 s{60+e}, s3, 1")
        a(f"s_lshl_b32 s{60+e}, s{60+e}, 17")
        a("s_and_b32 s3, s3, 1")
        a("s_lshl_b32 s3, s3, 9")
        a(f"s_add_u32 s{60+e}, s{60+e}, s3")
        a(f"s_add_u32 s{60+e}, s{60+e}, s41")
    a.label(L("setD"))
    a("s_waitcnt vmcnt(0)")
    for k in range(2):
        for d in range(4):
            a(f"v_lshlrev_b32 {v(52+8*k+2*d)}, 16, {v(44+4*k+d)}")
            a(f"v_and_b32 {v(53+8*k+2*d)}, 0xffff0000, {v(44+4*k+d)}")
    for k in range(2):
        a(f"v_add_f32 {v(68+k)}, {v(52+8*k)}, {v(53+8*k)}")
    for e in range(2, 8):
        for k in range(2):
            a(f"v_add_f32 {v(68+k)}, {v(68+k)}, {v(52+8*k+e)}")
    allreduce64x2(a, 68, 69, 72, 73)
    for k in range(2):
        a(f"v_mul_f32 {v(68+k)}, s44, {v(68+k)}")
    for e in range(8):
        for k in range(2):
            a(f"v_sub_f32 {v(52+8*k+e)}, {v(52+8*k+e)}, {v(68+k)}")
    for k in range(2):
        a(f"v_mul_f32 {v(70+k)}, {v(52+8*k)}, {v(52+8*k)}")
    for e in range(1, 8):
        for k in range(2):
            a(f"v_fmac_f32 {v(70+k)}, {v(52+8*k+e)}, {v(52+8*k+e)}")
    allreduce64x2(a, 70, 71, 72, 73)
    for k in range(2):
        q = 70 + k
        a(f"v_mul_f32 {v(q)}, s44, {v(q)}")
        bf16_round(a, q)
        a(f"v_add_f32 {v(q)}, s45, {v(q)}")
        bf16_round(a, q)
        a(f"v_sqrt_f32 {v(q)}, {v(q)}")
    a("s_waitcnt lgkmcnt(0)")
    mktag()
    for k in range(2):
        a(f"v_cvt_pk_bf16_f32 {v(100+k)}, {v(68+k)}, {v(70+k)}")
    a(f"v_mov_b32 v102, s{S_TAG}")
    a(f"v_mov_b32 v103, s{S_TAG}")
    a(f"s_add_u32 s40, s46, {SY_ROW}")
    a("s_mov_b64 exec, 0xff")
    a(f"buffer_store_dwordx4 v[100:103], v8, {s(SY,4)}, s40 offen sc1")
    a("s_mov_b64 exec, -1")
    a(f"s_lshl_b32 s3, s{S_W}, 2")
    a("v_mov_b32 v22, s3")
    a(f"s_not_b32 s3, s{S_TAG}")
    a("v_mov_b32 v23, s3")
    a(f"ds_write_b32 v22, v23 offset:{ST_SY}")
    a(f"ds_write_b32 v22, v23 offset:{ST_SY + 16}")
    a(f"ds_write_b32 v22, v23 offset:{ST_SY + 32}")
    a(f"ds_write_b32 v22, v23 offset:{ST_SY + 48}")
    a("s_waitcnt lgkmcnt(0)")
    ts("c")
    a("s_barrier")
    ts("c")
    a(f"s_cmp_lt_u32 s{S_C}, 10")
    a(f"s_cbranch_scc1 {L('mF')}")
    a(f"s_cmp_lt_u32 s{S_C}, 14")
    a(f"s_cbranch_scc1 {L('mQ')}")
    A = lambda j, i, r: ACC + 4 * (4 * j + i) + r
    BL = "op_sel_hi:[1,0,1]"
    MR = XF
    ts0 = TS.get("c", 0)
    for ty, fw in (("V", 0), ("Q", 0), ("F", 0), ("F", 1)):
        TS["c"] = ts0
        if ty != "V" and fw == 0: a.label(L("m" + ty))
        if ty == "F" and fw == 0:
            a("s_cmp_eq_u32 s43, 1")
            a(f"s_cbranch_scc1 {L('mF1')}")
        if ty == "F" and fw == 1: a.label(L("mF1"))
        def toks(j):
            if ty == "F" and HALF and j % 5 == (4 if fw == 0 else 0):
                return [0, 1] if fw == 0 else [2, 3]
            return [0, 1, 2, 3]
        NTL = 10 if ty == "F" else 8
        lg = Counter(a, "lgkmcnt", 12)
        vm = Counter(a, "vmcnt", 60)
        def q_x(step):
            buf, ks = (step // 2) % 3, step % 2
            return [(f"ds_read_b128 {v(XF+16*ks+4*i,4)}, {v(9+3*buf+ks)} offset:{i*2048}", ("x", step, i)) for i in range(4)]
        def q_w(step, j):
            buf, ks = (step // 2) % 3, step % 2
            out = []
            for hf in range(2):
                off = ((j // 5) * 18432 + ks * 9216 + hf * 4608 + (j % 5) * 32) if ty == "F" else ((2 * ks + hf) * 9216 + j * 32)
                out.append((f"ds_read_b64_tr_b16 {v(WF+4*j+2*hf,2)}, {v(11+3*buf)} offset:{off}", ("w", step, j)))
            return out
        def mfma(j, i, step):
            acc = v(A(j, i, 0), 4)
            c = "0" if step == 0 else acc
            w = v(WF + 4 * j, 4); x = v(XF + 16 * (step % 2) + 4 * i, 4)
            if ty == "V":
                return f"v_mfma_f32_16x16x32_bf16 {acc}, {x}, {w}, {c}"
            return f"v_mfma_f32_16x16x32_bf16 {acc}, {w}, {x}, {c}"
        def q_cs(j):
            if ty == "V":
                l = f"ds_read_b32 {v(WF+4*j)}, v5 offset:{ST_CS + j*64}"
            elif ty == "Q":
                l = f"ds_read_b128 {v(WF+4*j,4)}, v4 offset:{ST_CS + j*64}"
            else:
                l = f"ds_read_b128 {v(WF+4*j,4)}, v4 offset:{ST_CS + ((j//5)*9 + j%5)*64}"
            return [(l, ("cs", j, 0))]
        for l, t in q_x(0): lg.issue(l, t)
        for j in range(NTL):
            if j in (4, 8): lg.wait(("w", 0, j - 4))
            for l, t in q_w(0, j): lg.issue(l, t)
        pend = []
        order = list(range(NTL)) if ty != "F" else ([0, 5, 1, 6, 4, 9, 2, 7, 3, 8] if fw == 0 else [1, 6, 2, 7, 0, 5, 3, 8, 4, 9])
        for step in range(16):
            ks = step % 2
            nstep = step + 1
            hold = []
            if PF1 == step: pf_w1()
            if PF2 == step: pf_w2()
            for gi, j in enumerate(order):
                while any(t == ("w", step, j) or t[:2] == ("x", step) for _, t in pend):
                    l, t = pend.pop(0); lg.issue(l, t)
                lg.wait(("w", step, j), ("x", step, 3))
                for i in toks(j):
                    a(mfma(j, i, step))
                    if pend:
                        l, t = pend.pop(0); lg.issue(l, t)
                new = []
                if nstep < 16:
                    new += q_w(nstep, j)
                    if gi in (2, 3):
                        new += q_x(nstep)[2*(gi-2):2*(gi-2)+2]
                else:
                    new += q_cs(j)
                    if gi in (1, 2, 3, 4):
                        i = gi - 1
                        if ty == "V":
                            new.append((f"ds_read_b128 {v(224+8*i,4)}, v6 offset:{ST_M + 64*i}", ("st", i, 0)))
                            new.append((f"ds_read_b128 {v(228+8*i,4)}, v6 offset:{ST_RS + 64*i}", ("st", i, 1)))
                        else:
                            new.append((f"ds_read_b32 {v(MR+2*i)}, v3 offset:{ST_M + 64*i}", ("st", i, 0)))
                            new.append((f"ds_read_b32 {v(MR+1+2*i)}, v3 offset:{ST_RS + 64*i}", ("st", i, 1)))
                if ks == 1 and gi < BA:
                    hold += new
                    continue
                if ks == 1 and gi == BA:
                    for l, t in pend: lg.issue(l, t)
                    pend = []
                    lg.wait_all()
                    a("s_barrier")
                    if step in (3, 7, 11, 15): ts("c", lg)
                    pend += hold
                pend += new
        for l, t in pend: lg.issue(l, t)
        ts("c", lg)
        def corr(j, i):
            for r in (0, 2):
                a(f"v_pk_fma_f32 {v(A(j,i,r),2)}, {v(WF+4*j+r,2)}, {v(MR+2*i,2)}, {v(A(j,i,r),2)} {BL}")
        def pack_store(j, i0, so, off):
            d = A(j, i0, 0)
            a(f"v_cvt_pk_bf16_f32 {v(d)}, {v(d)}, {v(d+1)}")
            a(f"v_cvt_pk_bf16_f32 {v(d+1)}, {v(d+2)}, {v(d+3)}")
            a(f"v_cvt_pk_bf16_f32 {v(d+2)}, {v(d+4)}, {v(d+5)}")
            a(f"v_cvt_pk_bf16_f32 {v(d+3)}, {v(d+6)}, {v(d+7)}")
            a("s_nop 0")
            a(f"v_permlane16_swap_b32 {v(d)}, {v(d+2)}")
            a(f"v_permlane16_swap_b32 {v(d+1)}, {v(d+3)}")
            pol = "" if ("local" in opt and ty == "F") or "plainall" in opt else "sc1"
            a(f"buffer_store_dwordx4 {v(d,4)}, v7, s[48:51], {s(so)} offen offset:{off} {pol}")
        lg.wait(("st", 3, 1))
        if ty == "F":
            for i in range(4):
                a(f"v_mul_f32 {v(MR+1+2*i)}, {v(MR+1+2*i)}, {v(MR+1+2*i)}")
            for e in order[::2]:
                lg.wait(("cs", e, 0), ("cs", 5 + e, 0))
                for i in toks(e):
                    corr(e, i); corr(5 + e, i)
                    for r in range(4):
                        a(f"v_max_f32 {v(A(e,i,r))}, 0, {v(A(e,i,r))}")
                    for r in (0, 2):
                        a(f"v_pk_mul_f32 {v(A(5+e,i,r),2)}, {v(A(5+e,i,r),2)}, {v(MR+2*i,2)} op_sel:[0,1] op_sel_hi:[1,1]")
                    for r in (0, 2):
                        a(f"v_pk_mul_f32 {v(A(e,i,r),2)}, {v(A(e,i,r),2)}, {v(A(5+e,i,r),2)}")
                    if i & 1:
                        pack_store(e, i - 1, 60 + e, 1024 * (i - 1))
        else:
            if ty == "Q":
                for i in range(4):
                    a(f"v_mul_f32 {v(MR+1+2*i)}, s66, {v(MR+1+2*i)}")
            for j in range(8):
                lg.wait(("cs", j, 0))
                for i in range(4):
                    if ty == "Q":
                        corr(j, i)
                        for r in (0, 2):
                            a(f"v_pk_mul_f32 {v(A(j,i,r),2)}, {v(A(j,i,r),2)}, {v(MR+2*i,2)} op_sel:[0,1] op_sel_hi:[1,1]")
                    else:
                        for r in (0, 2):
                            a(f"v_pk_fma_f32 {v(A(j,i,r),2)}, {v(224+8*i+r,2)}, {v(WF+4*j,2)}, {v(A(j,i,r),2)} {BL}")
                        for r in (0, 2):
                            a(f"v_pk_mul_f32 {v(A(j,i,r),2)}, {v(A(j,i,r),2)}, {v(228+8*i+r,2)}")
                    if i & 1:
                        pack_store(j, i - 1, 60, 512 * (i - 1))
                a("s_add_u32 s60, s60, 0x10000")
        if not (ty == "F" and fw == 1):
            a(f"s_branch {L('mdone')}")
    a.label(L("mdone"))
    ts("c")
    KF, VF, QF = 16, 56, 136
    S = [144, 160, 176]
    NM, O, P, MK = 192, 208, 224, 240
    LP = "" if "local" in opt else "sc1"
    for r in range(4):
        a(f"v_mov_b32 {v(252+r)}, s{S_TAG}")
    a("v_mov_b32 v15, v8")
    a("s_setprio 2")
    srd(a, 56, S_WS, 16 * 131072, WS_O)
    a(f"s_mov_b32 s42, s{S_HD}")
    a(f"s_lshl_b32 s43, s{S_AB}, 2")
    a(f"s_add_u32 s43, s43, s{S_W}")
    a("s_lshl_b32 s45, s43, 6")
    a("v_and_b32 v1, 31, v0")
    a("v_lshrrev_b32 v2, 5, v0")
    a("v_lshlrev_b32 v3, 4, v2")
    a("v_lshlrev_b32 v8, 3, v2")
    a("v_sub_u32 v8, v1, v8")
    a("s_sub_u32 s37, s45, 256")
    a("s_mov_b32 exec_lo, 0xffff0000")
    a("s_mov_b32 exec_hi, 0xffff0000")
    for kt in range(10):
        a(f"s_cmp_ge_i32 s37, {-32*kt}")
        a("s_cselect_b32 s40, 0x3f803f80, 0")
        a("s_mov_b32 s41, s40")
        for r in range(0, 8, 2):
            a(f"v_pk_mov_b32 {v(VF+8*kt+r,2)}, s[40:41], s[40:41]")
    a("s_mov_b64 exec, -1")
    a(f"s_lshl_b32 s40, s{S_W}, 11")
    a(f"s_add_u32 s40, s40, {BQ}")
    a("v_add_u32 v4, s40, v15")
    a("v_and_b32 v5, 0x13, v1")
    a("v_bfe_u32 v7, v1, 2, 1")
    a("v_lshl_or_b32 v5, v7, 3, v5")
    a("v_bfe_u32 v7, v1, 3, 1")
    a("v_lshl_or_b32 v5, v7, 2, v5")
    a("v_lshl_add_u32 v7, v5, 5, v3")
    a("v_add_u32 v7, s40, v7")
    a("v_and_b32 v12, 15, v1")
    a("v_lshl_add_u32 v12, v2, 4, v12")
    a("v_lshlrev_b32 v12, 4, v12")
    a("v_lshrrev_b32 v13, 4, v1")
    a("v_lshl_add_u32 v12, v13, 10, v12")
    a("s_and_b32 s40, s42, 1")
    a("s_lshl_b32 s40, s40, 9")
    a("v_add_u32 v12, s40, v12")
    a("s_lshr_b32 s46, s42, 1")
    a("s_lshl_b32 s46, s46, 17")
    a("s_lshl_b32 s40, s43, 12")
    a("s_add_u32 s46, s46, s40")
    if timing:
        MSL = [4, 6, 8, 10, 12, 14, 16, 18, 60, 62, 64, 66, 24, 40, 0, 20]
    else:
        MSL = [60 + 2 * r for r in range(16)]
    for r in range(16):
        a(f"v_cmp_le_i32 {s(MSL[r],2)}, {(r&7)+16*(r>>3)}, v8")
    a("v_mov_b32 v9, 0xffff")
    a("v_mov_b32 v10, 0xffff0000")
    for p in range(8):
        a(f"v_cndmask_b32 {v(MK+p)}, 0, v9, {s(MSL[2*p],2)}")
        a(f"v_cndmask_b32 v11, 0, v10, {s(MSL[2*p+1],2)}")
        a(f"v_or_b32 {v(MK+p)}, {v(MK+p)}, v11")
    a("s_waitcnt vmcnt(0)")
    a("s_mov_b64 exec, 0xff")
    a(f"buffer_store_dwordx4 v[252:255], v15, {s(SY,4)}, s31 offen sc1")
    a("s_mov_b64 exec, -1")
    a(f"s_lshl_b32 s3, s{S_W}, 2")
    a("v_mov_b32 v14, s3")
    a(f"ds_write_b32 v14, v252 offset:{ST_SY + 16}")
    ts("c")
    lds_spin("msync", ST_SY, 14, 13, sleep=1)
    ts("c")
    vm = Counter(a, "vmcnt", 60)
    lg = Counter(a, "lgkmcnt", 12)
    for t in range(2):
        lg.issue(f"ds_read_b128 {v(QF+4*t,4)}, v4 offset:{32768 + 1024*t}", ("q", t))
    for kt in range(10):
        lg.issue(f"ds_read_b128 {v(KF+4*kt,4)}, v4 offset:{1024*kt}", ("k", kt))
    a("s_mov_b32 exec_lo, 0xffff")
    a("s_mov_b32 exec_hi, 0xffff")
    for kt in range(10):
        lg.wait(("k", kt))
        for hh in range(2):
            lg.issue(f"ds_read_b128 {v(VF+8*kt+4*hh,4)}, v7 offset:{16384 + 1024*kt + 512*hh}", ("v", kt))
    a("s_mov_b64 exec, -1")
    def M(dst, kt, t, c):
        lg.wait(("k", kt), ("q", t))
        a(f"v_mfma_f32_32x32x16_bf16 {v(dst,16)}, {v(KF+4*kt,4)}, {v(QF+4*t,4)}, {c}")
    for t in range(2):
        far, diag = t, t + 8
        full = list(range(t + 1, t + 8))
        MX = 14
        M(O, far, t, "0")
        if t == 0: ts("c", lg)
        M(S[0], full[0], t, "0")
        M(S[1], full[1], t, "0")
        a("s_nop 7")
        def mx(src, first=False):
            for q in range(0, 16, 4):
                if first and q == 0:
                    a(f"v_max_f32 {v(MX)}, {v(src)}, {v(src+1)}")
                    a(f"v_max_f32 {v(MX+1)}, {v(src+2)}, {v(src+3)}")
                else:
                    a(f"v_max3_f32 {v(MX)}, {v(src+q)}, {v(src+q+1)}, {v(MX)}")
                    a(f"v_max3_f32 {v(MX+1)}, {v(src+q+2)}, {v(src+q+3)}, {v(MX+1)}")
        for n in range(7):
            if n + 2 < 7:
                M(S[(n + 2) % 3], full[n + 2], t, "0")
            elif n + 2 == 7:
                M(NM, diag, t, "0")
            if n == 0:
                a("s_nop 1")
            mx(S[n % 3], first=(n == 0))
        for r in range(16):
            a(f"v_cndmask_b32 {v(O+r)}, {v(O+r)}, {v(NM+r)}, {s(MSL[r],2)}")
        mx(O)
        a(f"v_max_f32 {v(MX)}, {v(MX)}, {v(MX+1)}")
        a(f"v_mov_b32 {v(MX+1)}, {v(MX)}")
        a("s_nop 1")
        a(f"v_permlane32_swap_b32 {v(MX)}, {v(MX+1)}")
        a("s_nop 1")
        a(f"v_max_f32 {v(MX)}, {v(MX)}, {v(MX+1)}")
        a(f"v_sub_f32 {v(MX)}, 0, {v(MX)}")
        for r in range(0, 16, 2):
            a(f"v_pk_mov_b32 {v(NM+r,2)}, {v(MX,2)}, {v(MX,2)} op_sel:[0,0]")
        a("s_nop 1")
        if t == 0:
            lg.wait_all(force=False)
            a(f"s_lshl_b32 s3, s{S_W}, 2")
            a("v_mov_b32 v13, s3")
            lg.issue(f"ds_write_b32 v13, v252 offset:{ST_SY + 32}")
        M(S[0], full[0], t, v(NM, 16))
        M(S[2], far, t, v(NM, 16))
        a("s_nop 9")
        first_pv = [True]
        def PV(kt, hh, preg):
            lg.wait(("v", kt))
            c = "0" if first_pv[0] else v(O, 16)
            first_pv[0] = False
            a(f"v_mfma_f32_32x32x16_bf16 {v(O,16)}, {v(VF+8*kt+4*hh,4)}, {v(preg+4*hh,4)}, {c}")
        for n in range(8):
            cur = S[n % 2]
            nxt = S[(n + 1) % 2]
            if n + 1 < 7:
                M(nxt, full[n + 1], t, v(NM, 16))
            elif n + 1 == 7:
                M(nxt, diag, t, v(NM, 16))
            if n == 7:
                for r in range(16):
                    a(f"v_cndmask_b32 {v(cur+r)}, {v(S[2]+r)}, {v(cur+r)}, {s(MSL[r],2)}")
            for r in range(16):
                a(f"v_exp_f32 {v(cur+r)}, {v(cur+r)}")
                if n > 0 and r == 5: PV(full[n - 1], 0, P)
                if n > 0 and r == 11: PV(full[n - 1], 1, P)
            for p in range(8):
                a(f"v_cvt_pk_bf16_f32 {v(P+p)}, {v(cur+2*p)}, {v(cur+2*p+1)}")
        for p in range(8):
            a(f"v_bfi_b32 {v(P+8+p)}, {v(MK+p)}, 0, {v(P+p)}")
            a(f"v_and_b32 {v(P+p)}, {v(MK+p)}, {v(P+p)}")
        a("s_nop 1")
        PV(diag, 0, P); PV(diag, 1, P); PV(far, 0, P + 8); PV(far, 1, P + 8)
        a("s_nop 11")
        a(f"v_rcp_f32 v14, {v(O+8)}")
        a("s_nop 0")
        for r in range(8):
            a(f"v_mul_f32 {v(O+r)}, v14, {v(O+r)}")
        for p in range(4):
            a(f"v_cvt_pk_bf16_f32 {v(248+4*t+p)}, {v(O+2*p)}, {v(O+2*p+1)}")
        vm.issue(f"buffer_store_dwordx4 {v(248+4*t,4)}, v12, s[56:59], s46 offen offset:{2048*t} {LP}")
    ts("c")
    a("s_lshl_b32 s40, s43, 5")
    a("s_add_u32 s40, s40, s42")
    a("s_lshl_b32 s40, s40, 7")
    a(f"s_add_u32 s40, s40, {SY_OF}")
    a("v_lshlrev_b32 v3, 4, v0")
    for r in range(4):
        a(f"v_mov_b32 {v(4+r)}, s{S_TAG}")
    a("s_mov_b64 exec, 0xff")
    a("s_waitcnt vmcnt(0)")
    a(f"buffer_store_dwordx4 v[4:7], v3, {s(SY,4)}, s40 offen {LP}")
    a("s_mov_b64 exec, -1")
    a(f"s_or_b32 s3, s2, s{S_W}")
    a("s_cmp_lg_u32 s3, 0")
    a(f"s_cbranch_scc1 {L('noep')}")
    a("v_lshlrev_b32 v8, 9, v0")
    a(f"v_add_u32 v8, {SY_F}, v8")
    for q in range(4):
        poll(f"pe{q}", 8, 9)
        a("v_add_u32 v8, 0x8000, v8")
    a(f"s_add_u32 s3, s{S_EP}, 1")
    a("v_mov_b32 v9, s3")
    a("v_mov_b32 v8, 0")
    a("s_mov_b64 exec, 1")
    a(f"buffer_store_dword v9, v8, {s(SY,4)}, 0 offen sc1")
    a.label(L("noep"))
    ts_dump("c")
    a(f"s_branch {L('end')}")

    a.label(L("loader"))
    LW = 31
    a(f"s_sub_u32 s{LW}, s{S_W}, 4")
    a("s_setprio 3")
    a("v_lshrrev_b32 v1, 3, v0")
    a("v_and_b32 v2, 7, v0")
    a(f"s_lshl_b32 s54, s{S_RB}, 7")
    a(f"s_lshl_b32 s55, s{LW}, 5")
    a("s_add_u32 s54, s54, s55")
    a("v_lshrrev_b32 v4, 4, v0")
    a("v_xor_b32 v4, v4, v2")
    a("v_add_u32 v3, s54, v1")
    a("v_lshlrev_b32 v3, 10, v3")
    a("v_lshl_add_u32 v10, v4, 4, v3")
    a("v_xor_b32 v11, 64, v10")
    a("v_add_u32 v11, 0x2000, v11")
    a("v_add_u32 v12, 0x4000, v10")
    a("v_add_u32 v13, 0x4000, v11")
    a(f"s_lshl_b32 s56, s{LW}, 12")
    a(f"s_add_u32 s56, s56, {SB}")
    a(f"s_mul_i32 s57, s{LW}, 9216")
    a(f"s_add_u32 s57, s57, {SB+WOFF}")
    a(f"s_cmp_lt_u32 s{S_C}, 10")
    a(f"s_cbranch_scc1 {L('lF')}")
    CA = [112, 117, 122]
    CS = 44
    CF = 64
    G_ACC, XR = 192, 24
    NH, NO = 11, 4
    NT = NH + NO
    BUFORD = [2, 0]
    def slot_off(k):
        sl = k % 6
        return BUFORD[sl // 3], (sl % 3) * 4096
    def w2_list(k):
        b, o = slot_off(k)
        out = []
        for q in range(4):
            kk, sr = (k, 40) if k < NH else (k - NH, 44)
            if ROT and k < NH:
                pre = ""
                if q == 0:
                    pre = (f"s_add_u32 s66, s67, {kk}\ns_cmp_ge_u32 s66, 11\ns_cselect_b32 s58, 11, 0\ns_sub_u32 s66, s66, s58\n"
                           f"s_lshl_b32 s66, s66, 17\ns_add_u32 s66, s66, s57\n")
                out.append((pre + f"s_add_u32 m0, s56, {b*STG + o + q*1024}",
                            f"s_add_u32 s58, s66, {(16*(q&1) + 4*(q>>1))*1024}",
                            f"buffer_load_dwordx4 v2, {s(sr,4)}, s58 offen lds", ("w", k)))
                continue
            out.append((f"s_add_u32 m0, s56, {b*STG + o + q*1024}",
                        f"s_add_u32 s58, s57, {kk*4*32768 + (16*(q&1) + 4*(q>>1))*1024}",
                        f"buffer_load_dwordx4 v2, {s(sr,4)}, s58 offen lds", ("w", k)))
        return out
    def p2_setup():
        srd(a, 40, S_WD, 1376 * 1024)
        srd(a, 44, S_WO, 512 * 1024)
        a("v_lshrrev_b32 v3, 3, v0")
        a("v_and_b32 v4, 7, v0")
        a("v_and_b32 v5, 6, v3")
        a("v_xor_b32 v4, v4, v5")
        a("v_lshlrev_b32 v4, 4, v4")
        a("v_and_b32 v5, 4, v3")
        a("v_add_u32 v3, v3, v5")
        a("v_lshl_add_u32 v4, v3, 10, v4")
        a(f"s_lshl_b32 s3, s{S_J}, 7")
        a("v_add_u32 v2, s3, v4")
        a(f"s_mul_i32 s56, s{LW}, 12288")
        a(f"s_add_u32 s56, s56, {SB}")
        a(f"s_lshl_b32 s57, s{LW}, 15")
        a(f"s_lshl_b32 s59, s{LW}, 17")
        if ROT:
            a(f"s_and_b32 s67, s{S_TB}, 3")
            a(f"s_mul_i32 s67, s67, {ROT[1]}")
            a(f"s_mul_i32 s66, s{S_J}, {ROT[0]}")
            a("s_add_u32 s67, s67, s66")
            for _ in range(4):
                a("s_cmp_ge_u32 s67, 11")
                a("s_cselect_b32 s66, 11, 0")
                a("s_sub_u32 s67, s67, s66")
    ts0 = TS.get("l", 0)
    for ty in ("Q", "F"):
        TS["l"] = ts0
        if ty == "F": a.label(L("lF"))
        stride = 2752 if ty == "F" else 3072
        vm = Counter(a, "vmcnt", 60)
        lg = Counter(a, "lgkmcnt", 12)
        a(f"s_movk_i32 s63, {stride}")
        if ty == "F":
            a(f"s_and_b32 s54, s{LW}, 1")
            a("s_lshl_b32 s54, s54, 5")
            a(f"s_mul_i32 s55, s{S_C}, 288")
            a("s_movk_i32 s64, 3641")
        else:
            a(f"s_lshr_b32 s54, s{LW}, 1")
            a("s_lshl_b32 s54, s54, 5")
            a(f"s_and_b32 s55, s{LW}, 1")
            a("s_lshl_b32 s55, s55, 2")
            a("s_add_u32 s54, s54, s55")
            a(f"s_sub_u32 s55, s{S_C}, 10")
            a("s_lshl_b32 s55, s55, 9")
            a("s_movk_i32 s64, 1928")
            a("v_mov_b32 v9, 0x7fff0000")
        a("s_waitcnt lgkmcnt(0)")
        srd(a, 36, S_X, 2048 * 1024)
        if ty == "F":
            a(f"s_cmp_lt_u32 s{LW}, 2")
            a(f"s_cselect_b32 s40, s{S_WG}, s{S_WU}")
            a(f"s_cselect_b32 s41, s{S_WG+1}, s{S_WU+1}")
            a(f"s_mov_b32 s42, {hex(512*2752)}")
            a("s_mov_b32 s43, 0x00020000")
        else:
            srd(a, 40, S_WQKV, 512 * 3072)
        def dma_list(stage):
            buf = stage % 3
            out = []
            for i in range(4):
                out.append((f"s_add_u32 m0, s56, {buf*STG + i*1024}", f"s_movk_i32 s58, {stage*128}",
                            f"buffer_load_dwordx4 {v(10+i)}, s[36:39], s58 offen lds", ("st", stage)))
            for b in range(9):
                out.append((f"s_add_u32 m0, s57, {buf*STG + b*1024}", f"s_mov_b32 s58, {stage*64*stride}",
                            f"buffer_load_dwordx4 {v(14+b)}, s[40:43], s58 offen lds", ("st", stage)))
            return out
        def run(lst):
            for m, so, ld, tg in lst:
                a(m); a(so); vm.issue(ld, tg)
        run(dma_list(0)[:4])
        for b in range(9):
            a(f"v_add_u32 v3, {64*b}, v0")
            a("v_mul_u32_u24 v4, s64, v3")
            a("v_lshrrev_b32 v4, 16, v4")
            a(f"v_mul_u32_u24 v5, {18 if ty == 'F' else 34}, v4")
            a("v_sub_u32 v5, v3, v5")
            a("v_and_b32 v6, 3, v4")
            a("v_bfe_u32 v7, v4, 2, 2")
            a("v_lshl_add_u32 v6, v7, 3, v6")
            if ty == "F":
                a("v_lshrrev_b32 v7, 4, v4")
                a("v_lshl_add_u32 v6, v7, 2, v6")
            a("v_add_u32 v6, s54, v6")
            a("v_mul_u32_u24 v6, s63, v6")
            a("v_lshl_add_u32 v6, v5, 4, v6")
            if ty == "F":
                a(f"v_add_u32 {v(14+b)}, s55, v6")
            else:
                a("v_cmp_gt_u32 vcc, 32, v5")
                a("v_add_u32 v6, s55, v6")
                a("v_cmp_gt_u32 s[60:61], 16, v4")
                a(f"v_cndmask_b32 v6, v9, v6, vcc")
                a("s_nop 0")
                a(f"v_cndmask_b32 {v(14+b)}, v9, v6, s[60:61]")
            run(dma_list(0)[4+b:5+b])
        run(dma_list(1)[:6])
        srd(a, SY, S_WS, SY_SIZE, WS_SY)
        a(f"s_load_dword s{S_EP}, s[{SY}:{SY+1}], {SY_EPOCH}")
        NC = 5 if ty == "F" else 4
        a("v_lshrrev_b32 v4, 2, v0")
        a(f"v_mul_u32_u24 v4, {288 if ty == 'F' else 544}, v4")
        a("v_and_b32 v5, 3, v0")
        a("v_lshl_add_u32 v4, v5, 3, v4")
        a(f"v_add_u32 v4, {SB+WOFF}, v4")
        for i in range(NC):
            T = 61 + i
            if i < 4:
                a(f"s_add_u32 s{T}, s{LW}, {4*i}")
            else:
                a(f"s_and_b32 s{T}, s{LW}, 1")
                a(f"s_add_u32 s{T}, s{T}, 16")
            a(f"s_lshl_b32 s54, s{T}, 5")
            if ty == "F":
                a(f"s_cmp_ge_u32 s{T}, 9")
                a(f"s_cselect_b32 s55, {18432 - 288}, 0")
                a("s_add_u32 s54, s54, s55")
            a(f"v_add_u32 {v(CA[0]+i)}, s54, v4")
            a(f"v_add_u32 {v(CA[1]+i)}, {STG}, {v(CA[0]+i)}")
            a(f"v_add_u32 {v(CA[2]+i)}, {2*STG}, {v(CA[0]+i)}")
        for r in range(4):
            a(f"v_mov_b32 {v(28+r)}, 0x3f803f80")
        a(f"s_lshl_b32 s54, s{S_RB}, 13")
        a(f"s_lshl_b32 s55, s{LW}, 11")
        a("s_add_u32 s54, s54, s55")
        a(f"s_add_u32 s54, s54, {SY_ROW}")
        a("v_and_b32 v27, 15, v0")
        a("v_lshlrev_b32 v26, 7, v27")
        a("v_add_u32 v26, s54, v26")
        a(f"s_lshl_b32 s3, s{LW}, 7")
        a("v_lshl_add_u32 v27, v27, 3, s3")
        a("s_waitcnt lgkmcnt(0)")
        mktag()
        def colsum(stage, filler):
            buf = stage % 3
            for ks in range(2):
                for i in range(NC):
                    for hf in range(2):
                        off = (ks * 9216 + hf * 4608) if ty == "F" else (2 * ks + hf) * 9216
                        lg.issue(f"ds_read_b64_tr_b16 {v(CF+20*ks+4*i+2*hf,2)}, {v(CA[buf]+i)} offset:{off}", ("c", ks, i))
                run(filler[:2]); filler = filler[2:]
                for i in range(NC):
                    lg.wait(("c", ks, i))
                    acc = v(CS + 4 * i, 4)
                    a(f"v_mfma_f32_16x16x32_bf16 {acc}, {v(CF+20*ks+4*i,4)}, v[28:31], {'0' if stage == 0 and ks == 0 else acc}")
            run(filler)
        ts("l")
        vm.wait(("st", 0))
        a("s_barrier")
        ts("l")
        run(dma_list(1)[6:])
        colsum(0, dma_list(2))
        vm.wait(("st", 1))
        a("s_barrier")
        colsum(1, dma_list(3))
        vm.wait(("st", 2))
        a("s_barrier")
        vm.issue(f"buffer_load_dwordx4 v[104:107], v26, {s(SY,4)}, 0 offen sc1", "gat")
        colsum(2, dma_list(4))
        vm.wait(("st", 3))
        a("s_barrier")
        colsum(3, dma_list(5))
        vm.wait(("st", 4), "gat")
        a(f"v_cmp_eq_u32 vcc, s{S_TAG}, v106")
        a("s_nop 3")
        a("s_cmp_eq_u64 vcc, -1")
        a(f"s_cbranch_scc1 {L('valok' + ty)}")
        poll("pr" + ty, 26, 104, width=4, tagreg=2)
        a.label(L("valok" + ty))
        a("s_barrier")
        colsum(4, dma_list(6))
        for k in range(2):
            a(f"v_lshlrev_b32 {v(108+k)}, 16, {v(104+k)}")
            a(f"v_xor_b32 {v(108+k)}, 0x80000000, {v(108+k)}")
            a(f"v_and_b32 {v(110+k)}, 0xffff0000, {v(104+k)}")
            a(f"v_rcp_f32 {v(110+k)}, {v(110+k)}")
        a("s_nop 0")
        lg.issue(f"ds_write_b64 v27, v[108:109] offset:{ST_M}")
        lg.issue(f"ds_write_b64 v27, v[110:111] offset:{ST_RS}")
        vm.wait(("st", 5))
        a("s_barrier")
        colsum(5, dma_list(7))
        p2_setup()
        lg.wait_all()
        vm.wait(("st", 6))
        a("s_barrier")
        colsum(6, (w2_list(0) + w2_list(1) + w2_list(2)) if (ty == "F" or QD < 2) else [])
        vm.wait(("st", 7))
        a("s_barrier")
        colsum(7, [])
        a("v_lshrrev_b32 v3, 4, v0")
        a("v_lshlrev_b32 v6, 4, v3")
        a("s_nop 5")
        for i in range(NC):
            a(f"s_lshl_b32 s3, s{61+i}, 6")
            a("v_add_u32 v7, s3, v6")
            lg.issue(f"ds_write_b128 v7, {v(CS+4*i,4)} offset:{ST_CS}")
        if ty == "F" or QD < 1:
            run(w2_list(3) + w2_list(4) + w2_list(5))
        if ty == "Q":
            a(f"s_branch {L('ldone')}")
    a.label(L("ldone"))
    vm = Counter(a, "vmcnt", 60)
    lg = Counter(a, "lgkmcnt", 12)
    def dma_w(k):
        for m, so, ld, tg in w2_list(k):
            a(m); a(so); vm.issue(ld, tg)
    BREG = {}
    WREG = {k: 32 + 16 * k for k in range(6)}
    POOL = [128, 144, 160, 176]
    def load_b(k):
        kk, sr = (k, 48) if k < NH else (k - NH, 52)
        BREG[k] = POOL.pop(0)
        if ROT:
            a(f"s_add_u32 s60, s67, {kk}")
            a("s_cmp_ge_u32 s60, 11")
            a("s_cselect_b32 s58, 11, 0")
            a("s_sub_u32 s60, s60, s58")
            a("s_lshl_b32 s60, s60, 19")
            a("s_add_u32 s60, s60, s59")
        else:
            a(f"s_add_u32 s60, s59, {kk*4*131072}")
        for i in range(4):
            vm.issue(f"buffer_load_dwordx4 {v(BREG[k]+4*i,4)}, v1, {s(sr,4)}, s60 offen offset:{1024*i} sc1", ("b", k))
    def rd_w2(k):
        b, o = slot_off(k)
        if k not in WREG:
            WREG[k] = POOL.pop(0)
        for u in range(4):
            for hf in range(2):
                lg.issue(f"ds_read_b64_tr_b16 {v(WREG[k]+4*u+2*hf,2)}, {v(10+4*b+u)} offset:{o + hf*2048}", ("w", k, u))
    for k in range(6): vm.tag[("w", k)] = 0
    assert EW == 0
    a("v_lshrrev_b32 v3, 4, v0")
    a("v_lshrrev_b32 v5, 2, v0")
    a("v_bfe_u32 v6, v5, 1, 2")
    a("v_and_b32 v7, 3, v0")
    a("v_lshlrev_b32 v7, 3, v7")
    a("v_lshl_add_u32 v7, v5, 7, v7")
    a("v_add_u32 v7, s56, v7")
    for u in range(4):
        a(f"v_xor_b32 v8, {u}, v6")
        a(f"v_lshl_add_u32 {v(10+u)}, v8, 5, v7")
        a(f"v_add_u32 {v(18+u)}, {2*STG}, {v(10+u)}")
    a("s_waitcnt lgkmcnt(0)")
    if EW:
        a("s_waitcnt vmcnt(12)")
        for k in range(3):
            if k >= 1:
                lg.wait(("w", k - 1, 1))
            rd_w2(k)
    a("s_barrier")
    if LP0: a("s_setprio 0")
    ts("l", lg)
    if QD:
        a(f"s_cmp_lt_u32 s{S_C}, 10")
        a(f"s_cbranch_scc1 {L('nqd')}")
        lds_spin("qd", ST_SY + 16, 4, 5, sleep=2)
        for k in range(0 if QD == 2 else 3, 6 - QD3): dma_w(k)
        a.label(L("nqd"))
    if EW:
        lg.wait_all()
        for k in range(6, 9): dma_w(k)
        for k in range(3, 6):
            vm.wait(("w", k))
            if k > 3: lg.wait(("w", k - 1, 1))
            rd_w2(k)
        lg.wait_all()
        for k in range(9, 6 + EW): dma_w(k)
    srd(a, 48, S_WS, 6 << 20, WS_QK)
    a(f"s_lshl_b32 s0, s{S_AB}, 8")
    a(f"s_lshl_b32 s1, s{LW}, 7")
    a("s_add_u32 s1, s1, s0")
    a("s_sub_u32 s1, s1, 256")
    a("v_and_b32 v128, 31, v0")
    a("v_lshrrev_b32 v129, 5, v0")
    a("v_lshlrev_b32 v129, 4, v129")
    a("v_and_b32 v130, 0x13, v128")
    a("v_bfe_u32 v131, v128, 2, 1")
    a("v_lshl_or_b32 v130, v131, 3, v130")
    a("v_bfe_u32 v131, v128, 3, 1")
    a("v_lshl_or_b32 v130, v131, 2, v130")
    a("v_add_u32 v130, s1, v130")
    for n in range(4):
        a(f"v_add_u32 {v(132+n)}, {32*n}, v130")
        a(f"v_max_i32 {v(132+n)}, 0, {v(132+n)}")
        a(f"v_lshl_add_u32 {v(132+n)}, {v(132+n)}, 5, v129")
    a(f"s_lshl_b32 s3, s{LW}, 6")
    a("s_add_u32 s3, s3, s0")
    a("v_add_u32 v136, s3, v128")
    a("v_lshl_add_u32 v136, v136, 5, v129")
    a("v_lshlrev_b32 v137, 4, v0")
    a(f"s_lshr_b32 s5, s{S_HD}, 3")
    a("s_lshl_b32 s5, s5, 8")
    a(f"s_add_u32 s5, s5, {SY_F + 10*512}")
    a(f"s_lshl_b32 s3, s{S_AB}, 1")
    a(f"s_add_u32 s4, s3, s{LW}")
    a("s_sub_u32 s4, s4, 2")
    a("s_max_i32 s4, s4, 0")
    a("s_lshl_b32 s4, s4, 13")
    a("s_add_u32 s6, s4, s5")
    a("s_add_u32 s6, s6, 1024")
    a(f"s_lshr_b32 s4, s{LW}, 1")
    a("s_add_u32 s4, s4, s3")
    a("s_lshl_b32 s4, s4, 13")
    a("s_add_u32 s4, s4, s5")
    a(f"s_and_b32 s5, s{LW}, 1")
    a("s_lshl_b32 s5, s5, 7")
    a("s_add_u32 s4, s4, s5")
    a("v_and_b32 v138, 1, v0")
    a("v_lshlrev_b32 v138, 7, v138")
    a("v_bfe_u32 v139, v0, 1, 1")
    a("v_lshl_add_u32 v138, v139, 10, v138")
    a("v_add_u32 v138, s6, v138")
    a("v_mov_b32 v139, s4")
    a("v_and_b32 v140, 4, v0")
    a("v_cmp_eq_u32 vcc, 0, v140")
    a("s_nop 1")
    a("v_cndmask_b32 v138, v139, v138, vcc")
    a(f"s_lshl_b32 s4, s{S_HD}, 16")
    a("s_add_u32 s5, s4, 0x200000")
    a("s_lshl_b32 s6, s1, 5")
    a("s_add_u32 s6, s6, s4")
    a("s_add_u32 s6, s6, 0x400000")
    a("s_cmp_ge_i32 s1, 0")
    a("s_cselect_b32 s6, s6, 0x7fff0000")
    a(f"s_lshl_b32 s7, s{LW}, 12")
    a(f"s_add_u32 s7, s7, {BQ}")
    a(f"s_lshl_b32 s0, s{LW}, 11")
    a(f"s_add_u32 s0, s0, {BQ + 32768}")
    poll("pq", 138, 4, sleep=QSL)
    vm.done = vm.n
    ts("l")
    a("s_mov_b32 m0, s0")
    a("s_nop 0")
    for n in range(2):
        a(f"buffer_load_dwordx4 v136, s[48:51], s4 offen offset:{1024*n} sc1 lds")
    for n in range(4):
        a(f"s_add_u32 m0, s7, {1024*n}")
        a("s_nop 0")
        a(f"buffer_load_dwordx4 {v(132+n)}, s[48:51], s5 offen sc1 lds")
    a("s_add_u32 m0, s7, 16384")
    a("s_nop 0")
    for n in range(4):
        a(f"buffer_load_dwordx4 v137, s[48:51], s6 offen offset:{1024*n} sc1 lds")
    if not EW:
        for k in range(6):
            if k >= 1:
                lg.wait(("w", k - 1, 1))
            rd_w2(k)
    a(f"s_lshl_b32 s3, s{LW}, 2")
    a("v_mov_b32 v4, s3")
    a(f"v_mov_b32 v5, s{S_TAG}")
    a("s_waitcnt vmcnt(0)")
    a(f"ds_write_b32 v4, v5 offset:{ST_SY}")
    ts("l", lg)
    srd(a, 48, S_WS, NSLAB_H * 131072, WS_H)
    srd(a, 52, S_WS, 16 * 131072, WS_O)
    a(f"s_lshl_b32 s3, s{S_TB}, 12")
    a("v_lshl_add_u32 v1, v0, 4, s3")
    a("v_and_b32 v8, 15, v0")
    a("v_lshlrev_b32 v9, 10, v8")
    a(f"s_lshl_b32 s3, s{S_TB}, 16")
    a(f"s_lshl_b32 s61, s{LW}, 14")
    a("s_add_u32 s3, s3, s61")
    a(f"s_lshl_b32 s61, s{S_J}, 7")
    a("s_add_u32 s3, s3, s61")
    a("v_add_u32 v9, s3, v9")
    a("v_and_b32 v4, 1, v3")
    a("v_lshl_add_u32 v8, v4, 5, v9")
    a("v_lshrrev_b32 v4, 1, v3")
    a("v_lshl_add_u32 v8, v4, 4, v8")
    a("v_lshl_add_u32 v9, v3, 3, v9")
    a("v_lshrrev_b32 v4, 1, v0")
    a("v_min_u32 v4, 9, v4")
    a("v_lshlrev_b32 v4, 9, v4")
    a("v_and_b32 v5, 1, v0")
    a("v_lshl_add_u32 v4, v5, 8, v4")
    a(f"s_lshr_b32 s3, s{S_TB}, 1")
    a("s_lshl_b32 s3, s3, 13")
    a(f"s_and_b32 s61, s{S_TB}, 1")
    a("s_lshl_b32 s61, s61, 7")
    a("s_add_u32 s3, s3, s61")
    a(f"s_add_u32 s3, s3, {SY_F}")
    a("v_add_u32 v22, s3, v4")
    a("v_and_b32 v4, 31, v0")
    a("v_lshlrev_b32 v4, 7, v4")
    a(f"s_lshl_b32 s3, s{S_TB}, 12")
    a(f"s_add_u32 s3, s3, {SY_OF}")
    a("v_add_u32 v23, s3, v4")
    a("s_setprio 0")
    lds_spin("lsync0", ST_SY, 4, 5, sleep=2)
    lds_spin("lsync", ST_SY + 16, 4, 5, sleep=2)
    lg.done = lg.n
    for k in range(6 + EW, 6 + max(RF, EW)): dma_w(k)
    ts("l", lg)
    poll("ph", 22, 4, sleep=HSL)
    vm.done = vm.n
    ts("l", lg)
    nb = [0]
    def more_b(limit, reserve):
        while nb[0] < limit and len(POOL) > reserve:
            load_b(nb[0]); nb[0] += 1
    more_b(NH, 0)
    RQ = list(range(6 + max(RF, EW), 12))
    for _ in range(RF2):
        if RQ: dma_w(RQ.pop(0))
    def mm(k):
        for u in range(4):
            lg.wait(("w", k, u))
            for i in range(4):
                acc = v(G_ACC + 4 * (4 * u + i), 4)
                a(f"v_mfma_f32_16x16x32_bf16 {acc}, {v(WREG[k]+4*u,4)}, {v(BREG[k]+4*i,4)}, {'0' if k == 0 else acc}")
        POOL.append(BREG[k]); POOL.append(WREG[k])
    for k in range(NH):
        if k + 1 >= 6 and k + 1 < NH:
            vm.wait(("w", k + 1))
            rd_w2(k + 1)
        vm.wait(("b", k))
        mm(k)
        more_b(NH, 1 if k >= 3 else 0)
        if RQ: dma_w(RQ.pop(0))
        if k == 5:
            for u in range(4):
                vm.issue(f"buffer_load_dwordx2 {v(XR+2*u,2)}, v9, s[36:39], 0 offen offset:{32*u}", "x")
        if k in (6, 7, 8):
            dma_w(k + 6)
    lds_spin("msr", ST_SY + 32, 4, 5)
    lg.done = lg.n
    a("v_lshlrev_b32 v4, 4, v0")
    for i in range(4):
        a(f"s_sub_u32 s3, s{LW}, {i + 1}")
        a("s_and_b32 s3, s3, 3")
        a("s_cmp_eq_u32 s3, 3")
        a(f"s_cbranch_scc1 {L('skw%d' % i)}")
        a(f"s_add_u32 s3, s3, {3*i}")
        a("s_lshl_b32 s3, s3, 12")
        a(f"s_add_u32 s3, s3, {BQ}")
        a("v_add_u32 v5, s3, v4")
        for u in range(4):
            a(f"ds_write_b128 v5, {v(G_ACC+4*(4*u+i),4)} offset:{u*1024}")
        a(f"s_branch {L('dnw%d' % i)}")
        a.label(L('skw%d' % i))
        for u in range(4):
            for r in (0, 2):
                a(f"v_pk_mov_b32 {v(32+4*u+r,2)}, {v(G_ACC+4*(4*u+i)+r,2)}, {v(G_ACC+4*(4*u+i)+r,2)} op_sel:[0,1]")
        a.label(L('dnw%d' % i))
    a(f"s_lshl_b32 s3, s{LW}, 2")
    a("v_mov_b32 v5, s3")
    a(f"v_mov_b32 v6, s{S_TAG}")
    a("s_waitcnt vmcnt(0) lgkmcnt(0)")
    a(f"ds_write_b32 v5, v6 offset:{ST_SY + 48}")
    for u in range(4):
        for d in range(2):
            a(f"v_lshlrev_b32 v6, 16, {v(XR+2*u+d)}")
            a(f"v_and_b32 v7, 0xffff0000, {v(XR+2*u+d)}")
            a(f"v_pk_add_f32 {v(32+4*u+2*d,2)}, {v(32+4*u+2*d,2)}, v[6:7]")
    a(f"s_mul_i32 s3, s{LW}, 12288")
    a(f"s_add_u32 s0, s3, {BQ}")
    a("v_add_u32 v14, s0, v4")
    for u in range(4):
        a(f"v_subrev_u32 {v(10+u)}, s3, {v(10+u)}")
        a(f"v_subrev_u32 {v(18+u)}, s3, {v(18+u)}")
    a(f"s_lshl_b32 s3, s{LW}, 10")
    a("v_add_u32 v1, s3, v1")
    srd(a, 40, S_OUT, 2048 * 1024)
    ts("l")
    poll("po", 23, 4, sleep=OSL)
    ts("l")
    lg = Counter(a, "lgkmcnt", 12)
    vm = Counter(a, "vmcnt", 60)
    for n in range(16):
        a(f"s_mov_b32 s60, {n*131072}")
        vm.issue(f"buffer_load_dwordx4 {v(128+4*n,4)}, v1, s[52:55], s60 offen sc1", ("o", n))
    lds_spin("lsr", ST_SY + 48, 5, 6)
    for sl in range(3):
        for u in range(4):
            lg.issue(f"ds_read_b128 {v(192+16*sl+4*u,4)}, v14 offset:{sl*4096 + u*1024}", ("p", sl))
    WBL = [48, 64, 80, 96, 112]
    NPRE = len(WBL)
    def rd_wo(n):
        b, o = slot_off(NH + (n >> 2))
        for u in range(4):
            for hf in range(2):
                lg.issue(f"ds_read_b64_tr_b16 {v(WBL[n % NPRE]+4*u+2*hf,2)}, {v(10+4*b+u)} offset:{(n&3)*12288 + o + hf*2048}", ("wo", n, u))
    for sl in range(3):
        lg.wait(("p", sl))
        for e in range(0, 16, 2):
            a(f"v_pk_add_f32 {v(32+e,2)}, {v(32+e,2)}, {v(192+16*sl+e,2)}")
        rd_wo(sl)
    for n in range(16):
        if n + 3 < 16:
            lg.wait(("wo", n + 2, 1))
            rd_wo(n + 3)
        vm.wait(("o", n))
        for u in range(4):
            lg.wait(("wo", n, u))
            a(f"v_mfma_f32_16x16x32_bf16 {v(32+4*u,4)}, {v(WBL[n % NPRE]+4*u,4)}, {v(128+4*n,4)}, {v(32+4*u,4)}")
    ts("l", lg)
    a("s_nop 7")
    for h2 in range(2):
        d = 32 + 8 * h2
        a(f"v_cvt_pk_bf16_f32 {v(d)}, {v(d)}, {v(d+1)}")
        a(f"v_cvt_pk_bf16_f32 {v(d+1)}, {v(d+2)}, {v(d+3)}")
        a(f"v_cvt_pk_bf16_f32 {v(d+2)}, {v(d+4)}, {v(d+5)}")
        a(f"v_cvt_pk_bf16_f32 {v(d+3)}, {v(d+6)}, {v(d+7)}")
        a("s_nop 0")
        a(f"v_permlane16_swap_b32 {v(d)}, {v(d+2)}")
        a(f"v_permlane16_swap_b32 {v(d+1)}, {v(d+3)}")
        a(f"buffer_store_dwordx4 {v(d,4)}, v8, s[40:43], 0 offen offset:{64*h2} {OP}")
    ts_dump("l")
    a.label(L("end"))
    a("s_endpgm")
```

```python
from asmlib import *

WS_QK = 0
WS_VT = 4 << 20
WS_H = 18 << 20
NSLAB_H = 43
WS_O = 26 << 20
WS_SY = 14 << 20
SY_EPOCH = 0
SY_ROW = 0x20000
SY_F = 0x40000
SY_OF = 0x80000
SY_SIZE = 0xA0000
WS_TIM = 16 << 20

STG = 53248
XB = 16384
IMG = 12288
ST_M = 0
ST_RS = 512
ST_CS = 1024
ST_SY = 2304
SB = 4096
LDS_BYTES = SB + 3 * STG

ACC = 96
WF = 56
XF = 24
SPIN = 300000

S_X, S_WQKV, S_WO, S_WG, S_WU, S_WD, S_OUT, S_DBG, S_WS = 4, 6, 8, 12, 14, 16, 18, 20, 22
S_RB, S_C, S_W, S_TB, S_J, S_TAG, S_EP = 24, 25, 26, 27, 28, 29, 30
SY = 32
KNAME = 'parallel_sum__sliding_block__glu_gated_reglu__prompt_kernel'
S_AB, S_HD = 10, 11
BQ = SB + STG
WOFF = XB

def bf16_round(a, r):
    a(f"v_cvt_pk_bf16_f32 {v(r)}, {v(r)}, {v(r)}")
    a(f"v_lshlrev_b32 {v(r)}, 16, {v(r)}")

def allreduce64x2(a, r0, r1, t0, t1):
    for c in ("quad_perm:[1,0,3,2]", "quad_perm:[2,3,0,1]", "row_half_mirror", "row_mirror"):
        a("s_nop 0")
        a(f"v_add_f32_dpp {v(r0)}, {v(r0)}, {v(r0)} {c} row_mask:0xf bank_mask:0xf")
        a(f"v_add_f32_dpp {v(r1)}, {v(r1)}, {v(r1)} {c} row_mask:0xf bank_mask:0xf")
    for sw in ("v_permlane16_swap_b32", "v_permlane32_swap_b32"):
        a(f"v_mov_b32 {v(t0)}, {v(r0)}")
        a(f"v_mov_b32 {v(t1)}, {v(r1)}")
        a("s_nop 0")
        a(f"{sw} {v(r0)}, {v(t0)}")
        a(f"{sw} {v(r1)}, {v(t1)}")
        a("s_nop 0")
        a(f"v_add_f32 {v(r0)}, {v(r0)}, {v(t0)}")
        a(f"v_add_f32 {v(r1)}, {v(r1)}, {v(t1)}")

def body(a, name, timing=False, opt=(), BA=1, QSL=2, HSL=2, LP0=1, PF1=-1, PF2=4, PFSK=2, RF=6, RF2=2, EW=0, QD=1, QD3=0, OSL=2, ROT=None, HALF=1, OP='', RDE=6, QS=65536, HS=131072, P1N=6, ATP=2, LP2=0, ATV=2):
    L = lambda x: f"{name}_{x}"
    TS = {}
    def ts(role, lg=None):
        if timing:
            i = TS.get(role, 0)
            assert i < 14
            a(f"s_memtime s[{68+2*i}:{69+2*i}]")
            a("s_waitcnt lgkmcnt(0)")
            if lg is not None: lg.done = lg.n
            TS[role] = i + 1
    def ts_dump(role):
        if timing:
            a("s_mov_b64 exec, -1")
            a("s_waitcnt vmcnt(0)")
            ts(role)
            a("s_memrealtime s[98:99]")
            a("s_waitcnt lgkmcnt(0)")
            srd(a, 36, S_WS, 1 << 20, WS_TIM)
            a("s_lshl_b32 s3, s2, 9")
            a(f"s_lshl_b32 s40, s{S_W}, 6")
            a("s_add_u32 s3, s3, s40")
            a("v_mov_b32 v3, s3")
            a("v_mov_b32 v4, s96")
            a("v_mov_b32 v5, s98")
            a("buffer_store_dwordx2 v[4:5], v3, s[36:39], 0 offen offset:56")
            for q in range(TS[role]):
                a("s_nop 1")
                a(f"s_sub_u32 s40, s{68+2*q}, s100")
                a("v_mov_b32 v4, s40")
                a(f"buffer_store_dword v4, v3, s[36:39], 0 offen offset:{4*q}")
    def poll(lbl, vaddr, vdst, width=1, tagreg=0, sleep=2):
        a(f"s_mov_b32 s3, {SPIN}")
        a.label(L(lbl))
        w = {1: "dword", 4: "dwordx4"}[width]
        a(f"buffer_load_{w} {v(vdst,width)}, {v(vaddr)}, {s(SY,4)}, 0 offen sc1")
        a("s_waitcnt vmcnt(0)")
        a(f"v_cmp_eq_u32 vcc, s{S_TAG}, {v(vdst+tagreg)}")
        a("s_sub_u32 s3, s3, 1")
        a("s_cmp_eq_u32 s3, 0")
        a(f"s_cbranch_scc1 {L(lbl+'_ok')}")
        a("s_cmp_eq_u64 vcc, -1")
        a(f"s_cbranch_scc1 {L(lbl+'_ok')}")
        a(f"s_sleep {sleep}")
        a(f"s_branch {L(lbl)}")
        a.label(L(lbl + "_ok"))
    def mktag():
        a(f"s_mul_i32 s{S_TAG}, s{S_EP}, 0x01010101")
        a(f"s_add_u32 s{S_TAG}, s{S_TAG}, 0x5A3C96E1")

    a("s_cmp_ge_u32 s2, 256")
    a(f"s_cbranch_scc1 {L('end')}")
    a("s_load_dwordx4 s[4:7], s[0:1], 0")
    a("s_load_dwordx4 s[12:15], s[0:1], 32")
    a("s_load_dwordx4 s[20:23], s[0:1], 64")
    a("s_load_dwordx2 s[8:9], s[0:1], 16")
    a("s_load_dwordx4 s[16:19], s[0:1], 48")
    if timing:
        a("s_memtime s[100:101]")
        a("s_memrealtime s[96:97]")
    a("s_and_b32 s3, s2, 7")
    a("s_lshr_b32 s31, s2, 3")
    if "mapA" in opt:
        a(f"s_and_b32 s{S_RB}, s3, 1")
        a(f"s_lshl_b32 s{S_RB}, s{S_RB}, 3")
        a("s_and_b32 s40, s31, 7")
        a(f"s_add_u32 s{S_RB}, s{S_RB}, s40")
        a(f"s_lshr_b32 s{S_C}, s3, 1")
        a("s_lshr_b32 s40, s31, 3")
        a("s_lshl_b32 s40, s40, 2")
        a(f"s_add_u32 s{S_C}, s{S_C}, s40")
    elif "mapB" in opt:
        a(f"s_and_b32 s{S_RB}, s3, 3")
        a(f"s_lshl_b32 s{S_RB}, s{S_RB}, 2")
        a("s_and_b32 s40, s31, 3")
        a(f"s_add_u32 s{S_RB}, s{S_RB}, s40")
        a(f"s_lshr_b32 s{S_C}, s3, 2")
        a("s_lshr_b32 s40, s31, 2")
        a("s_lshl_b32 s40, s40, 1")
        a(f"s_add_u32 s{S_C}, s{S_C}, s40")
    else:
        a(f"s_lshl_b32 s{S_RB}, s3, 1")
        a("s_and_b32 s40, s31, 1")
        a(f"s_add_u32 s{S_RB}, s{S_RB}, s40")
        a(f"s_lshr_b32 s{S_C}, s31, 1")
    a(f"s_lshl_b32 s{S_TB}, s3, 2")
    a("s_and_b32 s40, s31, 3")
    a(f"s_add_u32 s{S_TB}, s{S_TB}, s40")
    a(f"s_lshr_b32 s{S_J}, s31, 2")
    a(f"s_mov_b32 s{S_AB}, s3")
    a(f"s_mov_b32 s{S_HD}, s31")
    a("v_lshrrev_b32 v1, 6, v0")
    a("v_and_b32 v0, 63, v0")
    a("s_nop 0")
    a(f"v_readfirstlane_b32 s{S_W}, v1")
    a("s_nop 3")
    a(f"s_cmp_ge_u32 s{S_W}, 4")
    a(f"s_cbranch_scc1 {L('loader')}")
    def lds_spin(lbl, base, va, vd, sleep=0):
        a(f"v_and_b32 {v(va)}, 3, v0")
        a(f"v_lshlrev_b32 {v(va)}, 2, {v(va)}")
        a(f"s_mov_b32 s3, {SPIN * 20}")
        a.label(L(lbl))
        a(f"ds_read_b32 {v(vd)}, {v(va)} offset:{base}")
        a("s_waitcnt lgkmcnt(0)")
        a(f"v_cmp_eq_u32 vcc, s{S_TAG}, {v(vd)}")
        a("s_sub_u32 s3, s3, 1")
        a("s_cmp_eq_u32 s3, 0")
        a(f"s_cbranch_scc1 {L(lbl + '_ok')}")
        a("s_cmp_eq_u64 vcc, -1")
        a(f"s_cbranch_scc1 {L(lbl + '_ok')}")
        if sleep: a(f"s_sleep {sleep}")
        a(f"s_branch {L(lbl)}")
        a.label(L(lbl + "_ok"))

    a(f"s_lshl_b32 s40, s{S_RB}, 7")
    a(f"s_lshl_b32 s41, s{S_C}, 3")
    a("s_add_u32 s40, s40, s41")
    a(f"s_lshl_b32 s41, s{S_W}, 1")
    a("s_add_u32 s40, s40, s41")
    a("s_lshl_b32 s40, s40, 10")
    a("v_lshlrev_b32 v8, 4, v0")
    a("s_waitcnt lgkmcnt(0)")
    srd(a, 36, S_X, 2048 * 1024)
    a("buffer_load_dwordx4 v[44:47], v8, s[36:39], s40 offen")
    a("buffer_load_dwordx4 v[48:51], v8, s[36:39], s40 offen offset:1024")
    if "pfc" in opt:
        a(f"s_cmp_lg_u32 s{S_W}, 0")
        a(f"s_cbranch_scc1 {L('npc')}")
        a("s_getpc_b64 s[40:41]")
        a.label(L("pcb"))
        a(f"s_sub_u32 s40, s40, {L('pcb')}-{KNAME}")
        a("s_subb_u32 s41, s41, 0")
        a("v_min_u32 v1, 19, v0")
        a("v_lshlrev_b32 v1, 7, v1")
        a("s_mul_i32 s42, s31, 2560")
        a("v_add_u32 v1, s42, v1")
        a(f"v_min_u32 v1, {L('end')}-{KNAME}, v1")
        a("global_load_dword v255, v1, s[40:41]")
        a.label(L("npc"))
    PFN = [0]
    def pf(w, ptr, nbytes, lines, skip=0):
        PFN[0] += 1
        lb = L('npd%d' % PFN[0])
        a(f"s_cmp_lg_u32 s{S_W}, {w}")
        a(f"s_cbranch_scc1 {lb}")
        srd(a, 52, ptr, nbytes)
        a(f"s_mul_i32 s67, s2, {lines * 128}")
        if skip: a(f"s_add_u32 s67, s67, {skip}")
        a("v_lshlrev_b32 v22, 7, v0")
        a(f"v_min_u32 v22, {(lines - 1) * 128}, v22")
        a("buffer_load_dword v21, v22, s[52:55], s67 offen")
        a.label(lb)
    def pf_w1():
        sk = PFSK * 64
        pf(1, S_WQKV, 512 * 3072, (512 - sk) * 24 // 256, sk * 3072)
        pf(2, S_WG, 512 * 2752, -(-(512 - sk) * 43 // 512), sk * 2752)
        pf(3, S_WU, 512 * 2752, -(-(512 - sk) * 43 // 512), sk * 2752)
    def pf_w2():
        pf(0, S_WD, 1376 * 1024, 43)
        pf(1, S_WO, 512 * 1024, 16)
    if PF1 == -1: pf_w1()
    if PF2 == -1: pf_w2()
    srd(a, SY, S_WS, SY_SIZE, WS_SY)
    a(f"s_load_dword s{S_EP}, s[{SY}:{SY+1}], {SY_EPOCH}")
    a(f"s_and_b32 s42, s{S_W}, 1")
    a(f"s_lshr_b32 s43, s{S_W}, 1")
    a("v_and_b32 v1, 15, v0")
    a("v_lshrrev_b32 v2, 4, v0")
    a("v_lshrrev_b32 v3, 1, v1")
    a("v_xor_b32 v3, v3, v2")
    a("v_lshlrev_b32 v3, 4, v3")
    a("s_lshl_b32 s40, s42, 13")
    a("v_lshl_add_u32 v3, v1, 7, v3")
    a(f"s_add_u32 s40, s40, {SB}")
    a("v_add_u32 v9, s40, v3")
    a("v_xor_b32 v10, 64, v9")
    a(f"s_cmp_lt_u32 s{S_C}, 10")
    a("s_movk_i32 s44, 544")
    a("s_movk_i32 s45, 256")
    a("s_cselect_b32 s44, 288, s44")
    a("s_cselect_b32 s45, 128, s45")
    a("s_mul_i32 s41, s43, s45")
    a("v_lshrrev_b32 v4, 2, v0")
    a("v_mul_u32_u24 v4, s44, v4")
    a("v_and_b32 v5, 3, v0")
    a("v_lshl_add_u32 v4, v5, 3, v4")
    a(f"s_add_u32 s40, s41, {SB + WOFF}")
    a("v_add_u32 v11, s40, v4")
    for b in (1, 2):
        for i in range(3):
            a(f"v_add_u32 {v(9+3*b+i)}, {STG*b}, {v(9+i)}")
    a("s_lshl_b32 s40, s42, 8")
    a("v_lshl_add_u32 v3, v1, 2, s40")
    a("v_lshl_add_u32 v6, v2, 4, s40")
    a("s_lshl_b32 s40, s41, 1")
    a("v_lshl_add_u32 v4, v2, 4, s40")
    a("v_lshl_add_u32 v5, v1, 2, s40")
    a(f"s_lshl_b32 s40, s{S_RB}, 4")
    a(f"s_add_u32 s40, s40, s{S_C}")
    a("s_lshl_b32 s40, s40, 2")
    a(f"s_add_u32 s40, s40, s{S_W}")
    a("s_lshl_b32 s46, s40, 7")
    a(f"s_add_u32 s31, s46, {SY_F}")
    a("s_mov_b32 s44, 0x3b000000")
    a("s_mov_b32 s45, 0x3727c5ac")
    a("v_and_b32 v22, 1, v2")
    a("v_lshrrev_b32 v23, 1, v2")
    a(f"s_cmp_lt_u32 s{S_C}, 10")
    a(f"s_cbranch_scc1 {L('setF')}")
    srd(a, 48, S_WS, 96 * QS, WS_QK)
    a("v_lshl_add_u32 v7, v22, 4, v1")
    a("v_lshlrev_b32 v7, 5, v7")
    a("v_lshl_add_u32 v7, v23, 4, v7")
    a(f"s_sub_u32 s60, s{S_C}, 10")
    a("s_lshl_b32 s60, s60, 1")
    a("s_add_u32 s60, s60, s43")
    a(f"s_mul_i32 s60, s60, {8 * QS}")
    a(f"s_lshl_b32 s40, s{S_RB}, 12")
    a("s_add_u32 s60, s60, s40")
    a("s_lshl_b32 s40, s42, 11")
    a("s_add_u32 s60, s60, s40")
    a(f"s_cmp_lt_u32 s{S_C}, 12")
    a("s_cselect_b32 s66, 0x3eb8aa3b, 1.0")
    a(f"s_branch {L('setD')}")
    a.label(L("setF"))
    srd(a, 48, S_WS, NSLAB_H * HS, WS_H)
    a("v_lshl_add_u32 v7, v23, 4, v1")
    a("v_lshlrev_b32 v7, 4, v7")
    a("v_lshl_add_u32 v7, v22, 10, v7")
    a(f"s_mul_i32 s40, s{S_C}, 9")
    a("s_lshl_b32 s41, s43, 2")
    a("s_add_u32 s40, s40, s41")
    a(f"s_lshl_b32 s41, s{S_RB}, 13")
    a("s_lshl_b32 s3, s42, 12")
    a("s_add_u32 s41, s41, s3")
    for e in range(5):
        a(f"s_add_u32 s3, s40, {e}")
        a(f"s_lshr_b32 s{60+e}, s3, 1")
        a(f"s_mul_i32 s{60+e}, s{60+e}, {HS}")
        a("s_and_b32 s3, s3, 1")
        a("s_lshl_b32 s3, s3, 9")
        a(f"s_add_u32 s{60+e}, s{60+e}, s3")
        a(f"s_add_u32 s{60+e}, s{60+e}, s41")
    a.label(L("setD"))
    a("s_waitcnt vmcnt(0)")
    if PF1 == -2: pf_w1()
    for k in range(2):
        for d in range(4):
            a(f"v_lshlrev_b32 {v(52+8*k+2*d)}, 16, {v(44+4*k+d)}")
            a(f"v_and_b32 {v(53+8*k+2*d)}, 0xffff0000, {v(44+4*k+d)}")
    for k in range(2):
        a(f"v_add_f32 {v(68+k)}, {v(52+8*k)}, {v(53+8*k)}")
    for e in range(2, 8):
        for k in range(2):
            a(f"v_add_f32 {v(68+k)}, {v(68+k)}, {v(52+8*k+e)}")
    allreduce64x2(a, 68, 69, 72, 73)
    for k in range(2):
        a(f"v_mul_f32 {v(68+k)}, s44, {v(68+k)}")
    for e in range(8):
        for k in range(2):
            a(f"v_sub_f32 {v(52+8*k+e)}, {v(52+8*k+e)}, {v(68+k)}")
    for k in range(2):
        a(f"v_mul_f32 {v(70+k)}, {v(52+8*k)}, {v(52+8*k)}")
    for e in range(1, 8):
        for k in range(2):
            a(f"v_fmac_f32 {v(70+k)}, {v(52+8*k+e)}, {v(52+8*k+e)}")
    allreduce64x2(a, 70, 71, 72, 73)
    for k in range(2):
        q = 70 + k
        a(f"v_mul_f32 {v(q)}, s44, {v(q)}")
        bf16_round(a, q)
        a(f"v_add_f32 {v(q)}, s45, {v(q)}")
        bf16_round(a, q)
        a(f"v_sqrt_f32 {v(q)}, {v(q)}")
    a("s_waitcnt lgkmcnt(0)")
    mktag()
    for k in range(2):
        a(f"v_cvt_pk_bf16_f32 {v(100+k)}, {v(68+k)}, {v(70+k)}")
    a(f"v_mov_b32 v102, s{S_TAG}")
    a(f"v_mov_b32 v103, s{S_TAG}")
    a(f"s_add_u32 s40, s46, {SY_ROW}")
    a("s_mov_b64 exec, 0xff")
    a(f"buffer_store_dwordx4 v[100:103], v8, {s(SY,4)}, s40 offen sc1")
    a("s_mov_b64 exec, -1")
    a(f"s_lshl_b32 s3, s{S_W}, 2")
    a("v_mov_b32 v22, s3")
    a(f"s_not_b32 s3, s{S_TAG}")
    a("v_mov_b32 v23, s3")
    a(f"ds_write_b32 v22, v23 offset:{ST_SY}")
    a(f"ds_write_b32 v22, v23 offset:{ST_SY + 16}")
    a(f"ds_write_b32 v22, v23 offset:{ST_SY + 32}")
    a(f"ds_write_b32 v22, v23 offset:{ST_SY + 48}")
    a("s_waitcnt lgkmcnt(0)")
    ts("c")
    a("s_barrier")
    ts("c")
    a(f"s_cmp_lt_u32 s{S_C}, 10")
    a(f"s_cbranch_scc1 {L('mF')}")
    a(f"s_cmp_lt_u32 s{S_C}, 14")
    a(f"s_cbranch_scc1 {L('mQ')}")
    A = lambda j, i, r: ACC + 4 * (4 * j + i) + r
    BL = "op_sel_hi:[1,0,1]"
    MR = XF
    ts0 = TS.get("c", 0)
    for ty, fw in (("V", 0), ("Q", 0), ("F", 0), ("F", 1)):
        TS["c"] = ts0
        if ty != "V" and fw == 0: a.label(L("m" + ty))
        if ty == "F" and fw == 0:
            a("s_cmp_eq_u32 s43, 1")
            a(f"s_cbranch_scc1 {L('mF1')}")
        if ty == "F" and fw == 1: a.label(L("mF1"))
        def toks(j):
            if ty == "F" and HALF and j % 5 == (4 if fw == 0 else 0):
                return [0, 1] if fw == 0 else [2, 3]
            return [0, 1, 2, 3]
        NTL = 10 if ty == "F" else 8
        lg = Counter(a, "lgkmcnt", 12)
        vm = Counter(a, "vmcnt", 60)
        def q_x(step):
            buf, ks = (step // 2) % 3, step % 2
            return [(f"ds_read_b128 {v(XF+16*ks+4*i,4)}, {v(9+3*buf+ks)} offset:{i*2048}", ("x", step, i)) for i in range(4)]
        def q_w(step, j):
            buf, ks = (step // 2) % 3, step % 2
            out = []
            for hf in range(2):
                off = ((j // 5) * 18432 + ks * 9216 + hf * 4608 + (j % 5) * 32) if ty == "F" else ((2 * ks + hf) * 9216 + j * 32)
                out.append((f"ds_read_b64_tr_b16 {v(WF+4*j+2*hf,2)}, {v(11+3*buf)} offset:{off}", ("w", step, j)))
            return out
        def mfma(j, i, step):
            acc = v(A(j, i, 0), 4)
            c = "0" if step == 0 else acc
            w = v(WF + 4 * j, 4); x = v(XF + 16 * (step % 2) + 4 * i, 4)
            if ty == "V":
                return f"v_mfma_f32_16x16x32_bf16 {acc}, {x}, {w}, {c}"
            return f"v_mfma_f32_16x16x32_bf16 {acc}, {w}, {x}, {c}"
        def q_cs(j):
            if ty == "V":
                l = f"ds_read_b32 {v(WF+4*j)}, v5 offset:{ST_CS + j*64}"
            elif ty == "Q":
                l = f"ds_read_b128 {v(WF+4*j,4)}, v4 offset:{ST_CS + j*64}"
            else:
                l = f"ds_read_b128 {v(WF+4*j,4)}, v4 offset:{ST_CS + ((j//5)*9 + j%5)*64}"
            return [(l, ("cs", j, 0))]
        for l, t in q_x(0): lg.issue(l, t)
        for j in range(NTL):
            if j in (4, 8): lg.wait(("w", 0, j - 4))
            for l, t in q_w(0, j): lg.issue(l, t)
        pend = []
        order = list(range(NTL)) if ty != "F" else ([0, 5, 1, 6, 4, 9, 2, 7, 3, 8] if fw == 0 else [1, 6, 2, 7, 0, 5, 3, 8, 4, 9])
        for step in range(16):
            ks = step % 2
            nstep = step + 1
            hold = []
            if PF1 == step: pf_w1()
            if PF2 == step: pf_w2()
            for gi, j in enumerate(order):
                while any(t == ("w", step, j) or t[:2] == ("x", step) for _, t in pend):
                    l, t = pend.pop(0); lg.issue(l, t)
                lg.wait(("w", step, j), ("x", step, 3))
                for i in toks(j):
                    a(mfma(j, i, step))
                    if pend:
                        l, t = pend.pop(0); lg.issue(l, t)
                new = []
                if nstep < 16:
                    new += q_w(nstep, j)
                    if gi in (2, 3):
                        new += q_x(nstep)[2*(gi-2):2*(gi-2)+2]
                else:
                    new += q_cs(j)
                    if gi in (1, 2, 3, 4):
                        i = gi - 1
                        if ty == "V":
                            new.append((f"ds_read_b128 {v(224+8*i,4)}, v6 offset:{ST_M + 64*i}", ("st", i, 0)))
                            new.append((f"ds_read_b128 {v(228+8*i,4)}, v6 offset:{ST_RS + 64*i}", ("st", i, 1)))
                        else:
                            new.append((f"ds_read_b32 {v(MR+2*i)}, v3 offset:{ST_M + 64*i}", ("st", i, 0)))
                            new.append((f"ds_read_b32 {v(MR+1+2*i)}, v3 offset:{ST_RS + 64*i}", ("st", i, 1)))
                if ks == 1 and gi < BA:
                    hold += new
                    continue
                if ks == 1 and gi == BA:
                    for l, t in pend: lg.issue(l, t)
                    pend = []
                    lg.wait_all()
                    a("s_barrier")
                    if step in (3, 7, 11, 15): ts("c", lg)
                    pend += hold
                pend += new
        for l, t in pend: lg.issue(l, t)
        ts("c", lg)
        def corr(j, i):
            for r in (0, 2):
                a(f"v_pk_fma_f32 {v(A(j,i,r),2)}, {v(WF+4*j+r,2)}, {v(MR+2*i,2)}, {v(A(j,i,r),2)} {BL}")
        def pack_store(j, i0, so, off):
            d = A(j, i0, 0)
            a(f"v_cvt_pk_bf16_f32 {v(d)}, {v(d)}, {v(d+1)}")
            a(f"v_cvt_pk_bf16_f32 {v(d+1)}, {v(d+2)}, {v(d+3)}")
            a(f"v_cvt_pk_bf16_f32 {v(d+2)}, {v(d+4)}, {v(d+5)}")
            a(f"v_cvt_pk_bf16_f32 {v(d+3)}, {v(d+6)}, {v(d+7)}")
            a("s_nop 0")
            a(f"v_permlane16_swap_b32 {v(d)}, {v(d+2)}")
            a(f"v_permlane16_swap_b32 {v(d+1)}, {v(d+3)}")
            pol = "" if ("local" in opt and ty == "F") or "plainall" in opt else "sc1"
            a(f"buffer_store_dwordx4 {v(d,4)}, v7, s[48:51], {s(so)} offen offset:{off} {pol}")
        lg.wait(("st", 3, 1))
        if ty == "F":
            for i in range(4):
                a(f"v_mul_f32 {v(MR+1+2*i)}, {v(MR+1+2*i)}, {v(MR+1+2*i)}")
            for e in order[::2]:
                lg.wait(("cs", e, 0), ("cs", 5 + e, 0))
                for i in toks(e):
                    corr(e, i); corr(5 + e, i)
                    for r in range(4):
                        a(f"v_max_f32 {v(A(e,i,r))}, 0, {v(A(e,i,r))}")
                    for r in (0, 2):
                        a(f"v_pk_mul_f32 {v(A(5+e,i,r),2)}, {v(A(5+e,i,r),2)}, {v(MR+2*i,2)} op_sel:[0,1] op_sel_hi:[1,1]")
                    for r in (0, 2):
                        a(f"v_pk_mul_f32 {v(A(e,i,r),2)}, {v(A(e,i,r),2)}, {v(A(5+e,i,r),2)}")
                    if i & 1:
                        pack_store(e, i - 1, 60 + e, 1024 * (i - 1))
        else:
            if ty == "Q":
                for i in range(4):
                    a(f"v_mul_f32 {v(MR+1+2*i)}, s66, {v(MR+1+2*i)}")
            for j in range(8):
                lg.wait(("cs", j, 0))
                for i in range(4):
                    if ty == "Q":
                        corr(j, i)
                        for r in (0, 2):
                            a(f"v_pk_mul_f32 {v(A(j,i,r),2)}, {v(A(j,i,r),2)}, {v(MR+2*i,2)} op_sel:[0,1] op_sel_hi:[1,1]")
                    else:
                        for r in (0, 2):
                            a(f"v_pk_fma_f32 {v(A(j,i,r),2)}, {v(224+8*i+r,2)}, {v(WF+4*j,2)}, {v(A(j,i,r),2)} {BL}")
                        for r in (0, 2):
                            a(f"v_pk_mul_f32 {v(A(j,i,r),2)}, {v(A(j,i,r),2)}, {v(228+8*i+r,2)}")
                    if i & 1:
                        pack_store(j, i - 1, 60, 512 * (i - 1))
                a(f"s_add_u32 s60, s60, {QS}")
        if not (ty == "F" and fw == 1):
            a(f"s_branch {L('mdone')}")
    a.label(L("mdone"))
    ts("c")
    KF, VF, QF = 16, 56, 136
    S = [144, 160, 176]
    NM, O, P, MK = 192, 208, 224, 240
    LP = "" if "local" in opt else "sc1"
    for r in range(4):
        a(f"v_mov_b32 {v(252+r)}, s{S_TAG}")
    a("v_mov_b32 v15, v8")
    a(f"s_setprio {ATP}")
    srd(a, 56, S_WS, 16 * HS, WS_O)
    a(f"s_mov_b32 s42, s{S_HD}")
    a(f"s_lshl_b32 s43, s{S_AB}, 2")
    a(f"s_add_u32 s43, s43, s{S_W}")
    a("s_lshl_b32 s45, s43, 6")
    a("v_and_b32 v1, 31, v0")
    a("v_lshrrev_b32 v2, 5, v0")
    a("v_lshlrev_b32 v3, 4, v2")
    a("v_lshlrev_b32 v8, 3, v2")
    a("v_sub_u32 v8, v1, v8")
    a("s_sub_u32 s37, s45, 256")
    a("s_mov_b32 exec_lo, 0xffff0000")
    a("s_mov_b32 exec_hi, 0xffff0000")
    for kt in range(10):
        a(f"s_cmp_ge_i32 s37, {-32*kt}")
        a("s_cselect_b32 s40, 0x3f803f80, 0")
        a("s_mov_b32 s41, s40")
        for r in range(0, 8, 2):
            a(f"v_pk_mov_b32 {v(VF+8*kt+r,2)}, s[40:41], s[40:41]")
    a("s_mov_b64 exec, -1")
    a(f"s_lshl_b32 s40, s{S_W}, 11")
    a(f"s_add_u32 s40, s40, {BQ}")
    a("v_add_u32 v4, s40, v15")
    a("v_and_b32 v5, 0x13, v1")
    a("v_bfe_u32 v7, v1, 2, 1")
    a("v_lshl_or_b32 v5, v7, 3, v5")
    a("v_bfe_u32 v7, v1, 3, 1")
    a("v_lshl_or_b32 v5, v7, 2, v5")
    a("v_lshl_add_u32 v7, v5, 5, v3")
    a("v_add_u32 v7, s40, v7")
    a("v_and_b32 v12, 15, v1")
    a("v_lshl_add_u32 v12, v2, 4, v12")
    a("v_lshlrev_b32 v12, 4, v12")
    a("v_lshrrev_b32 v13, 4, v1")
    a("v_lshl_add_u32 v12, v13, 10, v12")
    a("s_and_b32 s40, s42, 1")
    a("s_lshl_b32 s40, s40, 9")
    a("v_add_u32 v12, s40, v12")
    a("s_lshr_b32 s46, s42, 1")
    a(f"s_mul_i32 s46, s46, {HS}")
    a("s_lshl_b32 s40, s43, 12")
    a("s_add_u32 s46, s46, s40")
    if timing:
        MSL = [4, 6, 8, 10, 12, 14, 16, 18, 60, 62, 64, 66, 24, 40, 0, 20]
    else:
        MSL = [60 + 2 * r for r in range(16)]
    for r in range(16):
        a(f"v_cmp_le_i32 {s(MSL[r],2)}, {(r&7)+16*(r>>3)}, v8")
    a("v_mov_b32 v9, 0xffff")
    a("v_mov_b32 v10, 0xffff0000")
    for p in range(8):
        a(f"v_cndmask_b32 {v(MK+p)}, 0, v9, {s(MSL[2*p],2)}")
        a(f"v_cndmask_b32 v11, 0, v10, {s(MSL[2*p+1],2)}")
        a(f"v_or_b32 {v(MK+p)}, {v(MK+p)}, v11")
    a("s_waitcnt vmcnt(0)")
    a("s_mov_b64 exec, 0xff")
    a(f"buffer_store_dwordx4 v[252:255], v15, {s(SY,4)}, s31 offen sc1")
    a("s_mov_b64 exec, -1")
    a(f"s_lshl_b32 s3, s{S_W}, 2")
    a("v_mov_b32 v14, s3")
    a(f"ds_write_b32 v14, v252 offset:{ST_SY + 16}")
    ts("c")
    lds_spin("msync", ST_SY, 14, 13, sleep=1)
    ts("c")
    vm = Counter(a, "vmcnt", 60)
    lg = Counter(a, "lgkmcnt", 12)
    for t in range(2):
        lg.issue(f"ds_read_b128 {v(QF+4*t,4)}, v4 offset:{32768 + 1024*t}", ("q", t))
    for kt in range(10):
        lg.issue(f"ds_read_b128 {v(KF+4*kt,4)}, v4 offset:{1024*kt}", ("k", kt))
    a("s_mov_b32 exec_lo, 0xffff")
    a("s_mov_b32 exec_hi, 0xffff")
    for kt in range(10):
        lg.wait(("k", kt))
        for hh in range(2):
            lg.issue(f"ds_read_b128 {v(VF+8*kt+4*hh,4)}, v7 offset:{16384 + 1024*kt + 512*hh}", ("v", kt))
    a("s_mov_b64 exec, -1")
    def M(dst, kt, t, c):
        lg.wait(("k", kt), ("q", t))
        a(f"v_mfma_f32_32x32x16_bf16 {v(dst,16)}, {v(KF+4*kt,4)}, {v(QF+4*t,4)}, {c}")
    if ATV == 1:
        for t in range(2):
            far, diag = t, t + 8
            full = list(range(t + 1, t + 8))
            MX = 14
            M(O, far, t, "0")
            if t == 0: ts("c", lg)
            M(S[0], full[0], t, "0")
            M(S[1], full[1], t, "0")
            a("s_nop 7")
            def mx(src, first=False):
                for q in range(0, 16, 4):
                    if first and q == 0:
                        a(f"v_max_f32 {v(MX)}, {v(src)}, {v(src+1)}")
                        a(f"v_max_f32 {v(MX+1)}, {v(src+2)}, {v(src+3)}")
                    else:
                        a(f"v_max3_f32 {v(MX)}, {v(src+q)}, {v(src+q+1)}, {v(MX)}")
                        a(f"v_max3_f32 {v(MX+1)}, {v(src+q+2)}, {v(src+q+3)}, {v(MX+1)}")
            for n in range(7):
                if n + 2 < 7:
                    M(S[(n + 2) % 3], full[n + 2], t, "0")
                elif n + 2 == 7:
                    M(NM, diag, t, "0")
                if n == 0:
                    a("s_nop 1")
                mx(S[n % 3], first=(n == 0))
            for r in range(16):
                a(f"v_cndmask_b32 {v(O+r)}, {v(O+r)}, {v(NM+r)}, {s(MSL[r],2)}")
            mx(O)
            a(f"v_max_f32 {v(MX)}, {v(MX)}, {v(MX+1)}")
            a(f"v_mov_b32 {v(MX+1)}, {v(MX)}")
            a("s_nop 1")
            a(f"v_permlane32_swap_b32 {v(MX)}, {v(MX+1)}")
            a("s_nop 1")
            a(f"v_max_f32 {v(MX)}, {v(MX)}, {v(MX+1)}")
            a(f"v_sub_f32 {v(MX)}, 0, {v(MX)}")
            for r in range(0, 16, 2):
                a(f"v_pk_mov_b32 {v(NM+r,2)}, {v(MX,2)}, {v(MX,2)} op_sel:[0,0]")
            a("s_nop 1")
            if t == 0:
                lg.wait_all(force=False)
                a(f"s_lshl_b32 s3, s{S_W}, 2")
                a("v_mov_b32 v13, s3")
                lg.issue(f"ds_write_b32 v13, v252 offset:{ST_SY + 32}")
            M(S[0], full[0], t, v(NM, 16))
            M(S[2], far, t, v(NM, 16))
            a("s_nop 9")
            first_pv = [True]
            def PV(kt, hh, preg):
                lg.wait(("v", kt))
                c = "0" if first_pv[0] else v(O, 16)
                first_pv[0] = False
                a(f"v_mfma_f32_32x32x16_bf16 {v(O,16)}, {v(VF+8*kt+4*hh,4)}, {v(preg+4*hh,4)}, {c}")
            for n in range(8):
                cur = S[n % 2]
                nxt = S[(n + 1) % 2]
                if n + 1 < 7:
                    M(nxt, full[n + 1], t, v(NM, 16))
                elif n + 1 == 7:
                    M(nxt, diag, t, v(NM, 16))
                if n == 7:
                    for r in range(16):
                        a(f"v_cndmask_b32 {v(cur+r)}, {v(S[2]+r)}, {v(cur+r)}, {s(MSL[r],2)}")
                for r in range(16):
                    a(f"v_exp_f32 {v(cur+r)}, {v(cur+r)}")
                    if n > 0 and r == 5: PV(full[n - 1], 0, P)
                    if n > 0 and r == 11: PV(full[n - 1], 1, P)
                for p in range(8):
                    a(f"v_cvt_pk_bf16_f32 {v(P+p)}, {v(cur+2*p)}, {v(cur+2*p+1)}")
            for p in range(8):
                a(f"v_bfi_b32 {v(P+8+p)}, {v(MK+p)}, 0, {v(P+p)}")
                a(f"v_and_b32 {v(P+p)}, {v(MK+p)}, {v(P+p)}")
            a("s_nop 1")
            PV(diag, 0, P); PV(diag, 1, P); PV(far, 0, P + 8); PV(far, 1, P + 8)
            a("s_nop 11")
            a(f"v_rcp_f32 v14, {v(O+8)}")
            a("s_nop 0")
            for r in range(8):
                a(f"v_mul_f32 {v(O+r)}, v14, {v(O+r)}")
            for p in range(4):
                a(f"v_cvt_pk_bf16_f32 {v(248+4*t+p)}, {v(O+2*p)}, {v(O+2*p+1)}")
            vm.issue(f"buffer_store_dwordx4 {v(248+4*t,4)}, v12, s[56:59], s46 offen offset:{2048*t} {LP}")
    else:
        MXR = [[8, 9], [10, 11]]
        FARB = [O, P]
        RB4 = [S[0], S[1], S[2], NM]
        items = []
        for n in range(7):
            for tq in range(2):
                items.append((tq, tq + 1 + n, "f"))
            if n == 2:
                items += [(0, 8, "d"), (1, 9, "d")]
        first = [True, True]
        def mx2(tq, src):
            m0, m1 = MXR[tq]
            for q in range(0, 16, 4):
                if first[tq] and q == 0:
                    a(f"v_max_f32 {v(m0)}, {v(src)}, {v(src+1)}")
                    a(f"v_max_f32 {v(m1)}, {v(src+2)}, {v(src+3)}")
                else:
                    a(f"v_max3_f32 {v(m0)}, {v(src+q)}, {v(src+q+1)}, {v(m0)}")
                    a(f"v_max3_f32 {v(m1)}, {v(src+q+2)}, {v(src+q+3)}, {v(m1)}")
            first[tq] = False
        M(RB4[0], items[0][1], items[0][0], "0")
        ts("c", lg)
        M(RB4[1], items[1][1], items[1][0], "0")
        M(FARB[0], 0, 0, "0")
        M(FARB[1], 1, 1, "0")
        M(RB4[2], items[2][1], items[2][0], "0")
        a("s_nop 6")
        for n, (tq, kt, kind) in enumerate(items):
            if n + 3 < len(items):
                M(RB4[(n + 3) % 4], items[n + 3][1], items[n + 3][0], "0")
            src = RB4[n % 4]
            if kind == "d":
                for r in range(16):
                    a(f"v_cndmask_b32 {v(src+r)}, {v(FARB[tq]+r)}, {v(src+r)}, {s(MSL[r],2)}")
            mx2(tq, src)
        for tq in range(2):
            a(f"v_max_f32 {v(MXR[tq][0])}, {v(MXR[tq][0])}, {v(MXR[tq][1])}")
        for tq in range(2):
            a(f"v_mov_b32 {v(MXR[tq][1])}, {v(MXR[tq][0])}")
        a("s_nop 0")
        for tq in range(2):
            a(f"v_permlane32_swap_b32 {v(MXR[tq][0])}, {v(MXR[tq][1])}")
        a("s_nop 0")
        for tq in range(2):
            a(f"v_max_f32 {v(MXR[tq][0])}, {v(MXR[tq][0])}, {v(MXR[tq][1])}")
        for tq in range(2):
            a(f"v_sub_f32 {v(MXR[tq][0])}, 0, {v(MXR[tq][0])}")
        def setnm(tq):
            for r in range(0, 16, 2):
                a(f"v_pk_mov_b32 {v(NM+r,2)}, {v(MXR[tq][0],2)}, {v(MXR[tq][0],2)} op_sel:[0,0]")
        setnm(0)
        lg.wait_all(force=False)
        a(f"s_lshl_b32 s3, s{S_W}, 2")
        a("v_mov_b32 v13, s3")
        lg.issue(f"ds_write_b32 v13, v252 offset:{ST_SY + 32}")
        slots = []
        for tq in range(2):
            slots.append((tq, "m"))
            for n in range(7):
                slots.append((tq, tq + 1 + n))
        NMV = v(NM, 16)
        def issue_S(n):
            tq, k = slots[n]
            if k == "m":
                M(S[n % 2], tq + 8, tq, NMV)
                M(S[2], tq, tq, NMV)
            else:
                M(S[n % 2], k, tq, NMV)
        fpv = [True, True]
        def PV2(tq, kt, hh, preg):
            c = "0" if fpv[tq] else v(O, 16)
            fpv[tq] = False
            a(f"v_mfma_f32_32x32x16_bf16 {v(O,16)}, {v(VF+8*kt+4*hh,4)}, {v(preg+4*hh,4)}, {c}")
        def pvs(n):
            tq, k = slots[n]
            if k == "m":
                return [(tq, tq + 8, 0, P), (tq, tq + 8, 1, P), (tq, tq, 0, P + 8), (tq, tq, 1, P + 8)]
            return [(tq, k, 0, P), (tq, k, 1, P)]
        def finish(tq):
            a(f"v_rcp_f32 v14, {v(O+8)}")
            a("s_nop 0")
            for r in range(8):
                a(f"v_mul_f32 {v(O+r)}, v14, {v(O+r)}")
            for p in range(4):
                a(f"v_cvt_pk_bf16_f32 {v(248+4*tq+p)}, {v(O+2*p)}, {v(O+2*p+1)}")
            vm.issue(f"buffer_store_dwordx4 {v(248+4*tq,4)}, v12, s[56:59], s46 offen offset:{2048*tq} {LP}")
        issue_S(0)
        a("s_nop 9")
        for n in range(16):
            tq, k = slots[n]
            cur = S[n % 2]
            if n + 1 < 16 and n != 7:
                issue_S(n + 1)
            if k == "m":
                if n == 0: a("s_nop 0")
                for r in range(16):
                    a(f"v_cndmask_b32 {v(cur+r)}, {v(S[2]+r)}, {v(cur+r)}, {s(MSL[r],2)}")
                    if n == 8 and r in (3, 11):
                        PV2(*pvs(7)[0 if r == 3 else 1])
            pl = pvs(n - 1) if (n > 0 and n != 8) else []
            pos = {2: (5, 11), 4: (2, 6, 10, 14), 0: ()}[len(pl)]
            for r in range(16):
                a(f"v_exp_f32 {v(cur+r)}, {v(cur+r)}")
                if r in pos: PV2(*pl[pos.index(r)])
                if n == 7 and r == 12:
                    setnm(1)
                if n == 8 and r == 12:
                    finish(0)
            if n == 7:
                issue_S(8)
            for p in range(8):
                a(f"v_cvt_pk_bf16_f32 {v(P+p)}, {v(cur+2*p)}, {v(cur+2*p+1)}")
            if n == 7:
                a("s_nop 2")
            if k == "m":
                for p in range(8):
                    a(f"v_bfi_b32 {v(P+8+p)}, {v(MK+p)}, 0, {v(P+p)}")
                    a(f"v_and_b32 {v(P+p)}, {v(MK+p)}, {v(P+p)}")
        a("s_nop 1")
        for x in pvs(15): PV2(*x)
        a("s_nop 11")
        finish(1)
    ts("c")
    a("s_lshl_b32 s40, s43, 5")
    a("s_add_u32 s40, s40, s42")
    a("s_lshl_b32 s40, s40, 7")
    a(f"s_add_u32 s40, s40, {SY_OF}")
    a("v_lshlrev_b32 v3, 4, v0")
    for r in range(4):
        a(f"v_mov_b32 {v(4+r)}, s{S_TAG}")
    a("s_mov_b64 exec, 0xff")
    a("s_waitcnt vmcnt(0)")
    a(f"buffer_store_dwordx4 v[4:7], v3, {s(SY,4)}, s40 offen {LP}")
    a("s_mov_b64 exec, -1")
    a(f"s_or_b32 s3, s2, s{S_W}")
    a("s_cmp_lg_u32 s3, 0")
    a(f"s_cbranch_scc1 {L('noep')}")
    a("v_lshlrev_b32 v8, 9, v0")
    a(f"v_add_u32 v8, {SY_F}, v8")
    for q in range(4):
        poll(f"pe{q}", 8, 9)
        a("v_add_u32 v8, 0x8000, v8")
    a(f"s_add_u32 s3, s{S_EP}, 1")
    a("v_mov_b32 v9, s3")
    a("v_mov_b32 v8, 0")
    a("s_mov_b64 exec, 1")
    a(f"buffer_store_dword v9, v8, {s(SY,4)}, 0 offen sc1")
    a.label(L("noep"))
    ts_dump("c")
    a(f"s_branch {L('end')}")

    a.label(L("loader"))
    LW = 31
    a(f"s_sub_u32 s{LW}, s{S_W}, 4")
    a("s_setprio 3")
    a("v_lshrrev_b32 v1, 3, v0")
    a("v_and_b32 v2, 7, v0")
    a(f"s_lshl_b32 s54, s{S_RB}, 7")
    a(f"s_lshl_b32 s55, s{LW}, 5")
    a("s_add_u32 s54, s54, s55")
    a("v_lshrrev_b32 v4, 4, v0")
    a("v_xor_b32 v4, v4, v2")
    a("v_add_u32 v3, s54, v1")
    a("v_lshlrev_b32 v3, 10, v3")
    a("v_lshl_add_u32 v10, v4, 4, v3")
    a("v_xor_b32 v11, 64, v10")
    a("v_add_u32 v11, 0x2000, v11")
    a("v_add_u32 v12, 0x4000, v10")
    a("v_add_u32 v13, 0x4000, v11")
    a(f"s_lshl_b32 s56, s{LW}, 12")
    a(f"s_add_u32 s56, s56, {SB}")
    a(f"s_mul_i32 s57, s{LW}, 9216")
    a(f"s_add_u32 s57, s57, {SB+WOFF}")
    a(f"s_cmp_lt_u32 s{S_C}, 10")
    a(f"s_cbranch_scc1 {L('lF')}")
    CA = [112, 117, 122]
    CS = 44
    CF = 64
    G_ACC, XR = 192, 24
    NH, NO = 11, 4
    NT = NH + NO
    BUFORD = [2, 0]
    def slot_off(k):
        sl = k % 6
        return BUFORD[sl // 3], (sl % 3) * 4096
    def w2_list(k):
        b, o = slot_off(k)
        out = []
        for q in range(4):
            kk, sr = (k, 40) if k < NH else (k - NH, 44)
            if ROT and k < NH:
                pre = ""
                if q == 0:
                    pre = (f"s_add_u32 s66, s67, {kk}\ns_cmp_ge_u32 s66, 11\ns_cselect_b32 s58, 11, 0\ns_sub_u32 s66, s66, s58\n"
                           f"s_lshl_b32 s66, s66, 17\ns_add_u32 s66, s66, s57\n")
                out.append((pre + f"s_add_u32 m0, s56, {b*STG + o + q*1024}",
                            f"s_add_u32 s58, s66, {(16*(q&1) + 4*(q>>1))*1024}",
                            f"buffer_load_dwordx4 v2, {s(sr,4)}, s58 offen lds", ("w", k)))
                continue
            out.append((f"s_add_u32 m0, s56, {b*STG + o + q*1024}",
                        f"s_add_u32 s58, s57, {kk*4*32768 + (16*(q&1) + 4*(q>>1))*1024}",
                        f"buffer_load_dwordx4 v2, {s(sr,4)}, s58 offen lds", ("w", k)))
        return out
    def p2_setup():
        srd(a, 40, S_WD, 1376 * 1024)
        srd(a, 44, S_WO, 512 * 1024)
        a("v_lshrrev_b32 v3, 3, v0")
        a("v_and_b32 v4, 7, v0")
        a("v_and_b32 v5, 6, v3")
        a("v_xor_b32 v4, v4, v5")
        a("v_lshlrev_b32 v4, 4, v4")
        a("v_and_b32 v5, 4, v3")
        a("v_add_u32 v3, v3, v5")
        a("v_lshl_add_u32 v4, v3, 10, v4")
        a(f"s_lshl_b32 s3, s{S_J}, 7")
        a("v_add_u32 v2, s3, v4")
        a(f"s_mul_i32 s56, s{LW}, 12288")
        a(f"s_add_u32 s56, s56, {SB}")
        a(f"s_lshl_b32 s57, s{LW}, 15")
        a(f"s_mul_i32 s59, s{LW}, {HS}")
        if ROT:
            a(f"s_and_b32 s67, s{S_TB}, 3")
            a(f"s_mul_i32 s67, s67, {ROT[1]}")
            a(f"s_mul_i32 s66, s{S_J}, {ROT[0]}")
            a("s_add_u32 s67, s67, s66")
            for _ in range(4):
                a("s_cmp_ge_u32 s67, 11")
                a("s_cselect_b32 s66, 11, 0")
                a("s_sub_u32 s67, s67, s66")
    ts0 = TS.get("l", 0)
    for ty in ("Q", "F"):
        TS["l"] = ts0
        if ty == "F": a.label(L("lF"))
        stride = 2752 if ty == "F" else 3072
        vm = Counter(a, "vmcnt", 60)
        lg = Counter(a, "lgkmcnt", 12)
        a(f"s_movk_i32 s63, {stride}")
        if ty == "F":
            a(f"s_and_b32 s54, s{LW}, 1")
            a("s_lshl_b32 s54, s54, 5")
            a(f"s_mul_i32 s55, s{S_C}, 288")
            a("s_movk_i32 s64, 3641")
        else:
            a(f"s_lshr_b32 s54, s{LW}, 1")
            a("s_lshl_b32 s54, s54, 5")
            a(f"s_and_b32 s55, s{LW}, 1")
            a("s_lshl_b32 s55, s55, 2")
            a("s_add_u32 s54, s54, s55")
            a(f"s_sub_u32 s55, s{S_C}, 10")
            a("s_lshl_b32 s55, s55, 9")
            a("s_movk_i32 s64, 1928")
            a("v_mov_b32 v9, 0x7fff0000")
        a("s_waitcnt lgkmcnt(0)")
        srd(a, 36, S_X, 2048 * 1024)
        if ty == "F":
            a(f"s_cmp_lt_u32 s{LW}, 2")
            a(f"s_cselect_b32 s40, s{S_WG}, s{S_WU}")
            a(f"s_cselect_b32 s41, s{S_WG+1}, s{S_WU+1}")
            a(f"s_mov_b32 s42, {hex(512*2752)}")
            a("s_mov_b32 s43, 0x00020000")
        else:
            srd(a, 40, S_WQKV, 512 * 3072)
        def dma_list(stage):
            buf = stage % 3
            out = []
            for i in range(4):
                out.append((f"s_add_u32 m0, s56, {buf*STG + i*1024}", f"s_movk_i32 s58, {stage*128}",
                            f"buffer_load_dwordx4 {v(10+i)}, s[36:39], s58 offen lds", ("st", stage)))
            for b in range(9):
                out.append((f"s_add_u32 m0, s57, {buf*STG + b*1024}", f"s_mov_b32 s58, {stage*64*stride}",
                            f"buffer_load_dwordx4 {v(14+b)}, s[40:43], s58 offen lds", ("st", stage)))
            return out
        def run(lst):
            for m, so, ld, tg in lst:
                a(m); a(so); vm.issue(ld, tg)
        run(dma_list(0)[:4])
        for b in range(9):
            a(f"v_add_u32 v3, {64*b}, v0")
            a("v_mul_u32_u24 v4, s64, v3")
            a("v_lshrrev_b32 v4, 16, v4")
            a(f"v_mul_u32_u24 v5, {18 if ty == 'F' else 34}, v4")
            a("v_sub_u32 v5, v3, v5")
            a("v_and_b32 v6, 3, v4")
            a("v_bfe_u32 v7, v4, 2, 2")
            a("v_lshl_add_u32 v6, v7, 3, v6")
            if ty == "F":
                a("v_lshrrev_b32 v7, 4, v4")
                a("v_lshl_add_u32 v6, v7, 2, v6")
            a("v_add_u32 v6, s54, v6")
            a("v_mul_u32_u24 v6, s63, v6")
            a("v_lshl_add_u32 v6, v5, 4, v6")
            if ty == "F":
                a(f"v_add_u32 {v(14+b)}, s55, v6")
            else:
                a("v_cmp_gt_u32 vcc, 32, v5")
                a("v_add_u32 v6, s55, v6")
                a("v_cmp_gt_u32 s[60:61], 16, v4")
                a(f"v_cndmask_b32 v6, v9, v6, vcc")
                a("s_nop 0")
                a(f"v_cndmask_b32 {v(14+b)}, v9, v6, s[60:61]")
            run(dma_list(0)[4+b:5+b])
        run(dma_list(1)[:P1N])
        srd(a, SY, S_WS, SY_SIZE, WS_SY)
        a(f"s_load_dword s{S_EP}, s[{SY}:{SY+1}], {SY_EPOCH}")
        NC = 5 if ty == "F" else 4
        a("v_lshrrev_b32 v4, 2, v0")
        a(f"v_mul_u32_u24 v4, {288 if ty == 'F' else 544}, v4")
        a("v_and_b32 v5, 3, v0")
        a("v_lshl_add_u32 v4, v5, 3, v4")
        a(f"v_add_u32 v4, {SB+WOFF}, v4")
        for i in range(NC):
            T = 61 + i
            if i < 4:
                a(f"s_add_u32 s{T}, s{LW}, {4*i}")
            else:
                a(f"s_and_b32 s{T}, s{LW}, 1")
                a(f"s_add_u32 s{T}, s{T}, 16")
            a(f"s_lshl_b32 s54, s{T}, 5")
            if ty == "F":
                a(f"s_cmp_ge_u32 s{T}, 9")
                a(f"s_cselect_b32 s55, {18432 - 288}, 0")
                a("s_add_u32 s54, s54, s55")
            a(f"v_add_u32 {v(CA[0]+i)}, s54, v4")
            a(f"v_add_u32 {v(CA[1]+i)}, {STG}, {v(CA[0]+i)}")
            a(f"v_add_u32 {v(CA[2]+i)}, {2*STG}, {v(CA[0]+i)}")
        for r in range(4):
            a(f"v_mov_b32 {v(28+r)}, 0x3f803f80")
        a(f"s_lshl_b32 s54, s{S_RB}, 13")
        a(f"s_lshl_b32 s55, s{LW}, 11")
        a("s_add_u32 s54, s54, s55")
        a(f"s_add_u32 s54, s54, {SY_ROW}")
        a("v_and_b32 v27, 15, v0")
        a("v_lshlrev_b32 v26, 7, v27")
        a("v_add_u32 v26, s54, v26")
        a(f"s_lshl_b32 s3, s{LW}, 7")
        a("v_lshl_add_u32 v27, v27, 3, s3")
        a("s_waitcnt lgkmcnt(0)")
        mktag()
        def colsum(stage, filler):
            buf = stage % 3
            for ks in range(2):
                for i in range(NC):
                    for hf in range(2):
                        off = (ks * 9216 + hf * 4608) if ty == "F" else (2 * ks + hf) * 9216
                        lg.issue(f"ds_read_b64_tr_b16 {v(CF+20*ks+4*i+2*hf,2)}, {v(CA[buf]+i)} offset:{off}", ("c", ks, i))
                run(filler[:2]); filler = filler[2:]
                for i in range(NC):
                    lg.wait(("c", ks, i))
                    acc = v(CS + 4 * i, 4)
                    a(f"v_mfma_f32_16x16x32_bf16 {acc}, {v(CF+20*ks+4*i,4)}, v[28:31], {'0' if stage == 0 and ks == 0 else acc}")
            run(filler)
        ts("l")
        vm.wait(("st", 0))
        a("s_barrier")
        ts("l")
        run(dma_list(1)[P1N:])
        colsum(0, dma_list(2))
        vm.wait(("st", 1))
        a("s_barrier")
        colsum(1, dma_list(3))
        vm.wait(("st", 2))
        a("s_barrier")
        vm.issue(f"buffer_load_dwordx4 v[104:107], v26, {s(SY,4)}, 0 offen sc1", "gat")
        colsum(2, dma_list(4))
        vm.wait(("st", 3))
        a("s_barrier")
        colsum(3, dma_list(5))
        vm.wait(("st", 4), "gat")
        a(f"v_cmp_eq_u32 vcc, s{S_TAG}, v106")
        a("s_nop 3")
        a("s_cmp_eq_u64 vcc, -1")
        a(f"s_cbranch_scc1 {L('valok' + ty)}")
        poll("pr" + ty, 26, 104, width=4, tagreg=2)
        a.label(L("valok" + ty))
        a("s_barrier")
        colsum(4, dma_list(6))
        for k in range(2):
            a(f"v_lshlrev_b32 {v(108+k)}, 16, {v(104+k)}")
            a(f"v_xor_b32 {v(108+k)}, 0x80000000, {v(108+k)}")
            a(f"v_and_b32 {v(110+k)}, 0xffff0000, {v(104+k)}")
            a(f"v_rcp_f32 {v(110+k)}, {v(110+k)}")
        a("s_nop 0")
        lg.issue(f"ds_write_b64 v27, v[108:109] offset:{ST_M}")
        lg.issue(f"ds_write_b64 v27, v[110:111] offset:{ST_RS}")
        vm.wait(("st", 5))
        a("s_barrier")
        colsum(5, dma_list(7))
        p2_setup()
        lg.wait_all()
        vm.wait(("st", 6))
        a("s_barrier")
        colsum(6, (w2_list(0) + w2_list(1) + w2_list(2)) if (ty == "F" or QD < 2) else [])
        vm.wait(("st", 7))
        a("s_barrier")
        colsum(7, [])
        a("v_lshrrev_b32 v3, 4, v0")
        a("v_lshlrev_b32 v6, 4, v3")
        a("s_nop 5")
        for i in range(NC):
            a(f"s_lshl_b32 s3, s{61+i}, 6")
            a("v_add_u32 v7, s3, v6")
            lg.issue(f"ds_write_b128 v7, {v(CS+4*i,4)} offset:{ST_CS}")
        if ty == "F" or QD < 1:
            run(w2_list(3) + w2_list(4) + w2_list(5))
        if ty == "Q":
            a(f"s_branch {L('ldone')}")
    a.label(L("ldone"))
    vm = Counter(a, "vmcnt", 60)
    lg = Counter(a, "lgkmcnt", 12)
    def dma_w(k):
        for m, so, ld, tg in w2_list(k):
            a(m); a(so); vm.issue(ld, tg)
    BREG = {}
    WREG = {k: 32 + 16 * k for k in range(6)}
    POOL = [128, 144, 160, 176]
    def load_b(k):
        kk, sr = (k, 48) if k < NH else (k - NH, 52)
        BREG[k] = POOL.pop(0)
        if ROT:
            a(f"s_add_u32 s60, s67, {kk}")
            a("s_cmp_ge_u32 s60, 11")
            a("s_cselect_b32 s58, 11, 0")
            a("s_sub_u32 s60, s60, s58")
            a("s_lshl_b32 s60, s60, 19")
            a("s_add_u32 s60, s60, s59")
        else:
            a(f"s_add_u32 s60, s59, {kk*4*HS}")
        for i in range(4):
            vm.issue(f"buffer_load_dwordx4 {v(BREG[k]+4*i,4)}, v1, {s(sr,4)}, s60 offen offset:{1024*i} sc1", ("b", k))
    def rd_w2(k):
        b, o = slot_off(k)
        if k not in WREG:
            WREG[k] = POOL.pop(0)
        for u in range(4):
            for hf in range(2):
                lg.issue(f"ds_read_b64_tr_b16 {v(WREG[k]+4*u+2*hf,2)}, {v(10+4*b+u)} offset:{o + hf*2048}", ("w", k, u))
    for k in range(6): vm.tag[("w", k)] = 0
    assert EW == 0
    a("v_lshrrev_b32 v3, 4, v0")
    a("v_lshrrev_b32 v5, 2, v0")
    a("v_bfe_u32 v6, v5, 1, 2")
    a("v_and_b32 v7, 3, v0")
    a("v_lshlrev_b32 v7, 3, v7")
    a("v_lshl_add_u32 v7, v5, 7, v7")
    a("v_add_u32 v7, s56, v7")
    for u in range(4):
        a(f"v_xor_b32 v8, {u}, v6")
        a(f"v_lshl_add_u32 {v(10+u)}, v8, 5, v7")
        a(f"v_add_u32 {v(18+u)}, {2*STG}, {v(10+u)}")
    a("s_waitcnt lgkmcnt(0)")
    if EW:
        a("s_waitcnt vmcnt(12)")
        for k in range(3):
            if k >= 1:
                lg.wait(("w", k - 1, 1))
            rd_w2(k)
    a("s_barrier")
    if LP0: a("s_setprio 0")
    ts("l", lg)
    if QD:
        a(f"s_cmp_lt_u32 s{S_C}, 10")
        a(f"s_cbranch_scc1 {L('nqd')}")
        lds_spin("qd", ST_SY + 16, 4, 5, sleep=2)
        for k in range(0 if QD == 2 else 3, 6 - QD3): dma_w(k)
        a.label(L("nqd"))
    if EW:
        lg.wait_all()
        for k in range(6, 9): dma_w(k)
        for k in range(3, 6):
            vm.wait(("w", k))
            if k > 3: lg.wait(("w", k - 1, 1))
            rd_w2(k)
        lg.wait_all()
        for k in range(9, 6 + EW): dma_w(k)
    srd(a, 48, S_WS, 96 * QS, WS_QK)
    a(f"s_lshl_b32 s0, s{S_AB}, 8")
    a(f"s_lshl_b32 s1, s{LW}, 7")
    a("s_add_u32 s1, s1, s0")
    a("s_sub_u32 s1, s1, 256")
    a("v_and_b32 v128, 31, v0")
    a("v_lshrrev_b32 v129, 5, v0")
    a("v_lshlrev_b32 v129, 4, v129")
    a("v_and_b32 v130, 0x13, v128")
    a("v_bfe_u32 v131, v128, 2, 1")
    a("v_lshl_or_b32 v130, v131, 3, v130")
    a("v_bfe_u32 v131, v128, 3, 1")
    a("v_lshl_or_b32 v130, v131, 2, v130")
    a("v_add_u32 v130, s1, v130")
    for n in range(4):
        a(f"v_add_u32 {v(132+n)}, {32*n}, v130")
        a(f"v_max_i32 {v(132+n)}, 0, {v(132+n)}")
        a(f"v_lshl_add_u32 {v(132+n)}, {v(132+n)}, 5, v129")
    a(f"s_lshl_b32 s3, s{LW}, 6")
    a("s_add_u32 s3, s3, s0")
    a("v_add_u32 v136, s3, v128")
    a("v_lshl_add_u32 v136, v136, 5, v129")
    a("v_lshlrev_b32 v137, 4, v0")
    a(f"s_lshr_b32 s5, s{S_HD}, 3")
    a("s_lshl_b32 s5, s5, 8")
    a(f"s_add_u32 s5, s5, {SY_F + 10*512}")
    a(f"s_lshl_b32 s3, s{S_AB}, 1")
    a(f"s_add_u32 s4, s3, s{LW}")
    a("s_sub_u32 s4, s4, 2")
    a("s_max_i32 s4, s4, 0")
    a("s_lshl_b32 s4, s4, 13")
    a("s_add_u32 s6, s4, s5")
    a("s_add_u32 s6, s6, 1024")
    a(f"s_lshr_b32 s4, s{LW}, 1")
    a("s_add_u32 s4, s4, s3")
    a("s_lshl_b32 s4, s4, 13")
    a("s_add_u32 s4, s4, s5")
    a(f"s_and_b32 s5, s{LW}, 1")
    a("s_lshl_b32 s5, s5, 7")
    a("s_add_u32 s4, s4, s5")
    a("v_and_b32 v138, 1, v0")
    a("v_lshlrev_b32 v138, 7, v138")
    a("v_bfe_u32 v139, v0, 1, 1")
    a("v_lshl_add_u32 v138, v139, 10, v138")
    a("v_add_u32 v138, s6, v138")
    a("v_mov_b32 v139, s4")
    a("v_and_b32 v140, 4, v0")
    a("v_cmp_eq_u32 vcc, 0, v140")
    a("s_nop 1")
    a("v_cndmask_b32 v138, v139, v138, vcc")
    a(f"s_mul_i32 s4, s{S_HD}, {QS}")
    a(f"s_add_u32 s5, s4, {32 * QS}")
    a("s_lshl_b32 s6, s1, 5")
    a("s_add_u32 s6, s6, s4")
    a(f"s_add_u32 s6, s6, {64 * QS}")
    a("s_cmp_ge_i32 s1, 0")
    a("s_cselect_b32 s6, s6, 0x7fff0000")
    a(f"s_lshl_b32 s7, s{LW}, 12")
    a(f"s_add_u32 s7, s7, {BQ}")
    a(f"s_lshl_b32 s0, s{LW}, 11")
    a(f"s_add_u32 s0, s0, {BQ + 32768}")
    poll("pq", 138, 4, sleep=QSL)
    vm.done = vm.n
    ts("l")
    a("s_mov_b32 m0, s0")
    a("s_nop 0")
    for n in range(2):
        a(f"buffer_load_dwordx4 v136, s[48:51], s4 offen offset:{1024*n} sc1 lds")
    for n in range(4):
        a(f"s_add_u32 m0, s7, {1024*n}")
        a("s_nop 0")
        a(f"buffer_load_dwordx4 {v(132+n)}, s[48:51], s5 offen sc1 lds")
    a("s_add_u32 m0, s7, 16384")
    a("s_nop 0")
    for n in range(4):
        a(f"buffer_load_dwordx4 v137, s[48:51], s6 offen offset:{1024*n} sc1 lds")
    for k in range(RDE):
        if k >= 1:
            lg.wait(("w", k - 1, 1))
        rd_w2(k)
    a(f"s_lshl_b32 s3, s{LW}, 2")
    a("v_mov_b32 v4, s3")
    a(f"v_mov_b32 v5, s{S_TAG}")
    a("s_waitcnt vmcnt(0)")
    lg.issue(f"ds_write_b32 v4, v5 offset:{ST_SY}")
    ts("l", lg)
    for k in range(RDE, 6):
        if k >= 1:
            lg.wait(("w", k - 1, 1))
        rd_w2(k)
    srd(a, 48, S_WS, NSLAB_H * HS, WS_H)
    srd(a, 52, S_WS, 16 * HS, WS_O)
    a(f"s_lshl_b32 s3, s{S_TB}, 12")
    a("v_lshl_add_u32 v1, v0, 4, s3")
    a("v_and_b32 v8, 15, v0")
    a("v_lshlrev_b32 v9, 10, v8")
    a(f"s_lshl_b32 s3, s{S_TB}, 16")
    a(f"s_lshl_b32 s61, s{LW}, 14")
    a("s_add_u32 s3, s3, s61")
    a(f"s_lshl_b32 s61, s{S_J}, 7")
    a("s_add_u32 s3, s3, s61")
    a("v_add_u32 v9, s3, v9")
    a("v_and_b32 v4, 1, v3")
    a("v_lshl_add_u32 v8, v4, 5, v9")
    a("v_lshrrev_b32 v4, 1, v3")
    a("v_lshl_add_u32 v8, v4, 4, v8")
    a("v_lshl_add_u32 v9, v3, 3, v9")
    a("v_lshrrev_b32 v4, 1, v0")
    a("v_min_u32 v4, 9, v4")
    a("v_lshlrev_b32 v4, 9, v4")
    a("v_and_b32 v5, 1, v0")
    a("v_lshl_add_u32 v4, v5, 8, v4")
    a(f"s_lshr_b32 s3, s{S_TB}, 1")
    a("s_lshl_b32 s3, s3, 13")
    a(f"s_and_b32 s61, s{S_TB}, 1")
    a("s_lshl_b32 s61, s61, 7")
    a("s_add_u32 s3, s3, s61")
    a(f"s_add_u32 s3, s3, {SY_F}")
    a("v_add_u32 v22, s3, v4")
    a("v_and_b32 v4, 31, v0")
    a("v_lshlrev_b32 v4, 7, v4")
    a(f"s_lshl_b32 s3, s{S_TB}, 12")
    a(f"s_add_u32 s3, s3, {SY_OF}")
    a("v_add_u32 v23, s3, v4")
    a(f"s_setprio {LP2}")
    lds_spin("lsync0", ST_SY, 4, 5, sleep=2)
    lds_spin("lsync", ST_SY + 16, 4, 5, sleep=2)
    lg.done = lg.n
    for k in range(6 + EW, 6 + max(RF, EW)): dma_w(k)
    ts("l", lg)
    poll("ph", 22, 4, sleep=HSL)
    vm.done = vm.n
    ts("l", lg)
    nb = [0]
    def more_b(limit, reserve):
        while nb[0] < limit and len(POOL) > reserve:
            load_b(nb[0]); nb[0] += 1
    more_b(NH, 0)
    RQ = list(range(6 + max(RF, EW), 12))
    for _ in range(RF2):
        if RQ: dma_w(RQ.pop(0))
    def mm(k):
        for u in range(4):
            lg.wait(("w", k, u))
            for i in range(4):
                acc = v(G_ACC + 4 * (4 * u + i), 4)
                a(f"v_mfma_f32_16x16x32_bf16 {acc}, {v(WREG[k]+4*u,4)}, {v(BREG[k]+4*i,4)}, {'0' if k == 0 else acc}")
        POOL.append(BREG[k]); POOL.append(WREG[k])
    for k in range(NH):
        if k + 1 >= 6 and k + 1 < NH:
            vm.wait(("w", k + 1))
            rd_w2(k + 1)
        vm.wait(("b", k))
        mm(k)
        more_b(NH, 1 if k >= 3 else 0)
        if RQ: dma_w(RQ.pop(0))
        if k == 5:
            for u in range(4):
                vm.issue(f"buffer_load_dwordx2 {v(XR+2*u,2)}, v9, s[36:39], 0 offen offset:{32*u}", "x")
        if k in (6, 7, 8):
            dma_w(k + 6)
    lds_spin("msr", ST_SY + 32, 4, 5)
    lg.done = lg.n
    a("v_lshlrev_b32 v4, 4, v0")
    for i in range(4):
        a(f"s_sub_u32 s3, s{LW}, {i + 1}")
        a("s_and_b32 s3, s3, 3")
        a("s_cmp_eq_u32 s3, 3")
        a(f"s_cbranch_scc1 {L('skw%d' % i)}")
        a(f"s_add_u32 s3, s3, {3*i}")
        a("s_lshl_b32 s3, s3, 12")
        a(f"s_add_u32 s3, s3, {BQ}")
        a("v_add_u32 v5, s3, v4")
        for u in range(4):
            a(f"ds_write_b128 v5, {v(G_ACC+4*(4*u+i),4)} offset:{u*1024}")
        a(f"s_branch {L('dnw%d' % i)}")
        a.label(L('skw%d' % i))
        for u in range(4):
            for r in (0, 2):
                a(f"v_pk_mov_b32 {v(32+4*u+r,2)}, {v(G_ACC+4*(4*u+i)+r,2)}, {v(G_ACC+4*(4*u+i)+r,2)} op_sel:[0,1]")
        a.label(L('dnw%d' % i))
    a(f"s_lshl_b32 s3, s{LW}, 2")
    a("v_mov_b32 v5, s3")
    a(f"v_mov_b32 v6, s{S_TAG}")
    a("s_waitcnt vmcnt(0) lgkmcnt(0)")
    a(f"ds_write_b32 v5, v6 offset:{ST_SY + 48}")
    for u in range(4):
        for d in range(2):
            a(f"v_lshlrev_b32 v6, 16, {v(XR+2*u+d)}")
            a(f"v_and_b32 v7, 0xffff0000, {v(XR+2*u+d)}")
            a(f"v_pk_add_f32 {v(32+4*u+2*d,2)}, {v(32+4*u+2*d,2)}, v[6:7]")
    a(f"s_mul_i32 s3, s{LW}, 12288")
    a(f"s_add_u32 s0, s3, {BQ}")
    a("v_add_u32 v14, s0, v4")
    for u in range(4):
        a(f"v_subrev_u32 {v(10+u)}, s3, {v(10+u)}")
        a(f"v_subrev_u32 {v(18+u)}, s3, {v(18+u)}")
    a(f"s_lshl_b32 s3, s{LW}, 10")
    a("v_add_u32 v1, s3, v1")
    srd(a, 40, S_OUT, 2048 * 1024)
    ts("l")
    poll("po", 23, 4, sleep=OSL)
    ts("l")
    lg = Counter(a, "lgkmcnt", 12)
    vm = Counter(a, "vmcnt", 60)
    for n in range(16):
        a(f"s_mov_b32 s60, {n*HS}")
        vm.issue(f"buffer_load_dwordx4 {v(128+4*n,4)}, v1, s[52:55], s60 offen sc1", ("o", n))
    lds_spin("lsr", ST_SY + 48, 5, 6)
    for sl in range(3):
        for u in range(4):
            lg.issue(f"ds_read_b128 {v(192+16*sl+4*u,4)}, v14 offset:{sl*4096 + u*1024}", ("p", sl))
    WBL = [48, 64, 80, 96, 112]
    NPRE = len(WBL)
    def rd_wo(n):
        b, o = slot_off(NH + (n >> 2))
        for u in range(4):
            for hf in range(2):
                lg.issue(f"ds_read_b64_tr_b16 {v(WBL[n % NPRE]+4*u+2*hf,2)}, {v(10+4*b+u)} offset:{(n&3)*12288 + o + hf*2048}", ("wo", n, u))
    for sl in range(3):
        lg.wait(("p", sl))
        for e in range(0, 16, 2):
            a(f"v_pk_add_f32 {v(32+e,2)}, {v(32+e,2)}, {v(192+16*sl+e,2)}")
        rd_wo(sl)
    for n in range(16):
        if n + 3 < 16:
            lg.wait(("wo", n + 2, 1))
            rd_wo(n + 3)
        vm.wait(("o", n))
        for u in range(4):
            lg.wait(("wo", n, u))
            a(f"v_mfma_f32_16x16x32_bf16 {v(32+4*u,4)}, {v(WBL[n % NPRE]+4*u,4)}, {v(128+4*n,4)}, {v(32+4*u,4)}")
    ts("l", lg)
    a("s_nop 7")
    for h2 in range(2):
        d = 32 + 8 * h2
        a(f"v_cvt_pk_bf16_f32 {v(d)}, {v(d)}, {v(d+1)}")
        a(f"v_cvt_pk_bf16_f32 {v(d+1)}, {v(d+2)}, {v(d+3)}")
        a(f"v_cvt_pk_bf16_f32 {v(d+2)}, {v(d+4)}, {v(d+5)}")
        a(f"v_cvt_pk_bf16_f32 {v(d+3)}, {v(d+6)}, {v(d+7)}")
        a("s_nop 0")
        a(f"v_permlane16_swap_b32 {v(d)}, {v(d+2)}")
        a(f"v_permlane16_swap_b32 {v(d+1)}, {v(d+3)}")
        a(f"buffer_store_dwordx4 {v(d,4)}, v8, s[40:43], 0 offen offset:{64*h2} {OP}")
    ts_dump("l")
    a.label(L("end"))
    a("s_endpgm")
```

```python
from asmlib import *
import gen
def mk(lines, nw):
  def body(a, name):
    a("s_load_dwordx2 s[12:13], s[0:1], 72")
    a("v_lshrrev_b32 v1, 6, v0")
    a("s_nop 0")
    a("v_readfirstlane_b32 s16, v1")
    for r in range(16, 80): a(f"v_mov_b32 v{r}, -1.0")
    a("s_waitcnt lgkmcnt(0)")
    a("s_mov_b32 s20, 0")
    a("s_memtime s[40:41]")
    a("s_waitcnt lgkmcnt(0)")
    a.label(name + "_l")
    for l in lines: a(l)
    a("s_add_u32 s20, s20, 1")
    a("s_cmp_lt_u32 s20, 32")
    a(f"s_cbranch_scc1 {name}_l")
    a("s_memtime s[42:43]")
    a("s_waitcnt lgkmcnt(0)")
    a("s_sub_u32 s42, s42, s40")
    srd(a, 36, 12, 64 << 20, 0)
    a("s_lshl_b32 s19, s2, 6")
    a("s_lshl_b32 s3, s16, 3")
    a("s_add_u32 s19, s19, s3")
    a("s_add_u32 s19, s19, 0x1000000")
    a("v_mov_b32 v3, s19")
    a("v_mov_b32 v4, s42")
    a("buffer_store_dword v4, v3, s[36:39], 0 offen")
    a("s_endpgm")
  return body
E = [f"v_exp_f32 v{48+r}, v{16+r}" for r in range(16)]
EI = [f"v_exp_f32 v{16+r}, v{16+r}" for r in range(16)]
C = [f"v_cvt_pk_bf16_f32 v{64+p}, v{48+2*p}, v{49+2*p}" for p in range(8)]
A = [f"v_add_f32 v{48+r}, v{16+r}, v{17+r}" for r in range(16)]
MF = "v_mfma_f32_32x32x16_bf16 v[96:111], v[80:83], v[84:87], v[96:111]"
MF2 = "v_mfma_f32_32x32x16_bf16 v[112:127], v[80:83], v[84:87], v[128:143]"
T = [MF2] + E[:6] + [MF] + E[6:12] + [MF] + E[12:] + C
mix = []
for r in range(8): mix += [E[2*r], C[r], E[2*r+1]]
L = [("e", E, 4), ("ei", EI, 4), ("c", C + C, 4), ("a", A, 4), ("t", T, 4), ("e8", E, 8), ("mix", mix, 4), ("t8", T, 8)]
for nm, l, nw in L:
    gen.build([("mb_kernel", mk(l, nw), 256, 64 * nw, 0, 160, 100)], f"ex_{nm}.s")
```

```python
from asmlib import *

WS_QK = 0
WS_VT = 4 << 20
WS_H = 18 << 20
NSLAB_H = 43
WS_O = 26 << 20
WS_SY = 14 << 20
SY_EPOCH = 0
SY_ROW = 0x20000
SY_F = 0x40000
SY_OF = 0x80000
SY_SIZE = 0xA0000
WS_TIM = 16 << 20

STG = 53248
XB = 16384
IMG = 12288
ST_M = 0
ST_RS = 512
ST_CS = 1024
ST_SY = 2304
SB = 4096
LDS_BYTES = SB + 3 * STG

ACC = 96
WF = 56
XF = 24
SPIN = 300000

S_X, S_WQKV, S_WO, S_WG, S_WU, S_WD, S_OUT, S_DBG, S_WS = 4, 6, 8, 12, 14, 16, 18, 20, 22
S_RB, S_C, S_W, S_TB, S_J, S_TAG, S_EP = 24, 25, 26, 27, 28, 29, 30
SY = 32
KNAME = 'parallel_sum__sliding_block__glu_gated_reglu__prompt_kernel'
S_AB, S_HD = 10, 11
BQ = SB + STG
WOFF = XB

def bf16_round(a, r):
    a(f"v_cvt_pk_bf16_f32 {v(r)}, {v(r)}, {v(r)}")
    a(f"v_lshlrev_b32 {v(r)}, 16, {v(r)}")

def allreduce64x2(a, r0, r1, t0, t1):
    for c in ("quad_perm:[1,0,3,2]", "quad_perm:[2,3,0,1]", "row_half_mirror", "row_mirror"):
        a("s_nop 0")
        a(f"v_add_f32_dpp {v(r0)}, {v(r0)}, {v(r0)} {c} row_mask:0xf bank_mask:0xf")
        a(f"v_add_f32_dpp {v(r1)}, {v(r1)}, {v(r1)} {c} row_mask:0xf bank_mask:0xf")
    for sw in ("v_permlane16_swap_b32", "v_permlane32_swap_b32"):
        a(f"v_mov_b32 {v(t0)}, {v(r0)}")
        a(f"v_mov_b32 {v(t1)}, {v(r1)}")
        a("s_nop 0")
        a(f"{sw} {v(r0)}, {v(t0)}")
        a(f"{sw} {v(r1)}, {v(t1)}")
        a("s_nop 0")
        a(f"v_add_f32 {v(r0)}, {v(r0)}, {v(t0)}")
        a(f"v_add_f32 {v(r1)}, {v(r1)}, {v(t1)}")

def body(a, name, timing=False, opt=(), BA=1, QSL=2, HSL=2, LP0=1, PF1=-1, PF2=4, PFSK=2, RF=6, RF2=2, EW=0, QD=1, QD3=0, OSL=2, ROT=None, HALF=1, OP='', RDE=6, QS=65536, HS=131072, P1N=6, ATP=2, LP2=0, ATV=2, UNT=4000, AP=None, LS0=1, LS1=1, IR=0):
    L = lambda x: f"{name}_{x}"
    TS = {}
    def ts(role, lg=None):
        if timing:
            i = TS.get(role, 0)
            assert i < 14
            a(f"s_memtime s[{68+2*i}:{69+2*i}]")
            a("s_waitcnt lgkmcnt(0)")
            if lg is not None: lg.done = lg.n
            TS[role] = i + 1
    def ts_dump(role):
        if timing:
            a("s_mov_b64 exec, -1")
            a("s_waitcnt vmcnt(0)")
            ts(role)
            a("s_memrealtime s[98:99]")
            a("s_waitcnt lgkmcnt(0)")
            srd(a, 36, S_WS, 1 << 20, WS_TIM)
            a("s_lshl_b32 s3, s2, 9")
            a(f"s_lshl_b32 s40, s{S_W}, 6")
            a("s_add_u32 s3, s3, s40")
            a("v_mov_b32 v3, s3")
            a("v_mov_b32 v4, s96")
            a("v_mov_b32 v5, s98")
            a("buffer_store_dwordx2 v[4:5], v3, s[36:39], 0 offen offset:56")
            for q in range(TS[role]):
                a("s_nop 1")
                a(f"s_sub_u32 s40, s{68+2*q}, s100")
                a("v_mov_b32 v4, s40")
                a(f"buffer_store_dword v4, v3, s[36:39], 0 offen offset:{4*q}")
    def poll(lbl, vaddr, vdst, width=1, tagreg=0, sleep=2):
        a(f"s_mov_b32 s3, {SPIN}")
        a.label(L(lbl))
        w = {1: "dword", 4: "dwordx4"}[width]
        a(f"buffer_load_{w} {v(vdst,width)}, {v(vaddr)}, {s(SY,4)}, 0 offen sc1")
        a("s_waitcnt vmcnt(0)")
        a(f"v_cmp_eq_u32 vcc, s{S_TAG}, {v(vdst+tagreg)}")
        a("s_sub_u32 s3, s3, 1")
        a("s_cmp_eq_u32 s3, 0")
        a(f"s_cbranch_scc1 {L(lbl+'_ok')}")
        a("s_cmp_eq_u64 vcc, -1")
        a(f"s_cbranch_scc1 {L(lbl+'_ok')}")
        a(f"s_sleep {sleep}")
        a(f"s_branch {L(lbl)}")
        a.label(L(lbl + "_ok"))
    def mktag():
        a(f"s_mul_i32 s{S_TAG}, s{S_EP}, 0x01010101")
        a(f"s_add_u32 s{S_TAG}, s{S_TAG}, 0x5A3C96E1")

    a("s_cmp_ge_u32 s2, 256")
    a(f"s_cbranch_scc1 {L('end')}")
    a("s_load_dwordx4 s[4:7], s[0:1], 0")
    a("s_load_dwordx4 s[12:15], s[0:1], 32")
    a("s_load_dwordx4 s[20:23], s[0:1], 64")
    a("s_load_dwordx2 s[8:9], s[0:1], 16")
    a("s_load_dwordx4 s[16:19], s[0:1], 48")
    if timing or "until" in opt:
        a("s_memtime s[100:101]")
        a("s_memrealtime s[96:97]")
    a("s_and_b32 s3, s2, 7")
    a("s_lshr_b32 s31, s2, 3")
    if "mapA" in opt:
        a(f"s_and_b32 s{S_RB}, s3, 1")
        a(f"s_lshl_b32 s{S_RB}, s{S_RB}, 3")
        a("s_and_b32 s40, s31, 7")
        a(f"s_add_u32 s{S_RB}, s{S_RB}, s40")
        a(f"s_lshr_b32 s{S_C}, s3, 1")
        a("s_lshr_b32 s40, s31, 3")
        a("s_lshl_b32 s40, s40, 2")
        a(f"s_add_u32 s{S_C}, s{S_C}, s40")
    elif "mapB" in opt:
        a(f"s_and_b32 s{S_RB}, s3, 3")
        a(f"s_lshl_b32 s{S_RB}, s{S_RB}, 2")
        a("s_and_b32 s40, s31, 3")
        a(f"s_add_u32 s{S_RB}, s{S_RB}, s40")
        a(f"s_lshr_b32 s{S_C}, s3, 2")
        a("s_lshr_b32 s40, s31, 2")
        a("s_lshl_b32 s40, s40, 1")
        a(f"s_add_u32 s{S_C}, s{S_C}, s40")
    else:
        a(f"s_lshl_b32 s{S_RB}, s3, 1")
        a("s_and_b32 s40, s31, 1")
        a(f"s_add_u32 s{S_RB}, s{S_RB}, s40")
        a(f"s_lshr_b32 s{S_C}, s31, 1")
    a(f"s_lshl_b32 s{S_TB}, s3, 2")
    a("s_and_b32 s40, s31, 3")
    a(f"s_add_u32 s{S_TB}, s{S_TB}, s40")
    a(f"s_lshr_b32 s{S_J}, s31, 2")
    a(f"s_mov_b32 s{S_AB}, s3")
    a(f"s_mov_b32 s{S_HD}, s31")
    a("v_lshrrev_b32 v1, 6, v0")
    a("v_and_b32 v0, 63, v0")
    a("s_nop 0")
    a(f"v_readfirstlane_b32 s{S_W}, v1")
    a("s_nop 3")
    a(f"s_cmp_ge_u32 s{S_W}, 4")
    a(f"s_cbranch_scc1 {L('loader')}")
    def lds_spin(lbl, base, va, vd, sleep=0):
        a(f"v_and_b32 {v(va)}, 3, v0")
        a(f"v_lshlrev_b32 {v(va)}, 2, {v(va)}")
        a(f"s_mov_b32 s3, {SPIN * 20}")
        a.label(L(lbl))
        a(f"ds_read_b32 {v(vd)}, {v(va)} offset:{base}")
        a("s_waitcnt lgkmcnt(0)")
        a(f"v_cmp_eq_u32 vcc, s{S_TAG}, {v(vd)}")
        a("s_sub_u32 s3, s3, 1")
        a("s_cmp_eq_u32 s3, 0")
        a(f"s_cbranch_scc1 {L(lbl + '_ok')}")
        a("s_cmp_eq_u64 vcc, -1")
        a(f"s_cbranch_scc1 {L(lbl + '_ok')}")
        if sleep: a(f"s_sleep {sleep}")
        a(f"s_branch {L(lbl)}")
        a.label(L(lbl + "_ok"))

    a(f"s_lshl_b32 s40, s{S_RB}, 7")
    a(f"s_lshl_b32 s41, s{S_C}, 3")
    a("s_add_u32 s40, s40, s41")
    a(f"s_lshl_b32 s41, s{S_W}, 1")
    a("s_add_u32 s40, s40, s41")
    a("s_lshl_b32 s40, s40, 10")
    a("v_lshlrev_b32 v8, 4, v0")
    a("s_waitcnt lgkmcnt(0)")
    srd(a, 36, S_X, 2048 * 1024)
    a("buffer_load_dwordx4 v[44:47], v8, s[36:39], s40 offen")
    a("buffer_load_dwordx4 v[48:51], v8, s[36:39], s40 offen offset:1024")
    if "pfc" in opt:
        a(f"s_cmp_lg_u32 s{S_W}, 0")
        a(f"s_cbranch_scc1 {L('npc')}")
        a("s_getpc_b64 s[40:41]")
        a.label(L("pcb"))
        a(f"s_sub_u32 s40, s40, {L('pcb')}-{KNAME}")
        a("s_subb_u32 s41, s41, 0")
        a("v_min_u32 v1, 19, v0")
        a("v_lshlrev_b32 v1, 7, v1")
        a("s_mul_i32 s42, s31, 2560")
        a("v_add_u32 v1, s42, v1")
        a(f"v_min_u32 v1, {L('end')}-{KNAME}, v1")
        a("global_load_dword v255, v1, s[40:41]")
        a.label(L("npc"))
    PFN = [0]
    def pf(w, ptr, nbytes, lines, skip=0):
        PFN[0] += 1
        lb = L('npd%d' % PFN[0])
        a(f"s_cmp_lg_u32 s{S_W}, {w}")
        a(f"s_cbranch_scc1 {lb}")
        srd(a, 52, ptr, nbytes)
        a(f"s_mul_i32 s67, s2, {lines * 128}")
        if skip: a(f"s_add_u32 s67, s67, {skip}")
        a("v_lshlrev_b32 v22, 7, v0")
        a(f"v_min_u32 v22, {(lines - 1) * 128}, v22")
        a("buffer_load_dword v21, v22, s[52:55], s67 offen")
        a.label(lb)
    def pf_w1():
        sk = PFSK * 64
        pf(1, S_WQKV, 512 * 3072, (512 - sk) * 24 // 256, sk * 3072)
        pf(2, S_WG, 512 * 2752, -(-(512 - sk) * 43 // 512), sk * 2752)
        pf(3, S_WU, 512 * 2752, -(-(512 - sk) * 43 // 512), sk * 2752)
    def pf_w2():
        pf(0, S_WD, 1376 * 1024, 43)
        pf(1, S_WO, 512 * 1024, 16)
    if PF1 == -1: pf_w1()
    if PF2 == -1: pf_w2()
    srd(a, SY, S_WS, SY_SIZE, WS_SY)
    a(f"s_load_dword s{S_EP}, s[{SY}:{SY+1}], {SY_EPOCH}")
    a(f"s_and_b32 s42, s{S_W}, 1")
    a(f"s_lshr_b32 s43, s{S_W}, 1")
    a("v_and_b32 v1, 15, v0")
    a("v_lshrrev_b32 v2, 4, v0")
    a("v_lshrrev_b32 v3, 1, v1")
    a("v_xor_b32 v3, v3, v2")
    a("v_lshlrev_b32 v3, 4, v3")
    a("s_lshl_b32 s40, s42, 13")
    a("v_lshl_add_u32 v3, v1, 7, v3")
    a(f"s_add_u32 s40, s40, {SB}")
    a("v_add_u32 v9, s40, v3")
    a("v_xor_b32 v10, 64, v9")
    a(f"s_cmp_lt_u32 s{S_C}, 10")
    a("s_movk_i32 s44, 544")
    a("s_movk_i32 s45, 256")
    a("s_cselect_b32 s44, 288, s44")
    a("s_cselect_b32 s45, 128, s45")
    a("s_mul_i32 s41, s43, s45")
    a("v_lshrrev_b32 v4, 2, v0")
    a("v_mul_u32_u24 v4, s44, v4")
    a("v_and_b32 v5, 3, v0")
    a("v_lshl_add_u32 v4, v5, 3, v4")
    a(f"s_add_u32 s40, s41, {SB + WOFF}")
    a("v_add_u32 v11, s40, v4")
    for b in (1, 2):
        for i in range(3):
            a(f"v_add_u32 {v(9+3*b+i)}, {STG*b}, {v(9+i)}")
    a("s_lshl_b32 s40, s42, 8")
    a("v_lshl_add_u32 v3, v1, 2, s40")
    a("v_lshl_add_u32 v6, v2, 4, s40")
    a("s_lshl_b32 s40, s41, 1")
    a("v_lshl_add_u32 v4, v2, 4, s40")
    a("v_lshl_add_u32 v5, v1, 2, s40")
    a(f"s_lshl_b32 s40, s{S_RB}, 4")
    a(f"s_add_u32 s40, s40, s{S_C}")
    a("s_lshl_b32 s40, s40, 2")
    a(f"s_add_u32 s40, s40, s{S_W}")
    a("s_lshl_b32 s46, s40, 7")
    a(f"s_add_u32 s31, s46, {SY_F}")
    a("s_mov_b32 s44, 0x3b000000")
    a("s_mov_b32 s45, 0x3727c5ac")
    a("v_and_b32 v22, 1, v2")
    a("v_lshrrev_b32 v23, 1, v2")
    a(f"s_cmp_lt_u32 s{S_C}, 10")
    a(f"s_cbranch_scc1 {L('setF')}")
    srd(a, 48, S_WS, 96 * QS, WS_QK)
    a("v_lshl_add_u32 v7, v22, 4, v1")
    a("v_lshlrev_b32 v7, 5, v7")
    a("v_lshl_add_u32 v7, v23, 4, v7")
    a(f"s_sub_u32 s60, s{S_C}, 10")
    a("s_lshl_b32 s60, s60, 1")
    a("s_add_u32 s60, s60, s43")
    a(f"s_mul_i32 s60, s60, {8 * QS}")
    a(f"s_lshl_b32 s40, s{S_RB}, 12")
    a("s_add_u32 s60, s60, s40")
    a("s_lshl_b32 s40, s42, 11")
    a("s_add_u32 s60, s60, s40")
    a(f"s_cmp_lt_u32 s{S_C}, 12")
    a("s_cselect_b32 s66, 0x3eb8aa3b, 1.0")
    a(f"s_branch {L('setD')}")
    a.label(L("setF"))
    srd(a, 48, S_WS, NSLAB_H * HS, WS_H)
    a("v_lshl_add_u32 v7, v23, 4, v1")
    a("v_lshlrev_b32 v7, 4, v7")
    a("v_lshl_add_u32 v7, v22, 10, v7")
    a(f"s_mul_i32 s40, s{S_C}, 9")
    a("s_lshl_b32 s41, s43, 2")
    a("s_add_u32 s40, s40, s41")
    a(f"s_lshl_b32 s41, s{S_RB}, 13")
    a("s_lshl_b32 s3, s42, 12")
    a("s_add_u32 s41, s41, s3")
    for e in range(5):
        a(f"s_add_u32 s3, s40, {e}")
        a(f"s_lshr_b32 s{60+e}, s3, 1")
        a(f"s_mul_i32 s{60+e}, s{60+e}, {HS}")
        a("s_and_b32 s3, s3, 1")
        a("s_lshl_b32 s3, s3, 9")
        a(f"s_add_u32 s{60+e}, s{60+e}, s3")
        a(f"s_add_u32 s{60+e}, s{60+e}, s41")
    a.label(L("setD"))
    a("s_waitcnt vmcnt(0)")
    if PF1 == -2: pf_w1()
    for k in range(2):
        for d in range(4):
            a(f"v_lshlrev_b32 {v(52+8*k+2*d)}, 16, {v(44+4*k+d)}")
            a(f"v_and_b32 {v(53+8*k+2*d)}, 0xffff0000, {v(44+4*k+d)}")
    for k in range(2):
        a(f"v_add_f32 {v(68+k)}, {v(52+8*k)}, {v(53+8*k)}")
    for e in range(2, 8):
        for k in range(2):
            a(f"v_add_f32 {v(68+k)}, {v(68+k)}, {v(52+8*k+e)}")
    allreduce64x2(a, 68, 69, 72, 73)
    for k in range(2):
        a(f"v_mul_f32 {v(68+k)}, s44, {v(68+k)}")
    for e in range(8):
        for k in range(2):
            a(f"v_sub_f32 {v(52+8*k+e)}, {v(52+8*k+e)}, {v(68+k)}")
    for k in range(2):
        a(f"v_mul_f32 {v(70+k)}, {v(52+8*k)}, {v(52+8*k)}")
    for e in range(1, 8):
        for k in range(2):
            a(f"v_fmac_f32 {v(70+k)}, {v(52+8*k+e)}, {v(52+8*k+e)}")
    allreduce64x2(a, 70, 71, 72, 73)
    for k in range(2):
        q = 70 + k
        a(f"v_mul_f32 {v(q)}, s44, {v(q)}")
        bf16_round(a, q)
        a(f"v_add_f32 {v(q)}, s45, {v(q)}")
        bf16_round(a, q)
        a(f"v_sqrt_f32 {v(q)}, {v(q)}")
    a("s_waitcnt lgkmcnt(0)")
    mktag()
    for k in range(2):
        a(f"v_cvt_pk_bf16_f32 {v(100+k)}, {v(68+k)}, {v(70+k)}")
    a(f"v_mov_b32 v102, s{S_TAG}")
    a(f"v_mov_b32 v103, s{S_TAG}")
    a(f"s_add_u32 s40, s46, {SY_ROW}")
    a("s_mov_b64 exec, 0xff")
    a(f"buffer_store_dwordx4 v[100:103], v8, {s(SY,4)}, s40 offen sc1")
    a("s_mov_b64 exec, -1")
    a(f"s_lshl_b32 s3, s{S_W}, 2")
    a("v_mov_b32 v22, s3")
    a(f"s_not_b32 s3, s{S_TAG}")
    a("v_mov_b32 v23, s3")
    a(f"ds_write_b32 v22, v23 offset:{ST_SY}")
    a(f"ds_write_b32 v22, v23 offset:{ST_SY + 16}")
    a(f"ds_write_b32 v22, v23 offset:{ST_SY + 32}")
    a(f"ds_write_b32 v22, v23 offset:{ST_SY + 48}")
    a("s_waitcnt lgkmcnt(0)")
    ts("c")
    a("s_barrier")
    ts("c")
    a(f"s_cmp_lt_u32 s{S_C}, 10")
    a(f"s_cbranch_scc1 {L('mF')}")
    a(f"s_cmp_lt_u32 s{S_C}, 14")
    a(f"s_cbranch_scc1 {L('mQ')}")
    A = lambda j, i, r: ACC + 4 * (4 * j + i) + r
    BL = "op_sel_hi:[1,0,1]"
    MR = XF
    ts0 = TS.get("c", 0)
    for ty, fw in (("V", 0), ("Q", 0), ("F", 0), ("F", 1)):
        TS["c"] = ts0
        if ty != "V" and fw == 0: a.label(L("m" + ty))
        if ty == "F" and fw == 0:
            a("s_cmp_eq_u32 s43, 1")
            a(f"s_cbranch_scc1 {L('mF1')}")
        if ty == "F" and fw == 1: a.label(L("mF1"))
        def toks(j):
            if ty == "F" and HALF and j % 5 == (4 if fw == 0 else 0):
                return [0, 1] if fw == 0 else [2, 3]
            return [0, 1, 2, 3]
        NTL = 10 if ty == "F" else 8
        lg = Counter(a, "lgkmcnt", 12)
        vm = Counter(a, "vmcnt", 60)
        def q_x(step):
            buf, ks = (step // 2) % 3, step % 2
            return [(f"ds_read_b128 {v(XF+16*ks+4*i,4)}, {v(9+3*buf+ks)} offset:{i*2048}", ("x", step, i)) for i in range(4)]
        def q_w(step, j):
            buf, ks = (step // 2) % 3, step % 2
            out = []
            for hf in range(2):
                off = ((j // 5) * 18432 + ks * 9216 + hf * 4608 + (j % 5) * 32) if ty == "F" else ((2 * ks + hf) * 9216 + j * 32)
                out.append((f"ds_read_b64_tr_b16 {v(WF+4*j+2*hf,2)}, {v(11+3*buf)} offset:{off}", ("w", step, j)))
            return out
        def mfma(j, i, step):
            acc = v(A(j, i, 0), 4)
            c = "0" if step == 0 else acc
            w = v(WF + 4 * j, 4); x = v(XF + 16 * (step % 2) + 4 * i, 4)
            if ty == "V":
                return f"v_mfma_f32_16x16x32_bf16 {acc}, {x}, {w}, {c}"
            return f"v_mfma_f32_16x16x32_bf16 {acc}, {w}, {x}, {c}"
        def q_cs(j):
            if ty == "V":
                l = f"ds_read_b32 {v(WF+4*j)}, v5 offset:{ST_CS + j*64}"
            elif ty == "Q":
                l = f"ds_read_b128 {v(WF+4*j,4)}, v4 offset:{ST_CS + j*64}"
            else:
                l = f"ds_read_b128 {v(WF+4*j,4)}, v4 offset:{ST_CS + ((j//5)*9 + j%5)*64}"
            return [(l, ("cs", j, 0))]
        for l, t in q_x(0): lg.issue(l, t)
        for j in range(NTL):
            if j in (4, 8): lg.wait(("w", 0, j - 4))
            for l, t in q_w(0, j): lg.issue(l, t)
        pend = []
        order = list(range(NTL)) if ty != "F" else ([0, 5, 1, 6, 4, 9, 2, 7, 3, 8] if fw == 0 else [1, 6, 2, 7, 0, 5, 3, 8, 4, 9])
        for step in range(16):
            ks = step % 2
            nstep = step + 1
            hold = []
            if PF1 == step: pf_w1()
            if PF2 == step: pf_w2()
            for gi, j in enumerate(order):
                while any(t == ("w", step, j) or t[:2] == ("x", step) for _, t in pend):
                    l, t = pend.pop(0); lg.issue(l, t)
                lg.wait(("w", step, j), ("x", step, 3))
                for i in toks(j):
                    a(mfma(j, i, step))
                    if pend:
                        l, t = pend.pop(0); lg.issue(l, t)
                new = []
                if nstep < 16:
                    new += q_w(nstep, j)
                    if gi in (2, 3):
                        new += q_x(nstep)[2*(gi-2):2*(gi-2)+2]
                else:
                    new += q_cs(j)
                    if gi in (1, 2, 3, 4):
                        i = gi - 1
                        if ty == "V":
                            new.append((f"ds_read_b128 {v(224+8*i,4)}, v6 offset:{ST_M + 64*i}", ("st", i, 0)))
                            new.append((f"ds_read_b128 {v(228+8*i,4)}, v6 offset:{ST_RS + 64*i}", ("st", i, 1)))
                        else:
                            new.append((f"ds_read_b32 {v(MR+2*i)}, v3 offset:{ST_M + 64*i}", ("st", i, 0)))
                            new.append((f"ds_read_b32 {v(MR+1+2*i)}, v3 offset:{ST_RS + 64*i}", ("st", i, 1)))
                if ks == 1 and gi < BA:
                    hold += new
                    continue
                if ks == 1 and gi == BA:
                    for l, t in pend: lg.issue(l, t)
                    pend = []
                    lg.wait_all()
                    a("s_barrier")
                    if step in (3, 7, 11, 15): ts("c", lg)
                    pend += hold
                pend += new
        for l, t in pend: lg.issue(l, t)
        ts("c", lg)
        def corr(j, i):
            for r in (0, 2):
                a(f"v_pk_fma_f32 {v(A(j,i,r),2)}, {v(WF+4*j+r,2)}, {v(MR+2*i,2)}, {v(A(j,i,r),2)} {BL}")
        def pack_store(j, i0, so, off):
            d = A(j, i0, 0)
            a(f"v_cvt_pk_bf16_f32 {v(d)}, {v(d)}, {v(d+1)}")
            a(f"v_cvt_pk_bf16_f32 {v(d+1)}, {v(d+2)}, {v(d+3)}")
            a(f"v_cvt_pk_bf16_f32 {v(d+2)}, {v(d+4)}, {v(d+5)}")
            a(f"v_cvt_pk_bf16_f32 {v(d+3)}, {v(d+6)}, {v(d+7)}")
            a("s_nop 0")
            a(f"v_permlane16_swap_b32 {v(d)}, {v(d+2)}")
            a(f"v_permlane16_swap_b32 {v(d+1)}, {v(d+3)}")
            pol = "" if ("local" in opt and ty == "F") or "plainall" in opt else "sc1"
            a(f"buffer_store_dwordx4 {v(d,4)}, v7, s[48:51], {s(so)} offen offset:{off} {pol}")
        lg.wait(("st", 3, 1))
        if ty == "F":
            for i in range(4):
                a(f"v_mul_f32 {v(MR+1+2*i)}, {v(MR+1+2*i)}, {v(MR+1+2*i)}")
            for e in order[::2]:
                lg.wait(("cs", e, 0), ("cs", 5 + e, 0))
                for i in toks(e):
                    corr(e, i); corr(5 + e, i)
                    for r in range(4):
                        a(f"v_max_f32 {v(A(e,i,r))}, 0, {v(A(e,i,r))}")
                    for r in (0, 2):
                        a(f"v_pk_mul_f32 {v(A(5+e,i,r),2)}, {v(A(5+e,i,r),2)}, {v(MR+2*i,2)} op_sel:[0,1] op_sel_hi:[1,1]")
                    for r in (0, 2):
                        a(f"v_pk_mul_f32 {v(A(e,i,r),2)}, {v(A(e,i,r),2)}, {v(A(5+e,i,r),2)}")
                    if i & 1:
                        pack_store(e, i - 1, 60 + e, 1024 * (i - 1))
        else:
            if ty == "Q":
                for i in range(4):
                    a(f"v_mul_f32 {v(MR+1+2*i)}, s66, {v(MR+1+2*i)}")
            for j in range(8):
                lg.wait(("cs", j, 0))
                for i in range(4):
                    if ty == "Q":
                        corr(j, i)
                        for r in (0, 2):
                            a(f"v_pk_mul_f32 {v(A(j,i,r),2)}, {v(A(j,i,r),2)}, {v(MR+2*i,2)} op_sel:[0,1] op_sel_hi:[1,1]")
                    else:
                        for r in (0, 2):
                            a(f"v_pk_fma_f32 {v(A(j,i,r),2)}, {v(224+8*i+r,2)}, {v(WF+4*j,2)}, {v(A(j,i,r),2)} {BL}")
                        for r in (0, 2):
                            a(f"v_pk_mul_f32 {v(A(j,i,r),2)}, {v(A(j,i,r),2)}, {v(228+8*i+r,2)}")
                    if i & 1:
                        pack_store(j, i - 1, 60, 512 * (i - 1))
                a(f"s_add_u32 s60, s60, {QS}")
        if not (ty == "F" and fw == 1):
            a(f"s_branch {L('mdone')}")
    a.label(L("mdone"))
    ts("c")
    KF, VF, QF = 16, 56, 136
    S = [144, 160, 176]
    NM, O, P, MK = 192, 208, 224, 240
    LP = "" if "local" in opt else "sc1"
    for r in range(4):
        a(f"v_mov_b32 {v(252+r)}, s{S_TAG}")
    a("v_mov_b32 v15, v8")
    a(f"s_setprio {ATP}")
    srd(a, 56, S_WS, 16 * HS, WS_O)
    a(f"s_mov_b32 s42, s{S_HD}")
    a(f"s_lshl_b32 s43, s{S_AB}, 2")
    a(f"s_add_u32 s43, s43, s{S_W}")
    a("s_lshl_b32 s45, s43, 6")
    a("v_and_b32 v1, 31, v0")
    a("v_lshrrev_b32 v2, 5, v0")
    a("v_lshlrev_b32 v3, 4, v2")
    a("v_lshlrev_b32 v8, 3, v2")
    a("v_sub_u32 v8, v1, v8")
    a("s_sub_u32 s37, s45, 256")
    a("s_mov_b32 exec_lo, 0xffff0000")
    a("s_mov_b32 exec_hi, 0xffff0000")
    for kt in range(10):
        a(f"s_cmp_ge_i32 s37, {-32*kt}")
        a("s_cselect_b32 s40, 0x3f803f80, 0")
        a("s_mov_b32 s41, s40")
        for r in range(0, 8, 2):
            a(f"v_pk_mov_b32 {v(VF+8*kt+r,2)}, s[40:41], s[40:41]")
    a("s_mov_b64 exec, -1")
    a(f"s_lshl_b32 s40, s{S_W}, 11")
    a(f"s_add_u32 s40, s40, {BQ}")
    a("v_add_u32 v4, s40, v15")
    a("v_and_b32 v5, 0x13, v1")
    a("v_bfe_u32 v7, v1, 2, 1")
    a("v_lshl_or_b32 v5, v7, 3, v5")
    a("v_bfe_u32 v7, v1, 3, 1")
    a("v_lshl_or_b32 v5, v7, 2, v5")
    a("v_lshl_add_u32 v7, v5, 5, v3")
    a("v_add_u32 v7, s40, v7")
    a("v_and_b32 v12, 15, v1")
    a("v_lshl_add_u32 v12, v2, 4, v12")
    a("v_lshlrev_b32 v12, 4, v12")
    a("v_lshrrev_b32 v13, 4, v1")
    a("v_lshl_add_u32 v12, v13, 10, v12")
    a("s_and_b32 s40, s42, 1")
    a("s_lshl_b32 s40, s40, 9")
    a("v_add_u32 v12, s40, v12")
    a("s_lshr_b32 s46, s42, 1")
    a(f"s_mul_i32 s46, s46, {HS}")
    a("s_lshl_b32 s40, s43, 12")
    a("s_add_u32 s46, s46, s40")
    if timing:
        MSL = [4, 6, 8, 10, 12, 14, 16, 18, 60, 62, 64, 66, 24, 40, 0, 20]
    else:
        MSL = [60 + 2 * r for r in range(16)]
    for r in range(16):
        a(f"v_cmp_le_i32 {s(MSL[r],2)}, {(r&7)+16*(r>>3)}, v8")
    a("v_mov_b32 v9, 0xffff")
    a("v_mov_b32 v10, 0xffff0000")
    for p in range(8):
        a(f"v_cndmask_b32 {v(MK+p)}, 0, v9, {s(MSL[2*p],2)}")
        a(f"v_cndmask_b32 v11, 0, v10, {s(MSL[2*p+1],2)}")
        a(f"v_or_b32 {v(MK+p)}, {v(MK+p)}, v11")
    a("s_waitcnt vmcnt(0)")
    a("s_mov_b64 exec, 0xff")
    a(f"buffer_store_dwordx4 v[252:255], v15, {s(SY,4)}, s31 offen sc1")
    a("s_mov_b64 exec, -1")
    a(f"s_lshl_b32 s3, s{S_W}, 2")
    a("v_mov_b32 v14, s3")
    a(f"ds_write_b32 v14, v252 offset:{ST_SY + 16}")
    ts("c")
    lds_spin("msync", ST_SY, 14, 13, sleep=1)
    ts("c")
    vm = Counter(a, "vmcnt", 60)
    lg = Counter(a, "lgkmcnt", 12)
    for t in range(2):
        lg.issue(f"ds_read_b128 {v(QF+4*t,4)}, v4 offset:{32768 + 1024*t}", ("q", t))
    for kt in range(10):
        lg.issue(f"ds_read_b128 {v(KF+4*kt,4)}, v4 offset:{1024*kt}", ("k", kt))
    a("s_mov_b32 exec_lo, 0xffff")
    a("s_mov_b32 exec_hi, 0xffff")
    for kt in range(10):
        lg.wait(("k", kt))
        for hh in range(2):
            lg.issue(f"ds_read_b128 {v(VF+8*kt+4*hh,4)}, v7 offset:{16384 + 1024*kt + 512*hh}", ("v", kt))
    a("s_mov_b64 exec, -1")
    def M(dst, kt, t, c):
        lg.wait(("k", kt), ("q", t))
        a(f"v_mfma_f32_32x32x16_bf16 {v(dst,16)}, {v(KF+4*kt,4)}, {v(QF+4*t,4)}, {c}")
    if ATV == 1:
        for t in range(2):
            far, diag = t, t + 8
            full = list(range(t + 1, t + 8))
            MX = 14
            M(O, far, t, "0")
            if t == 0: ts("c", lg)
            M(S[0], full[0], t, "0")
            M(S[1], full[1], t, "0")
            a("s_nop 7")
            def mx(src, first=False):
                for q in range(0, 16, 4):
                    if first and q == 0:
                        a(f"v_max_f32 {v(MX)}, {v(src)}, {v(src+1)}")
                        a(f"v_max_f32 {v(MX+1)}, {v(src+2)}, {v(src+3)}")
                    else:
                        a(f"v_max3_f32 {v(MX)}, {v(src+q)}, {v(src+q+1)}, {v(MX)}")
                        a(f"v_max3_f32 {v(MX+1)}, {v(src+q+2)}, {v(src+q+3)}, {v(MX+1)}")
            for n in range(7):
                if n + 2 < 7:
                    M(S[(n + 2) % 3], full[n + 2], t, "0")
                elif n + 2 == 7:
                    M(NM, diag, t, "0")
                if n == 0:
                    a("s_nop 1")
                mx(S[n % 3], first=(n == 0))
            for r in range(16):
                a(f"v_cndmask_b32 {v(O+r)}, {v(O+r)}, {v(NM+r)}, {s(MSL[r],2)}")
            mx(O)
            a(f"v_max_f32 {v(MX)}, {v(MX)}, {v(MX+1)}")
            a(f"v_mov_b32 {v(MX+1)}, {v(MX)}")
            a("s_nop 1")
            a(f"v_permlane32_swap_b32 {v(MX)}, {v(MX+1)}")
            a("s_nop 1")
            a(f"v_max_f32 {v(MX)}, {v(MX)}, {v(MX+1)}")
            a(f"v_sub_f32 {v(MX)}, 0, {v(MX)}")
            for r in range(0, 16, 2):
                a(f"v_pk_mov_b32 {v(NM+r,2)}, {v(MX,2)}, {v(MX,2)} op_sel:[0,0]")
            a("s_nop 1")
            if t == 0:
                lg.wait_all(force=False)
                a(f"s_lshl_b32 s3, s{S_W}, 2")
                a("v_mov_b32 v13, s3")
                lg.issue(f"ds_write_b32 v13, v252 offset:{ST_SY + 32}")
            M(S[0], full[0], t, v(NM, 16))
            M(S[2], far, t, v(NM, 16))
            a("s_nop 9")
            first_pv = [True]
            def PV(kt, hh, preg):
                lg.wait(("v", kt))
                c = "0" if first_pv[0] else v(O, 16)
                first_pv[0] = False
                a(f"v_mfma_f32_32x32x16_bf16 {v(O,16)}, {v(VF+8*kt+4*hh,4)}, {v(preg+4*hh,4)}, {c}")
            for n in range(8):
                cur = S[n % 2]
                nxt = S[(n + 1) % 2]
                if n + 1 < 7:
                    M(nxt, full[n + 1], t, v(NM, 16))
                elif n + 1 == 7:
                    M(nxt, diag, t, v(NM, 16))
                if n == 7:
                    for r in range(16):
                        a(f"v_cndmask_b32 {v(cur+r)}, {v(S[2]+r)}, {v(cur+r)}, {s(MSL[r],2)}")
                for r in range(16):
                    a(f"v_exp_f32 {v(cur+r)}, {v(cur+r)}")
                    if n > 0 and r == 5: PV(full[n - 1], 0, P)
                    if n > 0 and r == 11: PV(full[n - 1], 1, P)
                for p in range(8):
                    a(f"v_cvt_pk_bf16_f32 {v(P+p)}, {v(cur+2*p)}, {v(cur+2*p+1)}")
            for p in range(8):
                a(f"v_bfi_b32 {v(P+8+p)}, {v(MK+p)}, 0, {v(P+p)}")
                a(f"v_and_b32 {v(P+p)}, {v(MK+p)}, {v(P+p)}")
            a("s_nop 1")
            PV(diag, 0, P); PV(diag, 1, P); PV(far, 0, P + 8); PV(far, 1, P + 8)
            a("s_nop 11")
            a(f"v_rcp_f32 v14, {v(O+8)}")
            a("s_nop 0")
            for r in range(8):
                a(f"v_mul_f32 {v(O+r)}, v14, {v(O+r)}")
            for p in range(4):
                a(f"v_cvt_pk_bf16_f32 {v(248+4*t+p)}, {v(O+2*p)}, {v(O+2*p+1)}")
            vm.issue(f"buffer_store_dwordx4 {v(248+4*t,4)}, v12, s[56:59], s46 offen offset:{2048*t} {LP}")
    else:
        MXR = [[8, 9], [10, 11]]
        FARB = [O, P]
        RB4 = [S[0], S[1], S[2], NM]
        items = []
        for n in range(7):
            for tq in range(2):
                items.append((tq, tq + 1 + n, "f"))
            if n == 2:
                items += [(0, 8, "d"), (1, 9, "d")]
        first = [True, True]
        def mx2(tq, src):
            m0, m1 = MXR[tq]
            for q in range(0, 16, 4):
                if first[tq] and q == 0:
                    a(f"v_max_f32 {v(m0)}, {v(src)}, {v(src+1)}")
                    a(f"v_max_f32 {v(m1)}, {v(src+2)}, {v(src+3)}")
                else:
                    a(f"v_max3_f32 {v(m0)}, {v(src+q)}, {v(src+q+1)}, {v(m0)}")
                    a(f"v_max3_f32 {v(m1)}, {v(src+q+2)}, {v(src+q+3)}, {v(m1)}")
            first[tq] = False
        M(RB4[0], items[0][1], items[0][0], "0")
        ts("c", lg)
        M(RB4[1], items[1][1], items[1][0], "0")
        M(FARB[0], 0, 0, "0")
        M(FARB[1], 1, 1, "0")
        M(RB4[2], items[2][1], items[2][0], "0")
        a("s_nop 6")
        for n, (tq, kt, kind) in enumerate(items):
            if n + 3 < len(items):
                M(RB4[(n + 3) % 4], items[n + 3][1], items[n + 3][0], "0")
            src = RB4[n % 4]
            if kind == "d":
                for r in range(16):
                    a(f"v_cndmask_b32 {v(src+r)}, {v(FARB[tq]+r)}, {v(src+r)}, {s(MSL[r],2)}")
            mx2(tq, src)
        for tq in range(2):
            a(f"v_max_f32 {v(MXR[tq][0])}, {v(MXR[tq][0])}, {v(MXR[tq][1])}")
        for tq in range(2):
            a(f"v_mov_b32 {v(MXR[tq][1])}, {v(MXR[tq][0])}")
        a("s_nop 0")
        for tq in range(2):
            a(f"v_permlane32_swap_b32 {v(MXR[tq][0])}, {v(MXR[tq][1])}")
        a("s_nop 0")
        for tq in range(2):
            a(f"v_max_f32 {v(MXR[tq][0])}, {v(MXR[tq][0])}, {v(MXR[tq][1])}")
        for tq in range(2):
            a(f"v_sub_f32 {v(MXR[tq][0])}, 0, {v(MXR[tq][0])}")
        def setnm(tq):
            for r in range(0, 16, 2):
                a(f"v_pk_mov_b32 {v(NM+r,2)}, {v(MXR[tq][0],2)}, {v(MXR[tq][0],2)} op_sel:[0,0]")
        setnm(0)
        lg.wait_all(force=False)
        a(f"s_lshl_b32 s3, s{S_W}, 2")
        a("v_mov_b32 v13, s3")
        lg.issue(f"ds_write_b32 v13, v252 offset:{ST_SY + 32}")
        slots = []
        for tq in range(2):
            slots.append((tq, "m"))
            for n in range(7):
                slots.append((tq, tq + 1 + n))
        NMV = v(NM, 16)
        def issue_S(n):
            tq, k = slots[n]
            if k == "m":
                M(S[n % 2], tq + 8, tq, NMV)
                M(S[2], tq, tq, NMV)
            else:
                M(S[n % 2], k, tq, NMV)
        fpv = [True, True]
        def PV2(tq, kt, hh, preg):
            c = "0" if fpv[tq] else v(O, 16)
            fpv[tq] = False
            a(f"v_mfma_f32_32x32x16_bf16 {v(O,16)}, {v(VF+8*kt+4*hh,4)}, {v(preg+4*hh,4)}, {c}")
        def pvs(n):
            tq, k = slots[n]
            if k == "m":
                return [(tq, tq + 8, 0, P), (tq, tq + 8, 1, P), (tq, tq, 0, P + 8), (tq, tq, 1, P + 8)]
            return [(tq, k, 0, P), (tq, k, 1, P)]
        def finish(tq):
            a(f"v_rcp_f32 v14, {v(O+8)}")
            a("s_nop 0")
            for r in range(8):
                a(f"v_mul_f32 {v(O+r)}, v14, {v(O+r)}")
            for p in range(4):
                a(f"v_cvt_pk_bf16_f32 {v(248+4*tq+p)}, {v(O+2*p)}, {v(O+2*p+1)}")
            vm.issue(f"buffer_store_dwordx4 {v(248+4*tq,4)}, v12, s[56:59], s46 offen offset:{2048*tq} {LP}")
        issue_S(0)
        a("s_nop 9")
        for n in range(16):
            tq, k = slots[n]
            cur = S[n % 2]
            if n + 1 < 16 and n != 7:
                issue_S(n + 1)
            if k == "m":
                if n == 0: a("s_nop 0")
                for r in range(16):
                    a(f"v_cndmask_b32 {v(cur+r)}, {v(S[2]+r)}, {v(cur+r)}, {s(MSL[r],2)}")
                    if n == 8 and r in (3, 11):
                        PV2(*pvs(7)[0 if r == 3 else 1])
            pl = pvs(n - 1) if (n > 0 and n != 8) else []
            pos = {2: (5, 11), 4: (2, 6, 10, 14), 0: ()}[len(pl)]
            for r in range(16):
                a(f"v_exp_f32 {v(cur+r)}, {v(cur+r)}")
                if r in pos: PV2(*pl[pos.index(r)])
                if n == 7 and r == 12:
                    setnm(1)
                if n == 8 and r == 12:
                    finish(0)
            if n == 7:
                issue_S(8)
            for p in range(8):
                a(f"v_cvt_pk_bf16_f32 {v(P+p)}, {v(cur+2*p)}, {v(cur+2*p+1)}")
            if n == 7:
                a("s_nop 2")
            if k == "m":
                for p in range(8):
                    a(f"v_bfi_b32 {v(P+8+p)}, {v(MK+p)}, 0, {v(P+p)}")
                    a(f"v_and_b32 {v(P+p)}, {v(MK+p)}, {v(P+p)}")
        a("s_nop 1")
        for x in pvs(15): PV2(*x)
        a("s_nop 11")
        finish(1)
    ts("c")
    a("s_lshl_b32 s40, s43, 5")
    a("s_add_u32 s40, s40, s42")
    a("s_lshl_b32 s40, s40, 7")
    a(f"s_add_u32 s40, s40, {SY_OF}")
    a("v_lshlrev_b32 v3, 4, v0")
    for r in range(4):
        a(f"v_mov_b32 {v(4+r)}, s{S_TAG}")
    a("s_mov_b64 exec, 0xff")
    a("s_waitcnt vmcnt(0)")
    a(f"buffer_store_dwordx4 v[4:7], v3, {s(SY,4)}, s40 offen {LP}")
    a("s_mov_b64 exec, -1")
    a(f"s_or_b32 s3, s2, s{S_W}")
    a("s_cmp_lg_u32 s3, 0")
    a(f"s_cbranch_scc1 {L('noep')}")
    a("v_lshlrev_b32 v8, 9, v0")
    a(f"v_add_u32 v8, {SY_F}, v8")
    for q in range(4):
        poll(f"pe{q}", 8, 9)
        a("v_add_u32 v8, 0x8000, v8")
    a(f"s_add_u32 s3, s{S_EP}, 1")
    a("v_mov_b32 v9, s3")
    a("v_mov_b32 v8, 0")
    a("s_mov_b64 exec, 1")
    a(f"buffer_store_dword v9, v8, {s(SY,4)}, 0 offen sc1")
    a.label(L("noep"))
    ts_dump("c")
    a(f"s_branch {L('end')}")

    a.label(L("loader"))
    LW = 31
    a(f"s_sub_u32 s{LW}, s{S_W}, 4")
    a("s_setprio 3")
    a("v_lshrrev_b32 v1, 3, v0")
    a("v_and_b32 v2, 7, v0")
    a(f"s_lshl_b32 s54, s{S_RB}, 7")
    a(f"s_lshl_b32 s55, s{LW}, 5")
    a("s_add_u32 s54, s54, s55")
    a("v_lshrrev_b32 v4, 4, v0")
    a("v_xor_b32 v4, v4, v2")
    a("v_add_u32 v3, s54, v1")
    a("v_lshlrev_b32 v3, 10, v3")
    a("v_lshl_add_u32 v10, v4, 4, v3")
    a("v_xor_b32 v11, 64, v10")
    a("v_add_u32 v11, 0x2000, v11")
    a("v_add_u32 v12, 0x4000, v10")
    a("v_add_u32 v13, 0x4000, v11")
    a(f"s_lshl_b32 s56, s{LW}, 12")
    a(f"s_add_u32 s56, s56, {SB}")
    a(f"s_mul_i32 s57, s{LW}, 9216")
    a(f"s_add_u32 s57, s57, {SB+WOFF}")
    a(f"s_cmp_lt_u32 s{S_C}, 10")
    a(f"s_cbranch_scc1 {L('lF')}")
    CA = [112, 117, 122]
    CS = 44
    CF = 64
    G_ACC, XR = 192, 24
    NH, NO = 11, 4
    NT = NH + NO
    BUFORD = [2, 0]
    def slot_off(k):
        sl = k % 6
        return BUFORD[sl // 3], (sl % 3) * 4096
    def w2_list(k):
        b, o = slot_off(k)
        out = []
        for q in range(4):
            kk, sr = (k, 40) if k < NH else (k - NH, 44)
            if ROT and k < NH:
                pre = ""
                if q == 0:
                    pre = (f"s_add_u32 s66, s67, {kk}\ns_cmp_ge_u32 s66, 11\ns_cselect_b32 s58, 11, 0\ns_sub_u32 s66, s66, s58\n"
                           f"s_lshl_b32 s66, s66, 17\ns_add_u32 s66, s66, s57\n")
                out.append((pre + f"s_add_u32 m0, s56, {b*STG + o + q*1024}",
                            f"s_add_u32 s58, s66, {(16*(q&1) + 4*(q>>1))*1024}",
                            f"buffer_load_dwordx4 v2, {s(sr,4)}, s58 offen lds", ("w", k)))
                continue
            out.append((f"s_add_u32 m0, s56, {b*STG + o + q*1024}",
                        f"s_add_u32 s58, s57, {kk*4*32768 + (16*(q&1) + 4*(q>>1))*1024}",
                        f"buffer_load_dwordx4 v2, {s(sr,4)}, s58 offen lds", ("w", k)))
        return out
    def p2_setup():
        srd(a, 40, S_WD, 1376 * 1024)
        srd(a, 44, S_WO, 512 * 1024)
        a("v_lshrrev_b32 v3, 3, v0")
        a("v_and_b32 v4, 7, v0")
        a("v_and_b32 v5, 6, v3")
        a("v_xor_b32 v4, v4, v5")
        a("v_lshlrev_b32 v4, 4, v4")
        a("v_and_b32 v5, 4, v3")
        a("v_add_u32 v3, v3, v5")
        a("v_lshl_add_u32 v4, v3, 10, v4")
        a(f"s_lshl_b32 s3, s{S_J}, 7")
        a("v_add_u32 v2, s3, v4")
        a(f"s_mul_i32 s56, s{LW}, 12288")
        a(f"s_add_u32 s56, s56, {SB}")
        a(f"s_lshl_b32 s57, s{LW}, 15")
        a(f"s_mul_i32 s59, s{LW}, {HS}")
        if ROT:
            a(f"s_and_b32 s67, s{S_TB}, 3")
            a(f"s_mul_i32 s67, s67, {ROT[1]}")
            a(f"s_mul_i32 s66, s{S_J}, {ROT[0]}")
            a("s_add_u32 s67, s67, s66")
            for _ in range(4):
                a("s_cmp_ge_u32 s67, 11")
                a("s_cselect_b32 s66, 11, 0")
                a("s_sub_u32 s67, s67, s66")
    ts0 = TS.get("l", 0)
    for ty in ("Q", "F"):
        TS["l"] = ts0
        if ty == "F": a.label(L("lF"))
        stride = 2752 if ty == "F" else 3072
        vm = Counter(a, "vmcnt", 60)
        lg = Counter(a, "lgkmcnt", 12)
        a(f"s_movk_i32 s63, {stride}")
        if ty == "F":
            a(f"s_and_b32 s54, s{LW}, 1")
            a("s_lshl_b32 s54, s54, 5")
            a(f"s_mul_i32 s55, s{S_C}, 288")
            a("s_movk_i32 s64, 3641")
        else:
            a(f"s_lshr_b32 s54, s{LW}, 1")
            a("s_lshl_b32 s54, s54, 5")
            a(f"s_and_b32 s55, s{LW}, 1")
            a("s_lshl_b32 s55, s55, 2")
            a("s_add_u32 s54, s54, s55")
            a(f"s_sub_u32 s55, s{S_C}, 10")
            a("s_lshl_b32 s55, s55, 9")
            a("s_movk_i32 s64, 1928")
            a("v_mov_b32 v9, 0x7fff0000")
        a("s_waitcnt lgkmcnt(0)")
        srd(a, 36, S_X, 2048 * 1024)
        if ty == "F":
            a(f"s_cmp_lt_u32 s{LW}, 2")
            a(f"s_cselect_b32 s40, s{S_WG}, s{S_WU}")
            a(f"s_cselect_b32 s41, s{S_WG+1}, s{S_WU+1}")
            a(f"s_mov_b32 s42, {hex(512*2752)}")
            a("s_mov_b32 s43, 0x00020000")
        else:
            srd(a, 40, S_WQKV, 512 * 3072)
        def dma_list(stage):
            buf = stage % 3
            out = []
            for i in range(4):
                out.append((f"s_add_u32 m0, s56, {buf*STG + i*1024}", f"s_movk_i32 s58, {stage*128}",
                            f"buffer_load_dwordx4 {v(10+i)}, s[36:39], s58 offen lds", ("st", stage)))
            for b in range(9):
                out.append((f"s_add_u32 m0, s57, {buf*STG + b*1024}", f"s_mov_b32 s58, {stage*64*stride}",
                            f"buffer_load_dwordx4 {v(14+b)}, s[40:43], s58 offen lds", ("st", stage)))
            return out
        def run(lst):
            for m, so, ld, tg in lst:
                a(m); a(so); vm.issue(ld, tg)
        run(dma_list(0)[:4])
        for b in range(9):
            a(f"v_add_u32 v3, {64*b}, v0")
            a("v_mul_u32_u24 v4, s64, v3")
            a("v_lshrrev_b32 v4, 16, v4")
            a(f"v_mul_u32_u24 v5, {18 if ty == 'F' else 34}, v4")
            a("v_sub_u32 v5, v3, v5")
            a("v_and_b32 v6, 3, v4")
            a("v_bfe_u32 v7, v4, 2, 2")
            a("v_lshl_add_u32 v6, v7, 3, v6")
            if ty == "F":
                a("v_lshrrev_b32 v7, 4, v4")
                a("v_lshl_add_u32 v6, v7, 2, v6")
            a("v_add_u32 v6, s54, v6")
            a("v_mul_u32_u24 v6, s63, v6")
            a("v_lshl_add_u32 v6, v5, 4, v6")
            if ty == "F":
                a(f"v_add_u32 {v(14+b)}, s55, v6")
            else:
                a("v_cmp_gt_u32 vcc, 32, v5")
                a("v_add_u32 v6, s55, v6")
                a("v_cmp_gt_u32 s[60:61], 16, v4")
                a(f"v_cndmask_b32 v6, v9, v6, vcc")
                a("s_nop 0")
                a(f"v_cndmask_b32 {v(14+b)}, v9, v6, s[60:61]")
            run(dma_list(0)[4+b:5+b])
        run(dma_list(1)[:P1N])
        srd(a, SY, S_WS, SY_SIZE, WS_SY)
        a(f"s_load_dword s{S_EP}, s[{SY}:{SY+1}], {SY_EPOCH}")
        NC = 5 if ty == "F" else 4
        a("v_lshrrev_b32 v4, 2, v0")
        a(f"v_mul_u32_u24 v4, {288 if ty == 'F' else 544}, v4")
        a("v_and_b32 v5, 3, v0")
        a("v_lshl_add_u32 v4, v5, 3, v4")
        a(f"v_add_u32 v4, {SB+WOFF}, v4")
        for i in range(NC):
            T = 61 + i
            if i < 4:
                a(f"s_add_u32 s{T}, s{LW}, {4*i}")
            else:
                a(f"s_and_b32 s{T}, s{LW}, 1")
                a(f"s_add_u32 s{T}, s{T}, 16")
            a(f"s_lshl_b32 s54, s{T}, 5")
            if ty == "F":
                a(f"s_cmp_ge_u32 s{T}, 9")
                a(f"s_cselect_b32 s55, {18432 - 288}, 0")
                a("s_add_u32 s54, s54, s55")
            a(f"v_add_u32 {v(CA[0]+i)}, s54, v4")
            a(f"v_add_u32 {v(CA[1]+i)}, {STG}, {v(CA[0]+i)}")
            a(f"v_add_u32 {v(CA[2]+i)}, {2*STG}, {v(CA[0]+i)}")
        for r in range(4):
            a(f"v_mov_b32 {v(28+r)}, 0x3f803f80")
        a(f"s_lshl_b32 s54, s{S_RB}, 13")
        a(f"s_lshl_b32 s55, s{LW}, 11")
        a("s_add_u32 s54, s54, s55")
        a(f"s_add_u32 s54, s54, {SY_ROW}")
        a("v_and_b32 v27, 15, v0")
        a("v_lshlrev_b32 v26, 7, v27")
        a("v_add_u32 v26, s54, v26")
        a(f"s_lshl_b32 s3, s{LW}, 7")
        a("v_lshl_add_u32 v27, v27, 3, s3")
        a("s_waitcnt lgkmcnt(0)")
        mktag()
        def colsum(stage, filler):
            buf = stage % 3
            for ks in range(2):
                for i in range(NC):
                    for hf in range(2):
                        off = (ks * 9216 + hf * 4608) if ty == "F" else (2 * ks + hf) * 9216
                        lg.issue(f"ds_read_b64_tr_b16 {v(CF+20*ks+4*i+2*hf,2)}, {v(CA[buf]+i)} offset:{off}", ("c", ks, i))
                run(filler[:2]); filler = filler[2:]
                for i in range(NC):
                    lg.wait(("c", ks, i))
                    acc = v(CS + 4 * i, 4)
                    a(f"v_mfma_f32_16x16x32_bf16 {acc}, {v(CF+20*ks+4*i,4)}, v[28:31], {'0' if stage == 0 and ks == 0 else acc}")
            run(filler)
        ts("l")
        vm.wait(("st", 0))
        a("s_barrier")
        ts("l")
        run(dma_list(1)[P1N:])
        colsum(0, dma_list(2))
        vm.wait(("st", 1))
        a("s_barrier")
        colsum(1, dma_list(3))
        vm.wait(("st", 2))
        a("s_barrier")
        vm.issue(f"buffer_load_dwordx4 v[104:107], v26, {s(SY,4)}, 0 offen sc1", "gat")
        colsum(2, dma_list(4))
        vm.wait(("st", 3))
        a("s_barrier")
        colsum(3, dma_list(5))
        vm.wait(("st", 4), "gat")
        a(f"v_cmp_eq_u32 vcc, s{S_TAG}, v106")
        a("s_nop 3")
        a("s_cmp_eq_u64 vcc, -1")
        a(f"s_cbranch_scc1 {L('valok' + ty)}")
        poll("pr" + ty, 26, 104, width=4, tagreg=2)
        a.label(L("valok" + ty))
        a("s_barrier")
        colsum(4, dma_list(6))
        for k in range(2):
            a(f"v_lshlrev_b32 {v(108+k)}, 16, {v(104+k)}")
            a(f"v_xor_b32 {v(108+k)}, 0x80000000, {v(108+k)}")
            a(f"v_and_b32 {v(110+k)}, 0xffff0000, {v(104+k)}")
            a(f"v_rcp_f32 {v(110+k)}, {v(110+k)}")
        a("s_nop 0")
        lg.issue(f"ds_write_b64 v27, v[108:109] offset:{ST_M}")
        lg.issue(f"ds_write_b64 v27, v[110:111] offset:{ST_RS}")
        vm.wait(("st", 5))
        a("s_barrier")
        colsum(5, dma_list(7))
        p2_setup()
        lg.wait_all()
        vm.wait(("st", 6))
        a("s_barrier")
        colsum(6, (w2_list(0) + w2_list(1) + w2_list(2)) if (ty == "F" or QD < 2) else [])
        vm.wait(("st", 7))
        a("s_barrier")
        colsum(7, [])
        a("v_lshrrev_b32 v3, 4, v0")
        a("v_lshlrev_b32 v6, 4, v3")
        a("s_nop 5")
        for i in range(NC):
            a(f"s_lshl_b32 s3, s{61+i}, 6")
            a("v_add_u32 v7, s3, v6")
            lg.issue(f"ds_write_b128 v7, {v(CS+4*i,4)} offset:{ST_CS}")
        if ty == "F" or QD < 1:
            run(w2_list(3) + w2_list(4) + w2_list(5))
        if ty == "Q":
            a(f"s_branch {L('ldone')}")
    a.label(L("ldone"))
    vm = Counter(a, "vmcnt", 60)
    lg = Counter(a, "lgkmcnt", 12)
    def dma_w(k):
        for m, so, ld, tg in w2_list(k):
            a(m); a(so); vm.issue(ld, tg)
    BREG = {}
    WREG = {k: 32 + 16 * k for k in range(6)}
    POOL = [128, 144, 160, 176]
    def load_b(k):
        kk, sr = (k, 48) if k < NH else (k - NH, 52)
        BREG[k] = POOL.pop(0)
        if ROT:
            a(f"s_add_u32 s60, s67, {kk}")
            a("s_cmp_ge_u32 s60, 11")
            a("s_cselect_b32 s58, 11, 0")
            a("s_sub_u32 s60, s60, s58")
            a("s_lshl_b32 s60, s60, 19")
            a("s_add_u32 s60, s60, s59")
        else:
            a(f"s_add_u32 s60, s59, {kk*4*HS}")
        for i in range(4):
            vm.issue(f"buffer_load_dwordx4 {v(BREG[k]+4*i,4)}, v1, {s(sr,4)}, s60 offen offset:{1024*i} sc1", ("b", k))
    def rd_w2(k):
        b, o = slot_off(k)
        if k not in WREG:
            WREG[k] = POOL.pop(0)
        for u in range(4):
            for hf in range(2):
                lg.issue(f"ds_read_b64_tr_b16 {v(WREG[k]+4*u+2*hf,2)}, {v(10+4*b+u)} offset:{o + hf*2048}", ("w", k, u))
    for k in range(6): vm.tag[("w", k)] = 0
    assert EW == 0
    a("v_lshrrev_b32 v3, 4, v0")
    a("v_lshrrev_b32 v5, 2, v0")
    a("v_bfe_u32 v6, v5, 1, 2")
    a("v_and_b32 v7, 3, v0")
    a("v_lshlrev_b32 v7, 3, v7")
    a("v_lshl_add_u32 v7, v5, 7, v7")
    a("v_add_u32 v7, s56, v7")
    for u in range(4):
        a(f"v_xor_b32 v8, {u}, v6")
        a(f"v_lshl_add_u32 {v(10+u)}, v8, 5, v7")
        a(f"v_add_u32 {v(18+u)}, {2*STG}, {v(10+u)}")
    a("s_waitcnt lgkmcnt(0)")
    if EW:
        a("s_waitcnt vmcnt(12)")
        for k in range(3):
            if k >= 1:
                lg.wait(("w", k - 1, 1))
            rd_w2(k)
    a("s_barrier")
    if LP0: a("s_setprio 0")
    ts("l", lg)
    if QD:
        a(f"s_cmp_lt_u32 s{S_C}, 10")
        a(f"s_cbranch_scc1 {L('nqd')}")
        lds_spin("qd", ST_SY + 16, 4, 5, sleep=2)
        for k in range(0 if QD == 2 else 3, 6 - QD3): dma_w(k)
        a.label(L("nqd"))
    if EW:
        lg.wait_all()
        for k in range(6, 9): dma_w(k)
        for k in range(3, 6):
            vm.wait(("w", k))
            if k > 3: lg.wait(("w", k - 1, 1))
            rd_w2(k)
        lg.wait_all()
        for k in range(9, 6 + EW): dma_w(k)
    srd(a, 48, S_WS, 96 * QS, WS_QK)
    a(f"s_lshl_b32 s0, s{S_AB}, 8")
    a(f"s_lshl_b32 s1, s{LW}, 7")
    a("s_add_u32 s1, s1, s0")
    a("s_sub_u32 s1, s1, 256")
    a("v_and_b32 v128, 31, v0")
    a("v_lshrrev_b32 v129, 5, v0")
    a("v_lshlrev_b32 v129, 4, v129")
    a("v_and_b32 v130, 0x13, v128")
    a("v_bfe_u32 v131, v128, 2, 1")
    a("v_lshl_or_b32 v130, v131, 3, v130")
    a("v_bfe_u32 v131, v128, 3, 1")
    a("v_lshl_or_b32 v130, v131, 2, v130")
    a("v_add_u32 v130, s1, v130")
    for n in range(4):
        a(f"v_add_u32 {v(132+n)}, {32*n}, v130")
        a(f"v_max_i32 {v(132+n)}, 0, {v(132+n)}")
        a(f"v_lshl_add_u32 {v(132+n)}, {v(132+n)}, 5, v129")
    a(f"s_lshl_b32 s3, s{LW}, 6")
    a("s_add_u32 s3, s3, s0")
    a("v_add_u32 v136, s3, v128")
    a("v_lshl_add_u32 v136, v136, 5, v129")
    a("v_lshlrev_b32 v137, 4, v0")
    a(f"s_lshr_b32 s5, s{S_HD}, 3")
    a("s_lshl_b32 s5, s5, 8")
    a(f"s_add_u32 s5, s5, {SY_F + 10*512}")
    a(f"s_lshl_b32 s3, s{S_AB}, 1")
    a(f"s_add_u32 s4, s3, s{LW}")
    a("s_sub_u32 s4, s4, 2")
    a("s_max_i32 s4, s4, 0")
    a("s_lshl_b32 s4, s4, 13")
    a("s_add_u32 s6, s4, s5")
    a("s_add_u32 s6, s6, 1024")
    a(f"s_lshr_b32 s4, s{LW}, 1")
    a("s_add_u32 s4, s4, s3")
    a("s_lshl_b32 s4, s4, 13")
    a("s_add_u32 s4, s4, s5")
    a(f"s_and_b32 s5, s{LW}, 1")
    a("s_lshl_b32 s5, s5, 7")
    a("s_add_u32 s4, s4, s5")
    a("v_and_b32 v138, 1, v0")
    a("v_lshlrev_b32 v138, 7, v138")
    a("v_bfe_u32 v139, v0, 1, 1")
    a("v_lshl_add_u32 v138, v139, 10, v138")
    a("v_add_u32 v138, s6, v138")
    a("v_mov_b32 v139, s4")
    a("v_and_b32 v140, 4, v0")
    a("v_cmp_eq_u32 vcc, 0, v140")
    a("s_nop 1")
    a("v_cndmask_b32 v138, v139, v138, vcc")
    a(f"s_mul_i32 s4, s{S_HD}, {QS}")
    a(f"s_add_u32 s5, s4, {32 * QS}")
    a("s_lshl_b32 s6, s1, 5")
    a("s_add_u32 s6, s6, s4")
    a(f"s_add_u32 s6, s6, {64 * QS}")
    a("s_cmp_ge_i32 s1, 0")
    a("s_cselect_b32 s6, s6, 0x7fff0000")
    a(f"s_lshl_b32 s7, s{LW}, 12")
    a(f"s_add_u32 s7, s7, {BQ}")
    a(f"s_lshl_b32 s0, s{LW}, 11")
    a(f"s_add_u32 s0, s0, {BQ + 32768}")
    if IR:
        a("s_waitcnt vmcnt(0)")
        for k in range(6):
            if k >= 1:
                lg.wait(("w", k - 1, 1))
            rd_w2(k)
    poll("pq", 138, 4, sleep=QSL)
    vm.done = vm.n
    ts("l")
    a("s_mov_b32 m0, s0")
    a("s_nop 0")
    for n in range(2):
        a(f"buffer_load_dwordx4 v136, s[48:51], s4 offen offset:{1024*n} sc1 lds")
    for n in range(4):
        a(f"s_add_u32 m0, s7, {1024*n}")
        a("s_nop 0")
        a(f"buffer_load_dwordx4 {v(132+n)}, s[48:51], s5 offen sc1 lds")
    a("s_add_u32 m0, s7, 16384")
    a("s_nop 0")
    for n in range(4):
        a(f"buffer_load_dwordx4 v137, s[48:51], s6 offen offset:{1024*n} sc1 lds")
    if IR:
        lg.wait_all()
        for k in range(6, 6 + IR): dma_w(k)
        a(f"s_lshl_b32 s3, s{LW}, 2")
        a("v_mov_b32 v4, s3")
        a(f"v_mov_b32 v5, s{S_TAG}")
        a(f"s_waitcnt vmcnt({4*IR})")
        lg.issue(f"ds_write_b32 v4, v5 offset:{ST_SY}")
        ts("l", lg)
    else:
        for k in range(RDE):
            if k >= 1:
                lg.wait(("w", k - 1, 1))
            rd_w2(k)
        a(f"s_lshl_b32 s3, s{LW}, 2")
        a("v_mov_b32 v4, s3")
        a(f"v_mov_b32 v5, s{S_TAG}")
        a("s_waitcnt vmcnt(0)")
        lg.issue(f"ds_write_b32 v4, v5 offset:{ST_SY}")
        ts("l", lg)
        for k in range(RDE, 6):
            if k >= 1:
                lg.wait(("w", k - 1, 1))
            rd_w2(k)
    srd(a, 48, S_WS, NSLAB_H * HS, WS_H)
    srd(a, 52, S_WS, 16 * HS, WS_O)
    a(f"s_lshl_b32 s3, s{S_TB}, 12")
    a("v_lshl_add_u32 v1, v0, 4, s3")
    a("v_and_b32 v8, 15, v0")
    a("v_lshlrev_b32 v9, 10, v8")
    a(f"s_lshl_b32 s3, s{S_TB}, 16")
    a(f"s_lshl_b32 s61, s{LW}, 14")
    a("s_add_u32 s3, s3, s61")
    a(f"s_lshl_b32 s61, s{S_J}, 7")
    a("s_add_u32 s3, s3, s61")
    a("v_add_u32 v9, s3, v9")
    a("v_and_b32 v4, 1, v3")
    a("v_lshl_add_u32 v8, v4, 5, v9")
    a("v_lshrrev_b32 v4, 1, v3")
    a("v_lshl_add_u32 v8, v4, 4, v8")
    a("v_lshl_add_u32 v9, v3, 3, v9")
    a("v_lshrrev_b32 v4, 1, v0")
    a("v_min_u32 v4, 9, v4")
    a("v_lshlrev_b32 v4, 9, v4")
    a("v_and_b32 v5, 1, v0")
    a("v_lshl_add_u32 v4, v5, 8, v4")
    a(f"s_lshr_b32 s3, s{S_TB}, 1")
    a("s_lshl_b32 s3, s3, 13")
    a(f"s_and_b32 s61, s{S_TB}, 1")
    a("s_lshl_b32 s61, s61, 7")
    a("s_add_u32 s3, s3, s61")
    a(f"s_add_u32 s3, s3, {SY_F}")
    a("v_add_u32 v22, s3, v4")
    a("v_and_b32 v4, 31, v0")
    a("v_lshlrev_b32 v4, 7, v4")
    a(f"s_lshl_b32 s3, s{S_TB}, 12")
    a(f"s_add_u32 s3, s3, {SY_OF}")
    a("v_add_u32 v23, s3, v4")
    a(f"s_setprio {LP2}")
    if LS0: lds_spin("lsync0", ST_SY, 4, 5, sleep=2)
    if LS1: lds_spin("lsync", ST_SY + 16, 4, 5, sleep=2)
    lg.wait_all()
    lg.done = lg.n
    if AP is None:
        for k in range(6 + IR, 6 + max(RF, IR)): dma_w(k)
        ts("l", lg)
        poll("ph", 22, 4, sleep=HSL)
        vm.done = vm.n
        ts("l", lg)
    else:
        for k in range(6, 6 + AP): dma_w(k)
        vm.issue(f"buffer_load_dword v4, v22, {s(SY,4)}, 0 offen sc1", "ap")
        for k in range(6 + AP, 12): dma_w(k)
        ts("l", lg)
        vm.wait("ap")
        a(f"v_cmp_eq_u32 vcc, s{S_TAG}, v4")
        a("s_nop 3")
        a("s_cmp_eq_u64 vcc, -1")
        a(f"s_cbranch_scc1 {L('apok')}")
        poll("ph", 22, 4, sleep=HSL)
        a.label(L("apok"))
        ts("l", lg)
    nb = [0]
    def more_b(limit, reserve):
        while nb[0] < limit and len(POOL) > reserve:
            load_b(nb[0]); nb[0] += 1
    more_b(NH, 0)
    RQ = list(range(6 + max(RF, EW), 12))
    for _ in range(RF2):
        if RQ: dma_w(RQ.pop(0))
    def mm(k):
        for u in range(4):
            lg.wait(("w", k, u))
            for i in range(4):
                acc = v(G_ACC + 4 * (4 * u + i), 4)
                a(f"v_mfma_f32_16x16x32_bf16 {acc}, {v(WREG[k]+4*u,4)}, {v(BREG[k]+4*i,4)}, {'0' if k == 0 else acc}")
        POOL.append(BREG[k]); POOL.append(WREG[k])
    for k in range(NH):
        if k + 1 >= 6 and k + 1 < NH:
            vm.wait(("w", k + 1))
            rd_w2(k + 1)
        vm.wait(("b", k))
        mm(k)
        more_b(NH, 1 if k >= 3 else 0)
        if RQ: dma_w(RQ.pop(0))
        if k == 5:
            for u in range(4):
                vm.issue(f"buffer_load_dwordx2 {v(XR+2*u,2)}, v9, s[36:39], 0 offen offset:{32*u}", "x")
        if k in (6, 7, 8):
            dma_w(k + 6)
    lds_spin("msr", ST_SY + 32, 4, 5)
    lg.done = lg.n
    a("v_lshlrev_b32 v4, 4, v0")
    for i in range(4):
        a(f"s_sub_u32 s3, s{LW}, {i + 1}")
        a("s_and_b32 s3, s3, 3")
        a("s_cmp_eq_u32 s3, 3")
        a(f"s_cbranch_scc1 {L('skw%d' % i)}")
        a(f"s_add_u32 s3, s3, {3*i}")
        a("s_lshl_b32 s3, s3, 12")
        a(f"s_add_u32 s3, s3, {BQ}")
        a("v_add_u32 v5, s3, v4")
        for u in range(4):
            a(f"ds_write_b128 v5, {v(G_ACC+4*(4*u+i),4)} offset:{u*1024}")
        a(f"s_branch {L('dnw%d' % i)}")
        a.label(L('skw%d' % i))
        for u in range(4):
            for r in (0, 2):
                a(f"v_pk_mov_b32 {v(32+4*u+r,2)}, {v(G_ACC+4*(4*u+i)+r,2)}, {v(G_ACC+4*(4*u+i)+r,2)} op_sel:[0,1]")
        a.label(L('dnw%d' % i))
    a(f"s_lshl_b32 s3, s{LW}, 2")
    a("v_mov_b32 v5, s3")
    a(f"v_mov_b32 v6, s{S_TAG}")
    a("s_waitcnt vmcnt(0) lgkmcnt(0)")
    a(f"ds_write_b32 v5, v6 offset:{ST_SY + 48}")
    for u in range(4):
        for d in range(2):
            a(f"v_lshlrev_b32 v6, 16, {v(XR+2*u+d)}")
            a(f"v_and_b32 v7, 0xffff0000, {v(XR+2*u+d)}")
            a(f"v_pk_add_f32 {v(32+4*u+2*d,2)}, {v(32+4*u+2*d,2)}, v[6:7]")
    a(f"s_mul_i32 s3, s{LW}, 12288")
    a(f"s_add_u32 s0, s3, {BQ}")
    a("v_add_u32 v14, s0, v4")
    for u in range(4):
        a(f"v_subrev_u32 {v(10+u)}, s3, {v(10+u)}")
        a(f"v_subrev_u32 {v(18+u)}, s3, {v(18+u)}")
    a(f"s_lshl_b32 s3, s{LW}, 10")
    a("v_add_u32 v1, s3, v1")
    srd(a, 40, S_OUT, 2048 * 1024)
    ts("l")
    poll("po", 23, 4, sleep=OSL)
    ts("l")
    lg = Counter(a, "lgkmcnt", 12)
    vm = Counter(a, "vmcnt", 60)
    for n in range(16):
        a(f"s_mov_b32 s60, {n*HS}")
        vm.issue(f"buffer_load_dwordx4 {v(128+4*n,4)}, v1, s[52:55], s60 offen sc1", ("o", n))
    lds_spin("lsr", ST_SY + 48, 5, 6)
    for sl in range(3):
        for u in range(4):
            lg.issue(f"ds_read_b128 {v(192+16*sl+4*u,4)}, v14 offset:{sl*4096 + u*1024}", ("p", sl))
    WBL = [48, 64, 80, 96, 112]
    NPRE = len(WBL)
    def rd_wo(n):
        b, o = slot_off(NH + (n >> 2))
        for u in range(4):
            for hf in range(2):
                lg.issue(f"ds_read_b64_tr_b16 {v(WBL[n % NPRE]+4*u+2*hf,2)}, {v(10+4*b+u)} offset:{(n&3)*12288 + o + hf*2048}", ("wo", n, u))
    for sl in range(3):
        lg.wait(("p", sl))
        for e in range(0, 16, 2):
            a(f"v_pk_add_f32 {v(32+e,2)}, {v(32+e,2)}, {v(192+16*sl+e,2)}")
        rd_wo(sl)
    for n in range(16):
        if n + 3 < 16:
            lg.wait(("wo", n + 2, 1))
            rd_wo(n + 3)
        vm.wait(("o", n))
        for u in range(4):
            lg.wait(("wo", n, u))
            a(f"v_mfma_f32_16x16x32_bf16 {v(32+4*u,4)}, {v(WBL[n % NPRE]+4*u,4)}, {v(128+4*n,4)}, {v(32+4*u,4)}")
    ts("l", lg)
    if "until" in opt:
        a.label(L("unt"))
        a("s_memrealtime s[62:63]")
        a("s_waitcnt lgkmcnt(0)")
        a("s_sub_u32 s62, s62, s96")
        a(f"s_cmp_lt_u32 s62, {UNT}")
        a(f"s_cbranch_scc1 {L('unt')}")
    if "delay" in opt:
        a("s_memtime s[60:61]")
        a("s_waitcnt lgkmcnt(0)")
        a.label(L("dly"))
        a("s_memtime s[62:63]")
        a("s_waitcnt lgkmcnt(0)")
        a("s_sub_u32 s62, s62, s60")
        a("s_cmp_lt_u32 s62, 20000")
        a(f"s_cbranch_scc1 {L('dly')}")
    a("s_nop 7")
    for h2 in range(2):
        d = 32 + 8 * h2
        a(f"v_cvt_pk_bf16_f32 {v(d)}, {v(d)}, {v(d+1)}")
        a(f"v_cvt_pk_bf16_f32 {v(d+1)}, {v(d+2)}, {v(d+3)}")
        a(f"v_cvt_pk_bf16_f32 {v(d+2)}, {v(d+4)}, {v(d+5)}")
        a(f"v_cvt_pk_bf16_f32 {v(d+3)}, {v(d+6)}, {v(d+7)}")
        a("s_nop 0")
        a(f"v_permlane16_swap_b32 {v(d)}, {v(d+2)}")
        a(f"v_permlane16_swap_b32 {v(d+1)}, {v(d+3)}")
        a(f"buffer_store_dwordx4 {v(d,4)}, v8, s[40:43], 0 offen offset:{64*h2} {OP}")
    ts_dump("l")
    a.label(L("end"))
    a("s_endpgm")
```

```python
from asmlib import *

WS_QK = 0
WS_VT = 4 << 20
WS_H = 18 << 20
NSLAB_H = 43
WS_O = 26 << 20
WS_SY = 14 << 20
SY_EPOCH = 0
SY_ROW = 0x20000
SY_F = 0x40000
SY_OF = 0x80000
SY_SIZE = 0xA0000
WS_TIM = 16 << 20

STG = 53248
XB = 16384
IMG = 12288
ST_M = 0
ST_RS = 512
ST_CS = 1024
ST_SY = 2304
SB = 4096
LDS_BYTES = SB + 3 * STG

ACC = 96
WF = 56
XF = 24
SPIN = 300000

S_X, S_WQKV, S_WO, S_WG, S_WU, S_WD, S_OUT, S_DBG, S_WS = 4, 6, 8, 12, 14, 16, 18, 20, 22
S_RB, S_C, S_W, S_TB, S_J, S_TAG, S_EP = 24, 25, 26, 27, 28, 29, 30
SY = 32
KNAME = 'parallel_sum__sliding_block__glu_gated_reglu__prompt_kernel'
S_AB, S_HD = 10, 11
BQ = SB + STG
WOFF = XB

def bf16_round(a, r):
    a(f"v_cvt_pk_bf16_f32 {v(r)}, {v(r)}, {v(r)}")
    a(f"v_lshlrev_b32 {v(r)}, 16, {v(r)}")

def allreduce64x2(a, r0, r1, t0, t1):
    for c in ("quad_perm:[1,0,3,2]", "quad_perm:[2,3,0,1]", "row_half_mirror", "row_mirror"):
        a("s_nop 0")
        a(f"v_add_f32_dpp {v(r0)}, {v(r0)}, {v(r0)} {c} row_mask:0xf bank_mask:0xf")
        a(f"v_add_f32_dpp {v(r1)}, {v(r1)}, {v(r1)} {c} row_mask:0xf bank_mask:0xf")
    for sw in ("v_permlane16_swap_b32", "v_permlane32_swap_b32"):
        a(f"v_mov_b32 {v(t0)}, {v(r0)}")
        a(f"v_mov_b32 {v(t1)}, {v(r1)}")
        a("s_nop 0")
        a(f"{sw} {v(r0)}, {v(t0)}")
        a(f"{sw} {v(r1)}, {v(t1)}")
        a("s_nop 0")
        a(f"v_add_f32 {v(r0)}, {v(r0)}, {v(t0)}")
        a(f"v_add_f32 {v(r1)}, {v(r1)}, {v(t1)}")

def body(a, name, timing=False, opt=(), BA=1, QSL=2, HSL=2, LP0=1, PF1=-1, PF2=4, PFSK=2, RF=6, RF2=2, EW=0, QD=1, QD3=0, OSL=2, ROT=None, HALF=1, OP='', RDE=6, QS=65536, HS=131072, P1N=6, ATP=2, LP2=0, ATV=2, UNT=4000, AP=None, LS0=1, LS1=1, IR=0, TV=2, EO=None):
    L = lambda x: f"{name}_{x}"
    TS = {}
    def ts(role, lg=None):
        if timing:
            i = TS.get(role, 0)
            assert i < 14
            a(f"s_memtime s[{68+2*i}:{69+2*i}]")
            a("s_waitcnt lgkmcnt(0)")
            if lg is not None: lg.done = lg.n
            TS[role] = i + 1
    def ts_dump(role):
        if timing:
            a("s_mov_b64 exec, -1")
            a("s_waitcnt vmcnt(0)")
            ts(role)
            a("s_memrealtime s[98:99]")
            a("s_waitcnt lgkmcnt(0)")
            srd(a, 36, S_WS, 1 << 20, WS_TIM)
            a("s_lshl_b32 s3, s2, 9")
            a(f"s_lshl_b32 s40, s{S_W}, 6")
            a("s_add_u32 s3, s3, s40")
            a("v_mov_b32 v3, s3")
            a("v_mov_b32 v4, s96")
            a("v_mov_b32 v5, s98")
            a("buffer_store_dwordx2 v[4:5], v3, s[36:39], 0 offen offset:56")
            for q in range(TS[role]):
                a("s_nop 1")
                a(f"s_sub_u32 s40, s{68+2*q}, s100")
                a("v_mov_b32 v4, s40")
                a(f"buffer_store_dword v4, v3, s[36:39], 0 offen offset:{4*q}")
    def poll(lbl, vaddr, vdst, width=1, tagreg=0, sleep=2):
        a(f"s_mov_b32 s3, {SPIN}")
        a.label(L(lbl))
        w = {1: "dword", 4: "dwordx4"}[width]
        a(f"buffer_load_{w} {v(vdst,width)}, {v(vaddr)}, {s(SY,4)}, 0 offen sc1")
        a("s_waitcnt vmcnt(0)")
        a(f"v_cmp_eq_u32 vcc, s{S_TAG}, {v(vdst+tagreg)}")
        a("s_sub_u32 s3, s3, 1")
        a("s_cmp_eq_u32 s3, 0")
        a(f"s_cbranch_scc1 {L(lbl+'_ok')}")
        a("s_cmp_eq_u64 vcc, -1")
        a(f"s_cbranch_scc1 {L(lbl+'_ok')}")
        a(f"s_sleep {sleep}")
        a(f"s_branch {L(lbl)}")
        a.label(L(lbl + "_ok"))
    def mktag():
        a(f"s_mul_i32 s{S_TAG}, s{S_EP}, 0x01010101")
        a(f"s_add_u32 s{S_TAG}, s{S_TAG}, 0x5A3C96E1")

    a("s_cmp_ge_u32 s2, 256")
    a(f"s_cbranch_scc1 {L('end')}")
    a("s_load_dwordx4 s[4:7], s[0:1], 0")
    a("s_load_dwordx4 s[12:15], s[0:1], 32")
    a("s_load_dwordx4 s[20:23], s[0:1], 64")
    a("s_load_dwordx2 s[8:9], s[0:1], 16")
    a("s_load_dwordx4 s[16:19], s[0:1], 48")
    if timing or "until" in opt:
        a("s_memtime s[100:101]")
        a("s_memrealtime s[96:97]")
    a("s_and_b32 s3, s2, 7")
    a("s_lshr_b32 s31, s2, 3")
    if "mapA" in opt:
        a(f"s_and_b32 s{S_RB}, s3, 1")
        a(f"s_lshl_b32 s{S_RB}, s{S_RB}, 3")
        a("s_and_b32 s40, s31, 7")
        a(f"s_add_u32 s{S_RB}, s{S_RB}, s40")
        a(f"s_lshr_b32 s{S_C}, s3, 1")
        a("s_lshr_b32 s40, s31, 3")
        a("s_lshl_b32 s40, s40, 2")
        a(f"s_add_u32 s{S_C}, s{S_C}, s40")
    elif "mapB" in opt:
        a(f"s_and_b32 s{S_RB}, s3, 3")
        a(f"s_lshl_b32 s{S_RB}, s{S_RB}, 2")
        a("s_and_b32 s40, s31, 3")
        a(f"s_add_u32 s{S_RB}, s{S_RB}, s40")
        a(f"s_lshr_b32 s{S_C}, s3, 2")
        a("s_lshr_b32 s40, s31, 2")
        a("s_lshl_b32 s40, s40, 1")
        a(f"s_add_u32 s{S_C}, s{S_C}, s40")
    else:
        a(f"s_lshl_b32 s{S_RB}, s3, 1")
        a("s_and_b32 s40, s31, 1")
        a(f"s_add_u32 s{S_RB}, s{S_RB}, s40")
        a(f"s_lshr_b32 s{S_C}, s31, 1")
    a(f"s_lshl_b32 s{S_TB}, s3, 2")
    a("s_and_b32 s40, s31, 3")
    a(f"s_add_u32 s{S_TB}, s{S_TB}, s40")
    a(f"s_lshr_b32 s{S_J}, s31, 2")
    a(f"s_mov_b32 s{S_AB}, s3")
    a(f"s_mov_b32 s{S_HD}, s31")
    a("v_lshrrev_b32 v1, 6, v0")
    a("v_and_b32 v0, 63, v0")
    a("s_nop 0")
    a(f"v_readfirstlane_b32 s{S_W}, v1")
    a("s_nop 3")
    a(f"s_cmp_ge_u32 s{S_W}, 4")
    a(f"s_cbranch_scc1 {L('loader')}")
    def lds_spin(lbl, base, va, vd, sleep=0):
        a(f"v_and_b32 {v(va)}, 3, v0")
        a(f"v_lshlrev_b32 {v(va)}, 2, {v(va)}")
        a(f"s_mov_b32 s3, {SPIN * 20}")
        a.label(L(lbl))
        a(f"ds_read_b32 {v(vd)}, {v(va)} offset:{base}")
        a("s_waitcnt lgkmcnt(0)")
        a(f"v_cmp_eq_u32 vcc, s{S_TAG}, {v(vd)}")
        a("s_sub_u32 s3, s3, 1")
        a("s_cmp_eq_u32 s3, 0")
        a(f"s_cbranch_scc1 {L(lbl + '_ok')}")
        a("s_cmp_eq_u64 vcc, -1")
        a(f"s_cbranch_scc1 {L(lbl + '_ok')}")
        if sleep: a(f"s_sleep {sleep}")
        a(f"s_branch {L(lbl)}")
        a.label(L(lbl + "_ok"))

    a(f"s_lshl_b32 s40, s{S_RB}, 7")
    a(f"s_lshl_b32 s41, s{S_C}, 3")
    a("s_add_u32 s40, s40, s41")
    a(f"s_lshl_b32 s41, s{S_W}, 1")
    a("s_add_u32 s40, s40, s41")
    a("s_lshl_b32 s40, s40, 10")
    a("v_lshlrev_b32 v8, 4, v0")
    a("s_waitcnt lgkmcnt(0)")
    srd(a, 36, S_X, 2048 * 1024)
    a("buffer_load_dwordx4 v[44:47], v8, s[36:39], s40 offen")
    a("buffer_load_dwordx4 v[48:51], v8, s[36:39], s40 offen offset:1024")
    if "pfc" in opt:
        a(f"s_cmp_lg_u32 s{S_W}, 0")
        a(f"s_cbranch_scc1 {L('npc')}")
        a("s_getpc_b64 s[40:41]")
        a.label(L("pcb"))
        a(f"s_sub_u32 s40, s40, {L('pcb')}-{KNAME}")
        a("s_subb_u32 s41, s41, 0")
        a("v_min_u32 v1, 19, v0")
        a("v_lshlrev_b32 v1, 7, v1")
        a("s_mul_i32 s42, s31, 2560")
        a("v_add_u32 v1, s42, v1")
        a(f"v_min_u32 v1, {L('end')}-{KNAME}, v1")
        a("global_load_dword v255, v1, s[40:41]")
        a.label(L("npc"))
    PFN = [0]
    def pf(w, ptr, nbytes, lines, skip=0):
        PFN[0] += 1
        lb = L('npd%d' % PFN[0])
        a(f"s_cmp_lg_u32 s{S_W}, {w}")
        a(f"s_cbranch_scc1 {lb}")
        srd(a, 52, ptr, nbytes)
        a(f"s_mul_i32 s67, s2, {lines * 128}")
        if skip: a(f"s_add_u32 s67, s67, {skip}")
        a("v_lshlrev_b32 v22, 7, v0")
        a(f"v_min_u32 v22, {(lines - 1) * 128}, v22")
        a("buffer_load_dword v21, v22, s[52:55], s67 offen")
        a.label(lb)
    def pf_w1():
        sk = PFSK * 64
        pf(1, S_WQKV, 512 * 3072, (512 - sk) * 24 // 256, sk * 3072)
        pf(2, S_WG, 512 * 2752, -(-(512 - sk) * 43 // 512), sk * 2752)
        pf(3, S_WU, 512 * 2752, -(-(512 - sk) * 43 // 512), sk * 2752)
    def pf_w2():
        pf(0, S_WD, 1376 * 1024, 43)
        pf(1, S_WO, 512 * 1024, 16)
    if PF1 == -1: pf_w1()
    if PF2 == -1: pf_w2()
    srd(a, SY, S_WS, SY_SIZE, WS_SY)
    a(f"s_load_dword s{S_EP}, s[{SY}:{SY+1}], {SY_EPOCH}")
    a(f"s_and_b32 s42, s{S_W}, 1")
    a(f"s_lshr_b32 s43, s{S_W}, 1")
    a("v_and_b32 v1, 15, v0")
    a("v_lshrrev_b32 v2, 4, v0")
    a("v_lshrrev_b32 v3, 1, v1")
    a("v_xor_b32 v3, v3, v2")
    a("v_lshlrev_b32 v3, 4, v3")
    a("s_lshl_b32 s40, s42, 13")
    a("v_lshl_add_u32 v3, v1, 7, v3")
    a(f"s_add_u32 s40, s40, {SB}")
    a("v_add_u32 v9, s40, v3")
    a("v_xor_b32 v10, 64, v9")
    a(f"s_cmp_lt_u32 s{S_C}, 10")
    a("s_movk_i32 s44, 544")
    a("s_movk_i32 s45, 256")
    a("s_cselect_b32 s44, 288, s44")
    a("s_cselect_b32 s45, 128, s45")
    a("s_mul_i32 s41, s43, s45")
    a("v_lshrrev_b32 v4, 2, v0")
    a("v_mul_u32_u24 v4, s44, v4")
    a("v_and_b32 v5, 3, v0")
    a("v_lshl_add_u32 v4, v5, 3, v4")
    a(f"s_add_u32 s40, s41, {SB + WOFF}")
    a("v_add_u32 v11, s40, v4")
    for b in (1, 2):
        for i in range(3):
            a(f"v_add_u32 {v(9+3*b+i)}, {STG*b}, {v(9+i)}")
    a("s_lshl_b32 s40, s42, 8")
    a("v_lshl_add_u32 v3, v1, 2, s40")
    a("v_lshl_add_u32 v6, v2, 4, s40")
    a("s_lshl_b32 s40, s41, 1")
    a("v_lshl_add_u32 v4, v2, 4, s40")
    a("v_lshl_add_u32 v5, v1, 2, s40")
    a(f"s_lshl_b32 s40, s{S_RB}, 4")
    a(f"s_add_u32 s40, s40, s{S_C}")
    a("s_lshl_b32 s40, s40, 2")
    a(f"s_add_u32 s40, s40, s{S_W}")
    a("s_lshl_b32 s46, s40, 7")
    a(f"s_add_u32 s31, s46, {SY_F}")
    a("s_mov_b32 s44, 0x3b000000")
    a("s_mov_b32 s45, 0x3727c5ac")
    a("v_and_b32 v22, 1, v2")
    a("v_lshrrev_b32 v23, 1, v2")
    a(f"s_cmp_lt_u32 s{S_C}, 10")
    a(f"s_cbranch_scc1 {L('setF')}")
    srd(a, 48, S_WS, 96 * QS, WS_QK)
    a("v_lshl_add_u32 v7, v22, 4, v1")
    a("v_lshlrev_b32 v7, 5, v7")
    a("v_lshl_add_u32 v7, v23, 4, v7")
    a(f"s_sub_u32 s60, s{S_C}, 10")
    a("s_lshl_b32 s60, s60, 1")
    a("s_add_u32 s60, s60, s43")
    a(f"s_mul_i32 s60, s60, {8 * QS}")
    a(f"s_lshl_b32 s40, s{S_RB}, 12")
    a("s_add_u32 s60, s60, s40")
    a("s_lshl_b32 s40, s42, 11")
    a("s_add_u32 s60, s60, s40")
    a(f"s_cmp_lt_u32 s{S_C}, 12")
    a("s_cselect_b32 s66, 0x3eb8aa3b, 1.0")
    a(f"s_branch {L('setD')}")
    a.label(L("setF"))
    srd(a, 48, S_WS, NSLAB_H * HS, WS_H)
    a("v_lshl_add_u32 v7, v23, 4, v1")
    a("v_lshlrev_b32 v7, 4, v7")
    a("v_lshl_add_u32 v7, v22, 10, v7")
    a(f"s_mul_i32 s40, s{S_C}, 9")
    a("s_lshl_b32 s41, s43, 2")
    a("s_add_u32 s40, s40, s41")
    a(f"s_lshl_b32 s41, s{S_RB}, 13")
    a("s_lshl_b32 s3, s42, 12")
    a("s_add_u32 s41, s41, s3")
    for e in range(5):
        a(f"s_add_u32 s3, s40, {e}")
        a(f"s_lshr_b32 s{60+e}, s3, 1")
        a(f"s_mul_i32 s{60+e}, s{60+e}, {HS}")
        a("s_and_b32 s3, s3, 1")
        a("s_lshl_b32 s3, s3, 9")
        a(f"s_add_u32 s{60+e}, s{60+e}, s3")
        a(f"s_add_u32 s{60+e}, s{60+e}, s41")
    a.label(L("setD"))
    a("s_waitcnt vmcnt(0)")
    if PF1 == -2: pf_w1()
    for k in range(2):
        for d in range(4):
            a(f"v_lshlrev_b32 {v(52+8*k+2*d)}, 16, {v(44+4*k+d)}")
            a(f"v_and_b32 {v(53+8*k+2*d)}, 0xffff0000, {v(44+4*k+d)}")
    for k in range(2):
        a(f"v_add_f32 {v(68+k)}, {v(52+8*k)}, {v(53+8*k)}")
    for e in range(2, 8):
        for k in range(2):
            a(f"v_add_f32 {v(68+k)}, {v(68+k)}, {v(52+8*k+e)}")
    allreduce64x2(a, 68, 69, 72, 73)
    for k in range(2):
        a(f"v_mul_f32 {v(68+k)}, s44, {v(68+k)}")
    for e in range(8):
        for k in range(2):
            a(f"v_sub_f32 {v(52+8*k+e)}, {v(52+8*k+e)}, {v(68+k)}")
    for k in range(2):
        a(f"v_mul_f32 {v(70+k)}, {v(52+8*k)}, {v(52+8*k)}")
    for e in range(1, 8):
        for k in range(2):
            a(f"v_fmac_f32 {v(70+k)}, {v(52+8*k+e)}, {v(52+8*k+e)}")
    allreduce64x2(a, 70, 71, 72, 73)
    for k in range(2):
        q = 70 + k
        a(f"v_mul_f32 {v(q)}, s44, {v(q)}")
        bf16_round(a, q)
        a(f"v_add_f32 {v(q)}, s45, {v(q)}")
        bf16_round(a, q)
        a(f"v_sqrt_f32 {v(q)}, {v(q)}")
    a("s_waitcnt lgkmcnt(0)")
    mktag()
    for k in range(2):
        a(f"v_cvt_pk_bf16_f32 {v(100+k)}, {v(68+k)}, {v(70+k)}")
    a(f"v_mov_b32 v102, s{S_TAG}")
    a(f"v_mov_b32 v103, s{S_TAG}")
    a(f"s_add_u32 s40, s46, {SY_ROW}")
    a("s_mov_b64 exec, 0xff")
    a(f"buffer_store_dwordx4 v[100:103], v8, {s(SY,4)}, s40 offen sc1")
    a("s_mov_b64 exec, -1")
    a(f"s_lshl_b32 s3, s{S_W}, 2")
    a("v_mov_b32 v22, s3")
    a(f"s_not_b32 s3, s{S_TAG}")
    a("v_mov_b32 v23, s3")
    a(f"ds_write_b32 v22, v23 offset:{ST_SY}")
    a(f"ds_write_b32 v22, v23 offset:{ST_SY + 16}")
    a(f"ds_write_b32 v22, v23 offset:{ST_SY + 32}")
    a(f"ds_write_b32 v22, v23 offset:{ST_SY + 48}")
    a("s_waitcnt lgkmcnt(0)")
    ts("c")
    a("s_barrier")
    ts("c")
    a(f"s_cmp_lt_u32 s{S_C}, 10")
    a(f"s_cbranch_scc1 {L('mF')}")
    a(f"s_cmp_lt_u32 s{S_C}, 14")
    a(f"s_cbranch_scc1 {L('mQ')}")
    A = lambda j, i, r: ACC + 4 * (4 * j + i) + r
    BL = "op_sel_hi:[1,0,1]"
    MR = XF
    ts0 = TS.get("c", 0)
    for ty, fw in (("V", 0), ("Q", 0), ("F", 0), ("F", 1)):
        TS["c"] = ts0
        if ty != "V" and fw == 0: a.label(L("m" + ty))
        if ty == "F" and fw == 0:
            a("s_cmp_eq_u32 s43, 1")
            a(f"s_cbranch_scc1 {L('mF1')}")
        if ty == "F" and fw == 1: a.label(L("mF1"))
        def toks(j):
            if ty == "F" and HALF and j % 5 == (4 if fw == 0 else 0):
                return [0, 1] if fw == 0 else [2, 3]
            return [0, 1, 2, 3]
        NTL = 10 if ty == "F" else 8
        lg = Counter(a, "lgkmcnt", 12)
        vm = Counter(a, "vmcnt", 60)
        def q_x(step):
            buf, ks = (step // 2) % 3, step % 2
            return [(f"ds_read_b128 {v(XF+16*ks+4*i,4)}, {v(9+3*buf+ks)} offset:{i*2048}", ("x", step, i)) for i in range(4)]
        def q_w(step, j):
            buf, ks = (step // 2) % 3, step % 2
            out = []
            for hf in range(2):
                off = ((j // 5) * 18432 + ks * 9216 + hf * 4608 + (j % 5) * 32) if ty == "F" else ((2 * ks + hf) * 9216 + j * 32)
                out.append((f"ds_read_b64_tr_b16 {v(WF+4*j+2*hf,2)}, {v(11+3*buf)} offset:{off}", ("w", step, j)))
            return out
        def mfma(j, i, step):
            acc = v(A(j, i, 0), 4)
            c = "0" if step == 0 else acc
            w = v(WF + 4 * j, 4); x = v(XF + 16 * (step % 2) + 4 * i, 4)
            if ty == "V":
                return f"v_mfma_f32_16x16x32_bf16 {acc}, {x}, {w}, {c}"
            return f"v_mfma_f32_16x16x32_bf16 {acc}, {w}, {x}, {c}"
        def q_cs(j):
            if ty == "V":
                l = f"ds_read_b32 {v(WF+4*j)}, v5 offset:{ST_CS + j*64}"
            elif ty == "Q":
                l = f"ds_read_b128 {v(WF+4*j,4)}, v4 offset:{ST_CS + j*64}"
            else:
                l = f"ds_read_b128 {v(WF+4*j,4)}, v4 offset:{ST_CS + ((j//5)*9 + j%5)*64}"
            return [(l, ("cs", j, 0))]
        for l, t in q_x(0): lg.issue(l, t)
        for j in range(NTL):
            if j in (4, 8): lg.wait(("w", 0, j - 4))
            for l, t in q_w(0, j): lg.issue(l, t)
        pend = []
        order = list(range(NTL)) if ty != "F" else ([0, 5, 1, 6, 4, 9, 2, 7, 3, 8] if fw == 0 else [1, 6, 2, 7, 0, 5, 3, 8, 4, 9])
        for step in range(16):
            ks = step % 2
            nstep = step + 1
            hold = []
            if PF1 == step: pf_w1()
            if PF2 == step: pf_w2()
            for gi, j in enumerate(order):
                while any(t == ("w", step, j) or t[:2] == ("x", step) for _, t in pend):
                    l, t = pend.pop(0); lg.issue(l, t)
                lg.wait(("w", step, j), ("x", step, 3))
                for i in toks(j):
                    a(mfma(j, i, step))
                    if pend:
                        l, t = pend.pop(0); lg.issue(l, t)
                new = []
                if nstep < 16:
                    new += q_w(nstep, j)
                    if gi in (2, 3):
                        new += q_x(nstep)[2*(gi-2):2*(gi-2)+2]
                else:
                    new += q_cs(j)
                    if gi in (1, 2, 3, 4):
                        i = gi - 1
                        if ty == "V":
                            new.append((f"ds_read_b128 {v(224+8*i,4)}, v6 offset:{ST_M + 64*i}", ("st", i, 0)))
                            new.append((f"ds_read_b128 {v(228+8*i,4)}, v6 offset:{ST_RS + 64*i}", ("st", i, 1)))
                        else:
                            new.append((f"ds_read_b32 {v(MR+2*i)}, v3 offset:{ST_M + 64*i}", ("st", i, 0)))
                            new.append((f"ds_read_b32 {v(MR+1+2*i)}, v3 offset:{ST_RS + 64*i}", ("st", i, 1)))
                if ks == 1 and gi < BA:
                    hold += new
                    continue
                if ks == 1 and gi == BA:
                    for l, t in pend: lg.issue(l, t)
                    pend = []
                    lg.wait_all()
                    a("s_barrier")
                    if step in (3, 7, 11, 15): ts("c", lg)
                    pend += hold
                pend += new
        for l, t in pend: lg.issue(l, t)
        ts("c", lg)
        def corr(j, i):
            for r in (0, 2):
                a(f"v_pk_fma_f32 {v(A(j,i,r),2)}, {v(WF+4*j+r,2)}, {v(MR+2*i,2)}, {v(A(j,i,r),2)} {BL}")
        def pack_store(j, i0, so, off):
            d = A(j, i0, 0)
            a(f"v_cvt_pk_bf16_f32 {v(d)}, {v(d)}, {v(d+1)}")
            a(f"v_cvt_pk_bf16_f32 {v(d+1)}, {v(d+2)}, {v(d+3)}")
            a(f"v_cvt_pk_bf16_f32 {v(d+2)}, {v(d+4)}, {v(d+5)}")
            a(f"v_cvt_pk_bf16_f32 {v(d+3)}, {v(d+6)}, {v(d+7)}")
            a("s_nop 0")
            a(f"v_permlane16_swap_b32 {v(d)}, {v(d+2)}")
            a(f"v_permlane16_swap_b32 {v(d+1)}, {v(d+3)}")
            pol = "" if ("local" in opt and ty == "F") or "plainall" in opt else "sc1"
            a(f"buffer_store_dwordx4 {v(d,4)}, v7, s[48:51], {s(so)} offen offset:{off} {pol}")
        lg.wait(("st", 3, 1))
        if ty == "F":
            for i in range(4):
                a(f"v_mul_f32 {v(MR+1+2*i)}, {v(MR+1+2*i)}, {v(MR+1+2*i)}")
            for e in order[::2]:
                lg.wait(("cs", e, 0), ("cs", 5 + e, 0))
                for i in toks(e):
                    corr(e, i); corr(5 + e, i)
                    for r in range(4):
                        a(f"v_max_f32 {v(A(e,i,r))}, 0, {v(A(e,i,r))}")
                    for r in (0, 2):
                        a(f"v_pk_mul_f32 {v(A(5+e,i,r),2)}, {v(A(5+e,i,r),2)}, {v(MR+2*i,2)} op_sel:[0,1] op_sel_hi:[1,1]")
                    for r in (0, 2):
                        a(f"v_pk_mul_f32 {v(A(e,i,r),2)}, {v(A(e,i,r),2)}, {v(A(5+e,i,r),2)}")
                    if i & 1:
                        pack_store(e, i - 1, 60 + e, 1024 * (i - 1))
        else:
            if ty == "Q":
                for i in range(4):
                    a(f"v_mul_f32 {v(MR+1+2*i)}, s66, {v(MR+1+2*i)}")
            for j in range(8):
                lg.wait(("cs", j, 0))
                for i in range(4):
                    if ty == "Q":
                        corr(j, i)
                        for r in (0, 2):
                            a(f"v_pk_mul_f32 {v(A(j,i,r),2)}, {v(A(j,i,r),2)}, {v(MR+2*i,2)} op_sel:[0,1] op_sel_hi:[1,1]")
                    else:
                        for r in (0, 2):
                            a(f"v_pk_fma_f32 {v(A(j,i,r),2)}, {v(224+8*i+r,2)}, {v(WF+4*j,2)}, {v(A(j,i,r),2)} {BL}")
                        for r in (0, 2):
                            a(f"v_pk_mul_f32 {v(A(j,i,r),2)}, {v(A(j,i,r),2)}, {v(228+8*i+r,2)}")
                    if i & 1:
                        pack_store(j, i - 1, 60, 512 * (i - 1))
                a(f"s_add_u32 s60, s60, {QS}")
        if not (ty == "F" and fw == 1):
            a(f"s_branch {L('mdone')}")
    a.label(L("mdone"))
    ts("c")
    KF, VF, QF = 16, 56, 136
    S = [144, 160, 176]
    NM, O, P, MK = 192, 208, 224, 240
    LP = "" if "local" in opt else "sc1"
    for r in range(4):
        a(f"v_mov_b32 {v(252+r)}, s{S_TAG}")
    a("v_mov_b32 v15, v8")
    a(f"s_setprio {ATP}")
    srd(a, 56, S_WS, 16 * HS, WS_O)
    a(f"s_mov_b32 s42, s{S_HD}")
    a(f"s_lshl_b32 s43, s{S_AB}, 2")
    a(f"s_add_u32 s43, s43, s{S_W}")
    a("s_lshl_b32 s45, s43, 6")
    a("v_and_b32 v1, 31, v0")
    a("v_lshrrev_b32 v2, 5, v0")
    a("v_lshlrev_b32 v3, 4, v2")
    a("v_lshlrev_b32 v8, 3, v2")
    a("v_sub_u32 v8, v1, v8")
    a("s_sub_u32 s37, s45, 256")
    a("s_mov_b32 exec_lo, 0xffff0000")
    a("s_mov_b32 exec_hi, 0xffff0000")
    for kt in range(10):
        a(f"s_cmp_ge_i32 s37, {-32*kt}")
        a("s_cselect_b32 s40, 0x3f803f80, 0")
        a("s_mov_b32 s41, s40")
        for r in range(0, 8, 2):
            a(f"v_pk_mov_b32 {v(VF+8*kt+r,2)}, s[40:41], s[40:41]")
    a("s_mov_b64 exec, -1")
    a(f"s_lshl_b32 s40, s{S_W}, 11")
    a(f"s_add_u32 s40, s40, {BQ}")
    a("v_add_u32 v4, s40, v15")
    a("v_and_b32 v5, 0x13, v1")
    a("v_bfe_u32 v7, v1, 2, 1")
    a("v_lshl_or_b32 v5, v7, 3, v5")
    a("v_bfe_u32 v7, v1, 3, 1")
    a("v_lshl_or_b32 v5, v7, 2, v5")
    a("v_lshl_add_u32 v7, v5, 5, v3")
    a("v_add_u32 v7, s40, v7")
    a("v_and_b32 v12, 15, v1")
    a("v_lshl_add_u32 v12, v2, 4, v12")
    a("v_lshlrev_b32 v12, 4, v12")
    a("v_lshrrev_b32 v13, 4, v1")
    a("v_lshl_add_u32 v12, v13, 10, v12")
    a("s_and_b32 s40, s42, 1")
    a("s_lshl_b32 s40, s40, 9")
    a("v_add_u32 v12, s40, v12")
    a("s_lshr_b32 s46, s42, 1")
    a(f"s_mul_i32 s46, s46, {HS}")
    a("s_lshl_b32 s40, s43, 12")
    a("s_add_u32 s46, s46, s40")
    if timing:
        MSL = [4, 6, 8, 10, 12, 14, 16, 18, 60, 62, 64, 66, 24, 40, 0, 20]
    else:
        MSL = [60 + 2 * r for r in range(16)]
    for r in range(16):
        a(f"v_cmp_le_i32 {s(MSL[r],2)}, {(r&7)+16*(r>>3)}, v8")
    a("v_mov_b32 v9, 0xffff")
    a("v_mov_b32 v10, 0xffff0000")
    for p in range(8):
        a(f"v_cndmask_b32 {v(MK+p)}, 0, v9, {s(MSL[2*p],2)}")
        a(f"v_cndmask_b32 v11, 0, v10, {s(MSL[2*p+1],2)}")
        a(f"v_or_b32 {v(MK+p)}, {v(MK+p)}, v11")
    a("s_waitcnt vmcnt(0)")
    a("s_mov_b64 exec, 0xff")
    a(f"buffer_store_dwordx4 v[252:255], v15, {s(SY,4)}, s31 offen sc1")
    a("s_mov_b64 exec, -1")
    a(f"s_lshl_b32 s3, s{S_W}, 2")
    a("v_mov_b32 v14, s3")
    a(f"ds_write_b32 v14, v252 offset:{ST_SY + 16}")
    ts("c")
    lds_spin("msync", ST_SY, 14, 13, sleep=1)
    ts("c")
    vm = Counter(a, "vmcnt", 60)
    lg = Counter(a, "lgkmcnt", 12)
    for t in range(2):
        lg.issue(f"ds_read_b128 {v(QF+4*t,4)}, v4 offset:{32768 + 1024*t}", ("q", t))
    for kt in range(10):
        lg.issue(f"ds_read_b128 {v(KF+4*kt,4)}, v4 offset:{1024*kt}", ("k", kt))
    a("s_mov_b32 exec_lo, 0xffff")
    a("s_mov_b32 exec_hi, 0xffff")
    for kt in range(10):
        lg.wait(("k", kt))
        for hh in range(2):
            lg.issue(f"ds_read_b128 {v(VF+8*kt+4*hh,4)}, v7 offset:{16384 + 1024*kt + 512*hh}", ("v", kt))
    a("s_mov_b64 exec, -1")
    def M(dst, kt, t, c):
        lg.wait(("k", kt), ("q", t))
        a(f"v_mfma_f32_32x32x16_bf16 {v(dst,16)}, {v(KF+4*kt,4)}, {v(QF+4*t,4)}, {c}")
    if ATV == 1:
        for t in range(2):
            far, diag = t, t + 8
            full = list(range(t + 1, t + 8))
            MX = 14
            M(O, far, t, "0")
            if t == 0: ts("c", lg)
            M(S[0], full[0], t, "0")
            M(S[1], full[1], t, "0")
            a("s_nop 7")
            def mx(src, first=False):
                for q in range(0, 16, 4):
                    if first and q == 0:
                        a(f"v_max_f32 {v(MX)}, {v(src)}, {v(src+1)}")
                        a(f"v_max_f32 {v(MX+1)}, {v(src+2)}, {v(src+3)}")
                    else:
                        a(f"v_max3_f32 {v(MX)}, {v(src+q)}, {v(src+q+1)}, {v(MX)}")
                        a(f"v_max3_f32 {v(MX+1)}, {v(src+q+2)}, {v(src+q+3)}, {v(MX+1)}")
            for n in range(7):
                if n + 2 < 7:
                    M(S[(n + 2) % 3], full[n + 2], t, "0")
                elif n + 2 == 7:
                    M(NM, diag, t, "0")
                if n == 0:
                    a("s_nop 1")
                mx(S[n % 3], first=(n == 0))
            for r in range(16):
                a(f"v_cndmask_b32 {v(O+r)}, {v(O+r)}, {v(NM+r)}, {s(MSL[r],2)}")
            mx(O)
            a(f"v_max_f32 {v(MX)}, {v(MX)}, {v(MX+1)}")
            a(f"v_mov_b32 {v(MX+1)}, {v(MX)}")
            a("s_nop 1")
            a(f"v_permlane32_swap_b32 {v(MX)}, {v(MX+1)}")
            a("s_nop 1")
            a(f"v_max_f32 {v(MX)}, {v(MX)}, {v(MX+1)}")
            a(f"v_sub_f32 {v(MX)}, 0, {v(MX)}")
            for r in range(0, 16, 2):
                a(f"v_pk_mov_b32 {v(NM+r,2)}, {v(MX,2)}, {v(MX,2)} op_sel:[0,0]")
            a("s_nop 1")
            if t == 0:
                lg.wait_all(force=False)
                a(f"s_lshl_b32 s3, s{S_W}, 2")
                a("v_mov_b32 v13, s3")
                lg.issue(f"ds_write_b32 v13, v252 offset:{ST_SY + 32}")
            M(S[0], full[0], t, v(NM, 16))
            M(S[2], far, t, v(NM, 16))
            a("s_nop 9")
            first_pv = [True]
            def PV(kt, hh, preg):
                lg.wait(("v", kt))
                c = "0" if first_pv[0] else v(O, 16)
                first_pv[0] = False
                a(f"v_mfma_f32_32x32x16_bf16 {v(O,16)}, {v(VF+8*kt+4*hh,4)}, {v(preg+4*hh,4)}, {c}")
            for n in range(8):
                cur = S[n % 2]
                nxt = S[(n + 1) % 2]
                if n + 1 < 7:
                    M(nxt, full[n + 1], t, v(NM, 16))
                elif n + 1 == 7:
                    M(nxt, diag, t, v(NM, 16))
                if n == 7:
                    for r in range(16):
                        a(f"v_cndmask_b32 {v(cur+r)}, {v(S[2]+r)}, {v(cur+r)}, {s(MSL[r],2)}")
                for r in range(16):
                    a(f"v_exp_f32 {v(cur+r)}, {v(cur+r)}")
                    if n > 0 and r == 5: PV(full[n - 1], 0, P)
                    if n > 0 and r == 11: PV(full[n - 1], 1, P)
                for p in range(8):
                    a(f"v_cvt_pk_bf16_f32 {v(P+p)}, {v(cur+2*p)}, {v(cur+2*p+1)}")
            for p in range(8):
                a(f"v_bfi_b32 {v(P+8+p)}, {v(MK+p)}, 0, {v(P+p)}")
                a(f"v_and_b32 {v(P+p)}, {v(MK+p)}, {v(P+p)}")
            a("s_nop 1")
            PV(diag, 0, P); PV(diag, 1, P); PV(far, 0, P + 8); PV(far, 1, P + 8)
            a("s_nop 11")
            a(f"v_rcp_f32 v14, {v(O+8)}")
            a("s_nop 0")
            for r in range(8):
                a(f"v_mul_f32 {v(O+r)}, v14, {v(O+r)}")
            for p in range(4):
                a(f"v_cvt_pk_bf16_f32 {v(248+4*t+p)}, {v(O+2*p)}, {v(O+2*p+1)}")
            vm.issue(f"buffer_store_dwordx4 {v(248+4*t,4)}, v12, s[56:59], s46 offen offset:{2048*t} {LP}")
    else:
        MXR = [[8, 9], [10, 11]]
        FARB = [O, P]
        RB4 = [S[0], S[1], S[2], NM]
        items = []
        for n in range(7):
            for tq in range(2):
                items.append((tq, tq + 1 + n, "f"))
            if n == 2:
                items += [(0, 8, "d"), (1, 9, "d")]
        first = [True, True]
        def mx2(tq, src):
            m0, m1 = MXR[tq]
            for q in range(0, 16, 4):
                if first[tq] and q == 0:
                    a(f"v_max_f32 {v(m0)}, {v(src)}, {v(src+1)}")
                    a(f"v_max_f32 {v(m1)}, {v(src+2)}, {v(src+3)}")
                else:
                    a(f"v_max3_f32 {v(m0)}, {v(src+q)}, {v(src+q+1)}, {v(m0)}")
                    a(f"v_max3_f32 {v(m1)}, {v(src+q+2)}, {v(src+q+3)}, {v(m1)}")
            first[tq] = False
        M(RB4[0], items[0][1], items[0][0], "0")
        ts("c", lg)
        M(RB4[1], items[1][1], items[1][0], "0")
        M(FARB[0], 0, 0, "0")
        M(FARB[1], 1, 1, "0")
        M(RB4[2], items[2][1], items[2][0], "0")
        a("s_nop 6")
        for n, (tq, kt, kind) in enumerate(items):
            if n + 3 < len(items):
                M(RB4[(n + 3) % 4], items[n + 3][1], items[n + 3][0], "0")
            src = RB4[n % 4]
            if kind == "d":
                for r in range(16):
                    a(f"v_cndmask_b32 {v(src+r)}, {v(FARB[tq]+r)}, {v(src+r)}, {s(MSL[r],2)}")
            mx2(tq, src)
        for tq in range(2):
            a(f"v_max_f32 {v(MXR[tq][0])}, {v(MXR[tq][0])}, {v(MXR[tq][1])}")
        for tq in range(2):
            a(f"v_mov_b32 {v(MXR[tq][1])}, {v(MXR[tq][0])}")
        a("s_nop 0")
        for tq in range(2):
            a(f"v_permlane32_swap_b32 {v(MXR[tq][0])}, {v(MXR[tq][1])}")
        a("s_nop 0")
        for tq in range(2):
            a(f"v_max_f32 {v(MXR[tq][0])}, {v(MXR[tq][0])}, {v(MXR[tq][1])}")
        for tq in range(2):
            a(f"v_sub_f32 {v(MXR[tq][0])}, 0, {v(MXR[tq][0])}")
        def setnm(tq):
            for r in range(0, 16, 2):
                a(f"v_pk_mov_b32 {v(NM+r,2)}, {v(MXR[tq][0],2)}, {v(MXR[tq][0],2)} op_sel:[0,0]")
        setnm(0)
        lg.wait_all(force=False)
        a(f"s_lshl_b32 s3, s{S_W}, 2")
        a("v_mov_b32 v13, s3")
        lg.issue(f"ds_write_b32 v13, v252 offset:{ST_SY + 32}")
        slots = []
        for tq in range(2):
            slots.append((tq, "m"))
            for n in range(7):
                slots.append((tq, tq + 1 + n))
        NMV = v(NM, 16)
        def issue_S(n):
            tq, k = slots[n]
            if k == "m":
                M(S[n % 2], tq + 8, tq, NMV)
                M(S[2], tq, tq, NMV)
            else:
                M(S[n % 2], k, tq, NMV)
        fpv = [True, True]
        def PV2(tq, kt, hh, preg):
            c = "0" if fpv[tq] else v(O, 16)
            fpv[tq] = False
            a(f"v_mfma_f32_32x32x16_bf16 {v(O,16)}, {v(VF+8*kt+4*hh,4)}, {v(preg+4*hh,4)}, {c}")
        def pvs(n):
            tq, k = slots[n]
            if k == "m":
                return [(tq, tq + 8, 0, P), (tq, tq + 8, 1, P), (tq, tq, 0, P + 8), (tq, tq, 1, P + 8)]
            return [(tq, k, 0, P), (tq, k, 1, P)]
        def finish(tq):
            a(f"v_rcp_f32 v14, {v(O+8)}")
            a("s_nop 0")
            for r in range(8):
                a(f"v_mul_f32 {v(O+r)}, v14, {v(O+r)}")
            for p in range(4):
                a(f"v_cvt_pk_bf16_f32 {v(248+4*tq+p)}, {v(O+2*p)}, {v(O+2*p+1)}")
            vm.issue(f"buffer_store_dwordx4 {v(248+4*tq,4)}, v12, s[56:59], s46 offen offset:{2048*tq} {LP}")
        issue_S(0)
        a("s_nop 9")
        for n in range(16):
            tq, k = slots[n]
            cur = S[n % 2]
            if n + 1 < 16 and n != 7:
                issue_S(n + 1)
            if k == "m":
                if n == 0: a("s_nop 0")
                for r in range(16):
                    a(f"v_cndmask_b32 {v(cur+r)}, {v(S[2]+r)}, {v(cur+r)}, {s(MSL[r],2)}")
                    if n == 8 and r in (3, 11):
                        PV2(*pvs(7)[0 if r == 3 else 1])
            pl = pvs(n - 1) if (n > 0 and n != 8) else []
            pos = {2: (5, 11), 4: (2, 6, 10, 14), 0: ()}[len(pl)]
            for r in range(16):
                a(f"v_exp_f32 {v(cur+r)}, {v(cur+r)}")
                if r in pos: PV2(*pl[pos.index(r)])
                if n == 7 and r == 12:
                    setnm(1)
                if n == 8 and r == 12:
                    finish(0)
            if n == 7:
                issue_S(8)
            for p in range(8):
                a(f"v_cvt_pk_bf16_f32 {v(P+p)}, {v(cur+2*p)}, {v(cur+2*p+1)}")
            if n == 7:
                a("s_nop 2")
            if k == "m":
                for p in range(8):
                    a(f"v_bfi_b32 {v(P+8+p)}, {v(MK+p)}, 0, {v(P+p)}")
                    a(f"v_and_b32 {v(P+p)}, {v(MK+p)}, {v(P+p)}")
        a("s_nop 1")
        for x in pvs(15): PV2(*x)
        a("s_nop 11")
        finish(1)
    ts("c")
    a("s_lshl_b32 s40, s43, 5")
    a("s_add_u32 s40, s40, s42")
    a("s_lshl_b32 s40, s40, 7")
    a(f"s_add_u32 s40, s40, {SY_OF}")
    a("v_lshlrev_b32 v3, 4, v0")
    for r in range(4):
        a(f"v_mov_b32 {v(4+r)}, s{S_TAG}")
    a("s_mov_b64 exec, 0xff")
    a("s_waitcnt vmcnt(0)")
    a(f"buffer_store_dwordx4 v[4:7], v3, {s(SY,4)}, s40 offen {LP}")
    a("s_mov_b64 exec, -1")
    a(f"s_or_b32 s3, s2, s{S_W}")
    a("s_cmp_lg_u32 s3, 0")
    a(f"s_cbranch_scc1 {L('noep')}")
    a("v_lshlrev_b32 v8, 9, v0")
    a(f"v_add_u32 v8, {SY_F}, v8")
    for q in range(4):
        poll(f"pe{q}", 8, 9)
        a("v_add_u32 v8, 0x8000, v8")
    a(f"s_add_u32 s3, s{S_EP}, 1")
    a("v_mov_b32 v9, s3")
    a("v_mov_b32 v8, 0")
    a("s_mov_b64 exec, 1")
    a(f"buffer_store_dword v9, v8, {s(SY,4)}, 0 offen sc1")
    a.label(L("noep"))
    ts_dump("c")
    a(f"s_branch {L('end')}")

    a.label(L("loader"))
    LW = 31
    a(f"s_sub_u32 s{LW}, s{S_W}, 4")
    a("s_setprio 3")
    a("v_lshrrev_b32 v1, 3, v0")
    a("v_and_b32 v2, 7, v0")
    a(f"s_lshl_b32 s54, s{S_RB}, 7")
    a(f"s_lshl_b32 s55, s{LW}, 5")
    a("s_add_u32 s54, s54, s55")
    a("v_lshrrev_b32 v4, 4, v0")
    a("v_xor_b32 v4, v4, v2")
    a("v_add_u32 v3, s54, v1")
    a("v_lshlrev_b32 v3, 10, v3")
    a("v_lshl_add_u32 v10, v4, 4, v3")
    a("v_xor_b32 v11, 64, v10")
    a("v_add_u32 v11, 0x2000, v11")
    a("v_add_u32 v12, 0x4000, v10")
    a("v_add_u32 v13, 0x4000, v11")
    a(f"s_lshl_b32 s56, s{LW}, 12")
    a(f"s_add_u32 s56, s56, {SB}")
    a(f"s_mul_i32 s57, s{LW}, 9216")
    a(f"s_add_u32 s57, s57, {SB+WOFF}")
    a(f"s_cmp_lt_u32 s{S_C}, 10")
    a(f"s_cbranch_scc1 {L('lF')}")
    CA = [112, 117, 122]
    CS = 44
    CF = 64
    G_ACC, XR = 192, 24
    NH, NO = 11, 4
    NT = NH + NO
    BUFORD = [2, 0]
    def slot_off(k):
        sl = k % 6
        return BUFORD[sl // 3], (sl % 3) * 4096
    def w2_list(k):
        b, o = slot_off(k)
        out = []
        for q in range(4):
            kk, sr = (k, 40) if k < NH else (k - NH, 44)
            if ROT and k < NH:
                pre = ""
                if q == 0:
                    pre = (f"s_add_u32 s66, s67, {kk}\ns_cmp_ge_u32 s66, 11\ns_cselect_b32 s58, 11, 0\ns_sub_u32 s66, s66, s58\n"
                           f"s_lshl_b32 s66, s66, 17\ns_add_u32 s66, s66, s57\n")
                out.append((pre + f"s_add_u32 m0, s56, {b*STG + o + q*1024}",
                            f"s_add_u32 s58, s66, {(16*(q&1) + 4*(q>>1))*1024}",
                            f"buffer_load_dwordx4 v2, {s(sr,4)}, s58 offen lds", ("w", k)))
                continue
            out.append((f"s_add_u32 m0, s56, {b*STG + o + q*1024}",
                        f"s_add_u32 s58, s57, {kk*4*32768 + (16*(q&1) + 4*(q>>1))*1024}",
                        f"buffer_load_dwordx4 v2, {s(sr,4)}, s58 offen lds", ("w", k)))
        return out
    def p2_setup():
        srd(a, 40, S_WD, 1376 * 1024)
        srd(a, 44, S_WO, 512 * 1024)
        a("v_lshrrev_b32 v3, 3, v0")
        a("v_and_b32 v4, 7, v0")
        a("v_and_b32 v5, 6, v3")
        a("v_xor_b32 v4, v4, v5")
        a("v_lshlrev_b32 v4, 4, v4")
        a("v_and_b32 v5, 4, v3")
        a("v_add_u32 v3, v3, v5")
        a("v_lshl_add_u32 v4, v3, 10, v4")
        a(f"s_lshl_b32 s3, s{S_J}, 7")
        a("v_add_u32 v2, s3, v4")
        a(f"s_mul_i32 s56, s{LW}, 12288")
        a(f"s_add_u32 s56, s56, {SB}")
        a(f"s_lshl_b32 s57, s{LW}, 15")
        a(f"s_mul_i32 s59, s{LW}, {HS}")
        if ROT:
            a(f"s_and_b32 s67, s{S_TB}, 3")
            a(f"s_mul_i32 s67, s67, {ROT[1]}")
            a(f"s_mul_i32 s66, s{S_J}, {ROT[0]}")
            a("s_add_u32 s67, s67, s66")
            for _ in range(4):
                a("s_cmp_ge_u32 s67, 11")
                a("s_cselect_b32 s66, 11, 0")
                a("s_sub_u32 s67, s67, s66")
    ts0 = TS.get("l", 0)
    for ty in ("Q", "F"):
        TS["l"] = ts0
        if ty == "F": a.label(L("lF"))
        stride = 2752 if ty == "F" else 3072
        vm = Counter(a, "vmcnt", 60)
        lg = Counter(a, "lgkmcnt", 12)
        a(f"s_movk_i32 s63, {stride}")
        if ty == "F":
            a(f"s_and_b32 s54, s{LW}, 1")
            a("s_lshl_b32 s54, s54, 5")
            a(f"s_mul_i32 s55, s{S_C}, 288")
            a("s_movk_i32 s64, 3641")
        else:
            a(f"s_lshr_b32 s54, s{LW}, 1")
            a("s_lshl_b32 s54, s54, 5")
            a(f"s_and_b32 s55, s{LW}, 1")
            a("s_lshl_b32 s55, s55, 2")
            a("s_add_u32 s54, s54, s55")
            a(f"s_sub_u32 s55, s{S_C}, 10")
            a("s_lshl_b32 s55, s55, 9")
            a("s_movk_i32 s64, 1928")
            a("v_mov_b32 v9, 0x7fff0000")
        a("s_waitcnt lgkmcnt(0)")
        srd(a, 36, S_X, 2048 * 1024)
        if ty == "F":
            a(f"s_cmp_lt_u32 s{LW}, 2")
            a(f"s_cselect_b32 s40, s{S_WG}, s{S_WU}")
            a(f"s_cselect_b32 s41, s{S_WG+1}, s{S_WU+1}")
            a(f"s_mov_b32 s42, {hex(512*2752)}")
            a("s_mov_b32 s43, 0x00020000")
        else:
            srd(a, 40, S_WQKV, 512 * 3072)
        def dma_list(stage):
            buf = stage % 3
            out = []
            for i in range(4):
                out.append((f"s_add_u32 m0, s56, {buf*STG + i*1024}", f"s_movk_i32 s58, {stage*128}",
                            f"buffer_load_dwordx4 {v(10+i)}, s[36:39], s58 offen lds", ("st", stage)))
            for b in range(9):
                out.append((f"s_add_u32 m0, s57, {buf*STG + b*1024}", f"s_mov_b32 s58, {stage*64*stride}",
                            f"buffer_load_dwordx4 {v(14+b)}, s[40:43], s58 offen lds", ("st", stage)))
            return out
        def run(lst):
            for m, so, ld, tg in lst:
                a(m); a(so); vm.issue(ld, tg)
        run(dma_list(0)[:4])
        for b in range(9):
            a(f"v_add_u32 v3, {64*b}, v0")
            a("v_mul_u32_u24 v4, s64, v3")
            a("v_lshrrev_b32 v4, 16, v4")
            a(f"v_mul_u32_u24 v5, {18 if ty == 'F' else 34}, v4")
            a("v_sub_u32 v5, v3, v5")
            a("v_and_b32 v6, 3, v4")
            a("v_bfe_u32 v7, v4, 2, 2")
            a("v_lshl_add_u32 v6, v7, 3, v6")
            if ty == "F":
                a("v_lshrrev_b32 v7, 4, v4")
                a("v_lshl_add_u32 v6, v7, 2, v6")
            a("v_add_u32 v6, s54, v6")
            a("v_mul_u32_u24 v6, s63, v6")
            a("v_lshl_add_u32 v6, v5, 4, v6")
            if ty == "F":
                a(f"v_add_u32 {v(14+b)}, s55, v6")
            else:
                a("v_cmp_gt_u32 vcc, 32, v5")
                a("v_add_u32 v6, s55, v6")
                a("v_cmp_gt_u32 s[60:61], 16, v4")
                a(f"v_cndmask_b32 v6, v9, v6, vcc")
                a("s_nop 0")
                a(f"v_cndmask_b32 {v(14+b)}, v9, v6, s[60:61]")
            run(dma_list(0)[4+b:5+b])
        run(dma_list(1)[:P1N])
        srd(a, SY, S_WS, SY_SIZE, WS_SY)
        a(f"s_load_dword s{S_EP}, s[{SY}:{SY+1}], {SY_EPOCH}")
        NC = 5 if ty == "F" else 4
        a("v_lshrrev_b32 v4, 2, v0")
        a(f"v_mul_u32_u24 v4, {288 if ty == 'F' else 544}, v4")
        a("v_and_b32 v5, 3, v0")
        a("v_lshl_add_u32 v4, v5, 3, v4")
        a(f"v_add_u32 v4, {SB+WOFF}, v4")
        for i in range(NC):
            T = 61 + i
            if i < 4:
                a(f"s_add_u32 s{T}, s{LW}, {4*i}")
            else:
                a(f"s_and_b32 s{T}, s{LW}, 1")
                a(f"s_add_u32 s{T}, s{T}, 16")
            a(f"s_lshl_b32 s54, s{T}, 5")
            if ty == "F":
                a(f"s_cmp_ge_u32 s{T}, 9")
                a(f"s_cselect_b32 s55, {18432 - 288}, 0")
                a("s_add_u32 s54, s54, s55")
            a(f"v_add_u32 {v(CA[0]+i)}, s54, v4")
            a(f"v_add_u32 {v(CA[1]+i)}, {STG}, {v(CA[0]+i)}")
            a(f"v_add_u32 {v(CA[2]+i)}, {2*STG}, {v(CA[0]+i)}")
        for r in range(4):
            a(f"v_mov_b32 {v(28+r)}, 0x3f803f80")
        a(f"s_lshl_b32 s54, s{S_RB}, 13")
        a(f"s_lshl_b32 s55, s{LW}, 11")
        a("s_add_u32 s54, s54, s55")
        a(f"s_add_u32 s54, s54, {SY_ROW}")
        a("v_and_b32 v27, 15, v0")
        a("v_lshlrev_b32 v26, 7, v27")
        a("v_add_u32 v26, s54, v26")
        a(f"s_lshl_b32 s3, s{LW}, 7")
        a("v_lshl_add_u32 v27, v27, 3, s3")
        a("s_waitcnt lgkmcnt(0)")
        mktag()
        def colsum(stage, filler):
            buf = stage % 3
            for ks in range(2):
                for i in range(NC):
                    for hf in range(2):
                        off = (ks * 9216 + hf * 4608) if ty == "F" else (2 * ks + hf) * 9216
                        lg.issue(f"ds_read_b64_tr_b16 {v(CF+20*ks+4*i+2*hf,2)}, {v(CA[buf]+i)} offset:{off}", ("c", ks, i))
                run(filler[:2]); filler = filler[2:]
                for i in range(NC):
                    lg.wait(("c", ks, i))
                    acc = v(CS + 4 * i, 4)
                    a(f"v_mfma_f32_16x16x32_bf16 {acc}, {v(CF+20*ks+4*i,4)}, v[28:31], {'0' if stage == 0 and ks == 0 else acc}")
            run(filler)
        ts("l")
        vm.wait(("st", 0))
        a("s_barrier")
        ts("l")
        run(dma_list(1)[P1N:])
        colsum(0, dma_list(2))
        vm.wait(("st", 1))
        a("s_barrier")
        colsum(1, dma_list(3))
        vm.wait(("st", 2))
        a("s_barrier")
        vm.issue(f"buffer_load_dwordx4 v[104:107], v26, {s(SY,4)}, 0 offen sc1", "gat")
        colsum(2, dma_list(4))
        vm.wait(("st", 3))
        a("s_barrier")
        colsum(3, dma_list(5))
        vm.wait(("st", 4), "gat")
        a(f"v_cmp_eq_u32 vcc, s{S_TAG}, v106")
        a("s_nop 3")
        a("s_cmp_eq_u64 vcc, -1")
        a(f"s_cbranch_scc1 {L('valok' + ty)}")
        poll("pr" + ty, 26, 104, width=4, tagreg=2)
        a.label(L("valok" + ty))
        a("s_barrier")
        colsum(4, dma_list(6))
        for k in range(2):
            a(f"v_lshlrev_b32 {v(108+k)}, 16, {v(104+k)}")
            a(f"v_xor_b32 {v(108+k)}, 0x80000000, {v(108+k)}")
            a(f"v_and_b32 {v(110+k)}, 0xffff0000, {v(104+k)}")
            a(f"v_rcp_f32 {v(110+k)}, {v(110+k)}")
        a("s_nop 0")
        lg.issue(f"ds_write_b64 v27, v[108:109] offset:{ST_M}")
        lg.issue(f"ds_write_b64 v27, v[110:111] offset:{ST_RS}")
        vm.wait(("st", 5))
        a("s_barrier")
        colsum(5, dma_list(7))
        p2_setup()
        lg.wait_all()
        vm.wait(("st", 6))
        a("s_barrier")
        colsum(6, (w2_list(0) + w2_list(1) + w2_list(2)) if (ty == "F" or QD < 2) else [])
        vm.wait(("st", 7))
        a("s_barrier")
        colsum(7, [])
        a("v_lshrrev_b32 v3, 4, v0")
        a("v_lshlrev_b32 v6, 4, v3")
        a("s_nop 5")
        for i in range(NC):
            a(f"s_lshl_b32 s3, s{61+i}, 6")
            a("v_add_u32 v7, s3, v6")
            lg.issue(f"ds_write_b128 v7, {v(CS+4*i,4)} offset:{ST_CS}")
        if ty == "F" or QD < 1:
            run(w2_list(3) + w2_list(4) + w2_list(5))
        if ty == "Q":
            a(f"s_branch {L('ldone')}")
    a.label(L("ldone"))
    vm = Counter(a, "vmcnt", 60)
    lg = Counter(a, "lgkmcnt", 12)
    def dma_w(k):
        for m, so, ld, tg in w2_list(k):
            a(m); a(so); vm.issue(ld, tg)
    BREG = {}
    WREG = {k: 32 + 16 * k for k in range(6)}
    POOL = [128, 144, 160, 176]
    def load_b(k):
        kk, sr = (k, 48) if k < NH else (k - NH, 52)
        BREG[k] = POOL.pop(0)
        if ROT:
            a(f"s_add_u32 s60, s67, {kk}")
            a("s_cmp_ge_u32 s60, 11")
            a("s_cselect_b32 s58, 11, 0")
            a("s_sub_u32 s60, s60, s58")
            a("s_lshl_b32 s60, s60, 19")
            a("s_add_u32 s60, s60, s59")
        else:
            a(f"s_add_u32 s60, s59, {kk*4*HS}")
        for i in range(4):
            vm.issue(f"buffer_load_dwordx4 {v(BREG[k]+4*i,4)}, v1, {s(sr,4)}, s60 offen offset:{1024*i} sc1", ("b", k))
    def rd_w2(k):
        b, o = slot_off(k)
        if k not in WREG:
            WREG[k] = POOL.pop(0)
        for u in range(4):
            for hf in range(2):
                lg.issue(f"ds_read_b64_tr_b16 {v(WREG[k]+4*u+2*hf,2)}, {v(10+4*b+u)} offset:{o + hf*2048}", ("w", k, u))
    for k in range(6): vm.tag[("w", k)] = 0
    assert EW == 0
    a("v_lshrrev_b32 v3, 4, v0")
    a("v_lshrrev_b32 v5, 2, v0")
    a("v_bfe_u32 v6, v5, 1, 2")
    a("v_and_b32 v7, 3, v0")
    a("v_lshlrev_b32 v7, 3, v7")
    a("v_lshl_add_u32 v7, v5, 7, v7")
    a("v_add_u32 v7, s56, v7")
    for u in range(4):
        a(f"v_xor_b32 v8, {u}, v6")
        a(f"v_lshl_add_u32 {v(10+u)}, v8, 5, v7")
        a(f"v_add_u32 {v(18+u)}, {2*STG}, {v(10+u)}")
    a("s_waitcnt lgkmcnt(0)")
    if EW:
        a("s_waitcnt vmcnt(12)")
        for k in range(3):
            if k >= 1:
                lg.wait(("w", k - 1, 1))
            rd_w2(k)
    a("s_barrier")
    if LP0: a("s_setprio 0")
    ts("l", lg)
    if QD:
        a(f"s_cmp_lt_u32 s{S_C}, 10")
        a(f"s_cbranch_scc1 {L('nqd')}")
        lds_spin("qd", ST_SY + 16, 4, 5, sleep=2)
        for k in range(0 if QD == 2 else 3, 6 - QD3): dma_w(k)
        a.label(L("nqd"))
    if EW:
        lg.wait_all()
        for k in range(6, 9): dma_w(k)
        for k in range(3, 6):
            vm.wait(("w", k))
            if k > 3: lg.wait(("w", k - 1, 1))
            rd_w2(k)
        lg.wait_all()
        for k in range(9, 6 + EW): dma_w(k)
    srd(a, 48, S_WS, 96 * QS, WS_QK)
    a(f"s_lshl_b32 s0, s{S_AB}, 8")
    a(f"s_lshl_b32 s1, s{LW}, 7")
    a("s_add_u32 s1, s1, s0")
    a("s_sub_u32 s1, s1, 256")
    a("v_and_b32 v128, 31, v0")
    a("v_lshrrev_b32 v129, 5, v0")
    a("v_lshlrev_b32 v129, 4, v129")
    a("v_and_b32 v130, 0x13, v128")
    a("v_bfe_u32 v131, v128, 2, 1")
    a("v_lshl_or_b32 v130, v131, 3, v130")
    a("v_bfe_u32 v131, v128, 3, 1")
    a("v_lshl_or_b32 v130, v131, 2, v130")
    a("v_add_u32 v130, s1, v130")
    for n in range(4):
        a(f"v_add_u32 {v(132+n)}, {32*n}, v130")
        a(f"v_max_i32 {v(132+n)}, 0, {v(132+n)}")
        a(f"v_lshl_add_u32 {v(132+n)}, {v(132+n)}, 5, v129")
    a(f"s_lshl_b32 s3, s{LW}, 6")
    a("s_add_u32 s3, s3, s0")
    a("v_add_u32 v136, s3, v128")
    a("v_lshl_add_u32 v136, v136, 5, v129")
    a("v_lshlrev_b32 v137, 4, v0")
    a(f"s_lshr_b32 s5, s{S_HD}, 3")
    a("s_lshl_b32 s5, s5, 8")
    a(f"s_add_u32 s5, s5, {SY_F + 10*512}")
    a(f"s_lshl_b32 s3, s{S_AB}, 1")
    a(f"s_add_u32 s4, s3, s{LW}")
    a("s_sub_u32 s4, s4, 2")
    a("s_max_i32 s4, s4, 0")
    a("s_lshl_b32 s4, s4, 13")
    a("s_add_u32 s6, s4, s5")
    a("s_add_u32 s6, s6, 1024")
    a(f"s_lshr_b32 s4, s{LW}, 1")
    a("s_add_u32 s4, s4, s3")
    a("s_lshl_b32 s4, s4, 13")
    a("s_add_u32 s4, s4, s5")
    a(f"s_and_b32 s5, s{LW}, 1")
    a("s_lshl_b32 s5, s5, 7")
    a("s_add_u32 s4, s4, s5")
    a("v_and_b32 v138, 1, v0")
    a("v_lshlrev_b32 v138, 7, v138")
    a("v_bfe_u32 v139, v0, 1, 1")
    a("v_lshl_add_u32 v138, v139, 10, v138")
    a("v_add_u32 v138, s6, v138")
    a("v_mov_b32 v139, s4")
    a("v_and_b32 v140, 4, v0")
    a("v_cmp_eq_u32 vcc, 0, v140")
    a("s_nop 1")
    a("v_cndmask_b32 v138, v139, v138, vcc")
    a(f"s_mul_i32 s4, s{S_HD}, {QS}")
    a(f"s_add_u32 s5, s4, {32 * QS}")
    a("s_lshl_b32 s6, s1, 5")
    a("s_add_u32 s6, s6, s4")
    a(f"s_add_u32 s6, s6, {64 * QS}")
    a("s_cmp_ge_i32 s1, 0")
    a("s_cselect_b32 s6, s6, 0x7fff0000")
    a(f"s_lshl_b32 s7, s{LW}, 12")
    a(f"s_add_u32 s7, s7, {BQ}")
    a(f"s_lshl_b32 s0, s{LW}, 11")
    a(f"s_add_u32 s0, s0, {BQ + 32768}")
    if IR:
        a("s_waitcnt vmcnt(0)")
        for k in range(6):
            if k >= 1:
                lg.wait(("w", k - 1, 1))
            rd_w2(k)
    poll("pq", 138, 4, sleep=QSL)
    vm.done = vm.n
    ts("l")
    a("s_mov_b32 m0, s0")
    a("s_nop 0")
    for n in range(2):
        a(f"buffer_load_dwordx4 v136, s[48:51], s4 offen offset:{1024*n} sc1 lds")
    for n in range(4):
        a(f"s_add_u32 m0, s7, {1024*n}")
        a("s_nop 0")
        a(f"buffer_load_dwordx4 {v(132+n)}, s[48:51], s5 offen sc1 lds")
    a("s_add_u32 m0, s7, 16384")
    a("s_nop 0")
    for n in range(4):
        a(f"buffer_load_dwordx4 v137, s[48:51], s6 offen offset:{1024*n} sc1 lds")
    if IR:
        lg.wait_all()
        for k in range(6, 6 + IR): dma_w(k)
        a(f"s_lshl_b32 s3, s{LW}, 2")
        a("v_mov_b32 v4, s3")
        a(f"v_mov_b32 v5, s{S_TAG}")
        a(f"s_waitcnt vmcnt({4*IR})")
        lg.issue(f"ds_write_b32 v4, v5 offset:{ST_SY}")
        ts("l", lg)
    else:
        for k in range(RDE):
            if k >= 1:
                lg.wait(("w", k - 1, 1))
            rd_w2(k)
        a(f"s_lshl_b32 s3, s{LW}, 2")
        a("v_mov_b32 v4, s3")
        a(f"v_mov_b32 v5, s{S_TAG}")
        a("s_waitcnt vmcnt(0)")
        lg.issue(f"ds_write_b32 v4, v5 offset:{ST_SY}")
        ts("l", lg)
        for k in range(RDE, 6):
            if k >= 1:
                lg.wait(("w", k - 1, 1))
            rd_w2(k)
    srd(a, 48, S_WS, NSLAB_H * HS, WS_H)
    srd(a, 52, S_WS, 16 * HS, WS_O)
    a(f"s_lshl_b32 s3, s{S_TB}, 12")
    a("v_lshl_add_u32 v1, v0, 4, s3")
    a("v_and_b32 v8, 15, v0")
    a("v_lshlrev_b32 v9, 10, v8")
    a(f"s_lshl_b32 s3, s{S_TB}, 16")
    a(f"s_lshl_b32 s61, s{LW}, 14")
    a("s_add_u32 s3, s3, s61")
    a(f"s_lshl_b32 s61, s{S_J}, 7")
    a("s_add_u32 s3, s3, s61")
    a("v_add_u32 v9, s3, v9")
    a("v_and_b32 v4, 1, v3")
    a("v_lshl_add_u32 v8, v4, 5, v9")
    a("v_lshrrev_b32 v4, 1, v3")
    a("v_lshl_add_u32 v8, v4, 4, v8")
    a("v_lshl_add_u32 v9, v3, 3, v9")
    a("v_lshrrev_b32 v4, 1, v0")
    a("v_min_u32 v4, 9, v4")
    a("v_lshlrev_b32 v4, 9, v4")
    a("v_and_b32 v5, 1, v0")
    a("v_lshl_add_u32 v4, v5, 8, v4")
    a(f"s_lshr_b32 s3, s{S_TB}, 1")
    a("s_lshl_b32 s3, s3, 13")
    a(f"s_and_b32 s61, s{S_TB}, 1")
    a("s_lshl_b32 s61, s61, 7")
    a("s_add_u32 s3, s3, s61")
    a(f"s_add_u32 s3, s3, {SY_F}")
    a("v_add_u32 v22, s3, v4")
    a("v_and_b32 v4, 31, v0")
    a("v_lshlrev_b32 v4, 7, v4")
    a(f"s_lshl_b32 s3, s{S_TB}, 12")
    a(f"s_add_u32 s3, s3, {SY_OF}")
    a("v_add_u32 v23, s3, v4")
    a(f"s_setprio {LP2}")
    if LS0: lds_spin("lsync0", ST_SY, 4, 5, sleep=2)
    if LS1: lds_spin("lsync", ST_SY + 16, 4, 5, sleep=2)
    lg.wait_all()
    lg.done = lg.n
    if AP is None:
        for k in range(6 + IR, 6 + max(RF, IR)): dma_w(k)
        ts("l", lg)
        poll("ph", 22, 4, sleep=HSL)
        vm.done = vm.n
        ts("l", lg)
    else:
        for k in range(6, 6 + AP): dma_w(k)
        vm.issue(f"buffer_load_dword v4, v22, {s(SY,4)}, 0 offen sc1", "ap")
        for k in range(6 + AP, 12): dma_w(k)
        ts("l", lg)
        vm.wait("ap")
        a(f"v_cmp_eq_u32 vcc, s{S_TAG}, v4")
        a("s_nop 3")
        a("s_cmp_eq_u64 vcc, -1")
        a(f"s_cbranch_scc1 {L('apok')}")
        poll("ph", 22, 4, sleep=HSL)
        a.label(L("apok"))
        ts("l", lg)
    if "hprobe" in opt:
        TS["l"] = 0
        ts("l", lg)
    nb = [0]
    def more_b(limit, reserve):
        while nb[0] < limit and len(POOL) > reserve:
            load_b(nb[0]); nb[0] += 1
    more_b(NH, 0)
    RQ = list(range(6 + max(RF, EW), 12))
    for _ in range(RF2):
        if RQ: dma_w(RQ.pop(0))
    def mm(k):
        for u in range(4):
            lg.wait(("w", k, u))
            for i in range(4):
                acc = v(G_ACC + 4 * (4 * u + i), 4)
                a(f"v_mfma_f32_16x16x32_bf16 {acc}, {v(WREG[k]+4*u,4)}, {v(BREG[k]+4*i,4)}, {'0' if k == 0 else acc}")
        POOL.append(BREG[k]); POOL.append(WREG[k])
        if EO is not None: POOL.sort()
    for k in range(NH):
        if k + 1 >= 6 and k + 1 < NH:
            vm.wait(("w", k + 1))
            rd_w2(k + 1)
        vm.wait(("b", k))
        if "hprobe" in opt and k in (0, 2, 4, 6, 8, 10): ts("l", lg)
        mm(k)
        more_b(NH, 1 if k >= 3 else 0)
        if RQ: dma_w(RQ.pop(0))
        if k == 5:
            for u in range(4):
                vm.issue(f"buffer_load_dwordx2 {v(XR+2*u,2)}, v9, s[36:39], 0 offen offset:{32*u}", "x")
        if k in (6, 7, 8):
            dma_w(k + 6)
        if EO is not None and k == EO - 1:
            vm.issue(f"buffer_load_dword v15, v23, {s(SY,4)}, 0 offen sc1", "eo")
        if EO is not None and k == EO:
            assert all(b in POOL for b in (128, 144, 160, 176)), (POOL, BREG, WREG)
            for b in (128, 144, 160, 176): POOL.remove(b)
            a("s_mov_b32 s1, 0")
            a(f"s_lshl_b32 s3, s{LW}, 10")
            a("v_add_u32 v16, s3, v1")
            vm.wait("eo")
            a(f"v_cmp_eq_u32 vcc, s{S_TAG}, v15")
            a("s_nop 3")
            a("s_cmp_eq_u64 vcc, -1")
            a(f"s_cbranch_scc0 {L('eono')}")
            for n in range(16):
                a(f"s_mov_b32 s60, {n*HS}")
                a(f"buffer_load_dwordx4 {v(128+4*n,4)}, v16, s[52:55], s60 offen sc1")
            a("s_mov_b32 s1, 1")
            a.label(L("eono"))
    if "hprobe" in opt: ts("l", lg)
    lds_spin("msr", ST_SY + 32, 4, 5)
    lg.done = lg.n
    a("v_lshlrev_b32 v4, 4, v0")
    for i in range(4):
        a(f"s_sub_u32 s3, s{LW}, {i + 1}")
        a("s_and_b32 s3, s3, 3")
        a("s_cmp_eq_u32 s3, 3")
        a(f"s_cbranch_scc1 {L('skw%d' % i)}")
        a(f"s_add_u32 s3, s3, {3*i}")
        a("s_lshl_b32 s3, s3, 12")
        a(f"s_add_u32 s3, s3, {BQ}")
        a("v_add_u32 v5, s3, v4")
        for u in range(4):
            a(f"ds_write_b128 v5, {v(G_ACC+4*(4*u+i),4)} offset:{u*1024}")
        a(f"s_branch {L('dnw%d' % i)}")
        a.label(L('skw%d' % i))
        for u in range(4):
            for r in (0, 2):
                a(f"v_pk_mov_b32 {v(32+4*u+r,2)}, {v(G_ACC+4*(4*u+i)+r,2)}, {v(G_ACC+4*(4*u+i)+r,2)} op_sel:[0,1]")
        a.label(L('dnw%d' % i))
    a(f"s_lshl_b32 s3, s{LW}, 2")
    a("v_mov_b32 v5, s3")
    a(f"v_mov_b32 v6, s{S_TAG}")
    a("s_waitcnt vmcnt(0) lgkmcnt(0)")
    a(f"ds_write_b32 v5, v6 offset:{ST_SY + 48}")
    for u in range(4):
        for d in range(2):
            a(f"v_lshlrev_b32 v6, 16, {v(XR+2*u+d)}")
            a(f"v_and_b32 v7, 0xffff0000, {v(XR+2*u+d)}")
            a(f"v_pk_add_f32 {v(32+4*u+2*d,2)}, {v(32+4*u+2*d,2)}, v[6:7]")
    a(f"s_mul_i32 s3, s{LW}, 12288")
    a(f"s_add_u32 s0, s3, {BQ}")
    a("v_add_u32 v14, s0, v4")
    for u in range(4):
        a(f"v_subrev_u32 {v(10+u)}, s3, {v(10+u)}")
        a(f"v_subrev_u32 {v(18+u)}, s3, {v(18+u)}")
    a(f"s_lshl_b32 s3, s{LW}, 10")
    a("v_add_u32 v1, s3, v1")
    srd(a, 40, S_OUT, 2048 * 1024)
    if TV == 1:
        ts("l")
        poll("po", 23, 4, sleep=OSL)
        ts("l")
        lg = Counter(a, "lgkmcnt", 12)
        vm = Counter(a, "vmcnt", 60)
        for n in range(16):
            a(f"s_mov_b32 s60, {n*HS}")
            vm.issue(f"buffer_load_dwordx4 {v(128+4*n,4)}, v1, s[52:55], s60 offen sc1", ("o", n))
        lds_spin("lsr", ST_SY + 48, 5, 6)
        for sl in range(3):
            for u in range(4):
                lg.issue(f"ds_read_b128 {v(192+16*sl+4*u,4)}, v14 offset:{sl*4096 + u*1024}", ("p", sl))
        WBL = [48, 64, 80, 96, 112]
        NPRE = len(WBL)
        def rd_wo(n):
            b, o = slot_off(NH + (n >> 2))
            for u in range(4):
                for hf in range(2):
                    lg.issue(f"ds_read_b64_tr_b16 {v(WBL[n % NPRE]+4*u+2*hf,2)}, {v(10+4*b+u)} offset:{(n&3)*12288 + o + hf*2048}", ("wo", n, u))
        for sl in range(3):
            lg.wait(("p", sl))
            for e in range(0, 16, 2):
                a(f"v_pk_add_f32 {v(32+e,2)}, {v(32+e,2)}, {v(192+16*sl+e,2)}")
            rd_wo(sl)
    else:
        ts("l")
        a(f"buffer_load_dword v15, v23, {s(SY,4)}, 0 offen sc1")
        lg = Counter(a, "lgkmcnt", 12)
        vm = Counter(a, "vmcnt", 60)
        lds_spin("lsr", ST_SY + 48, 5, 6)
        for sl in range(3):
            for u in range(4):
                lg.issue(f"ds_read_b128 {v(192+16*sl+4*u,4)}, v14 offset:{sl*4096 + u*1024}", ("p", sl))
        if EO is not None:
            a("s_cmp_eq_u32 s1, 1")
            a(f"s_cbranch_scc1 {L('eosk')}")
        a("s_waitcnt vmcnt(0)")
        a(f"v_cmp_eq_u32 vcc, s{S_TAG}, v15")
        a("s_nop 3")
        a("s_cmp_eq_u64 vcc, -1")
        a(f"s_cbranch_scc1 {L('pook')}")
        poll("po", 23, 15, sleep=OSL)
        a.label(L("pook"))
        for n in range(16):
            a(f"s_mov_b32 s60, {n*HS}")
            vm.issue(f"buffer_load_dwordx4 {v(128+4*n,4)}, v1, s[52:55], s60 offen sc1", ("o", n))
        a.label(L("eosk"))
        ts("l", lg)
        WBL = [48, 64, 80, 96, 112]
        NPRE = len(WBL)
        def rd_wo(n):
            b, o = slot_off(NH + (n >> 2))
            for u in range(4):
                for hf in range(2):
                    lg.issue(f"ds_read_b64_tr_b16 {v(WBL[n % NPRE]+4*u+2*hf,2)}, {v(10+4*b+u)} offset:{(n&3)*12288 + o + hf*2048}", ("wo", n, u))
        for sl in range(3):
            lg.wait(("p", sl))
            for e in range(0, 16, 2):
                a(f"v_pk_add_f32 {v(32+e,2)}, {v(32+e,2)}, {v(192+16*sl+e,2)}")
            rd_wo(sl)
    if TV == 1:
        for n in range(16):
            if n + 3 < 16:
                lg.wait(("wo", n + 2, 1))
                rd_wo(n + 3)
            vm.wait(("o", n))
            for u in range(4):
                lg.wait(("wo", n, u))
                a(f"v_mfma_f32_16x16x32_bf16 {v(32+4*u,4)}, {v(WBL[n % NPRE]+4*u,4)}, {v(128+4*n,4)}, {v(32+4*u,4)}")
    else:
        lg.maxv = 14
        for n in range(16):
            vm.wait(("o", n))
            lg.wait(("wo", n, 3))
            for u in range(4):
                a(f"v_mfma_f32_16x16x32_bf16 {v(32+4*u,4)}, {v(WBL[n % NPRE]+4*u,4)}, {v(128+4*n,4)}, {v(32+4*u,4)}")
                if n + 3 < 16:
                    b, o = slot_off(NH + ((n + 3) >> 2))
                    if u == 0: lg.wait(("wo", n + 2, 0))
                    for hf in range(2):
                        lg.issue(f"ds_read_b64_tr_b16 {v(WBL[(n+3) % NPRE]+4*u+2*hf,2)}, {v(10+4*b+u)} offset:{((n+3)&3)*12288 + o + hf*2048}", ("wo", n + 3, u))
    ts("l", lg)
    if "until" in opt:
        a.label(L("unt"))
        a("s_memrealtime s[62:63]")
        a("s_waitcnt lgkmcnt(0)")
        a("s_sub_u32 s62, s62, s96")
        a(f"s_cmp_lt_u32 s62, {UNT}")
        a(f"s_cbranch_scc1 {L('unt')}")
    if "delay" in opt:
        a("s_memtime s[60:61]")
        a("s_waitcnt lgkmcnt(0)")
        a.label(L("dly"))
        a("s_memtime s[62:63]")
        a("s_waitcnt lgkmcnt(0)")
        a("s_sub_u32 s62, s62, s60")
        a("s_cmp_lt_u32 s62, 20000")
        a(f"s_cbranch_scc1 {L('dly')}")
    a("s_nop 7")
    for h2 in range(2):
        d = 32 + 8 * h2
        a(f"v_cvt_pk_bf16_f32 {v(d)}, {v(d)}, {v(d+1)}")
        a(f"v_cvt_pk_bf16_f32 {v(d+1)}, {v(d+2)}, {v(d+3)}")
        a(f"v_cvt_pk_bf16_f32 {v(d+2)}, {v(d+4)}, {v(d+5)}")
        a(f"v_cvt_pk_bf16_f32 {v(d+3)}, {v(d+6)}, {v(d+7)}")
        a("s_nop 0")
        a(f"v_permlane16_swap_b32 {v(d)}, {v(d+2)}")
        a(f"v_permlane16_swap_b32 {v(d+1)}, {v(d+3)}")
        a(f"buffer_store_dwordx4 {v(d,4)}, v8, s[40:43], 0 offen offset:{64*h2} {OP}")
    ts_dump("l")
    a.label(L("end"))
    a("s_endpgm")
```
